```python
import torch

def _softmax(x, axis=-1):
    return torch.softmax(x, dim=axis)

def _gelu(x):
    return torch.nn.functional.gelu(x, approximate='tanh')

def _silu(x):
    return torch.nn.functional.silu(x)

def _sigmoid(x):
    return torch.sigmoid(x)

def _layernorm(x, axis=-1, eps=1e-05):
    m = x.mean(dim=axis, keepdim=True)
    v = x.var(dim=axis, keepdim=True, unbiased=False)
    return (x - m) / torch.sqrt(v + eps)

def _scatter_add(tgt, idx, src, axis=0):
    return tgt.clone().index_add_(axis, idx, src)

def _segment_sum(src, seg, n):
    out = torch.zeros((n,) + src.shape[1:], dtype=src.dtype)
    return out.index_add_(0, seg, src)

def _pad(x, pw):
    flat = tuple((v for pair in reversed(pw) for v in pair))
    return torch.nn.functional.pad(x, flat)
kernel_name = 'adaLN_cond__grouped_kv_mqa__mixer_channel_mlp__prompt'

def setup_inputs():

    _w = lambda a: (lambda t: t.to(torch.bfloat16) if t.is_floating_point() else t)(torch.as_tensor(a))

    def _A_setup():
        B, S, D, H = (1, 2048, 1024, 32)
        Dh = D // H
        return {'x': _w((lambda *s: torch.randn(*s, dtype=torch.bfloat16) * 0.05)(B, S, D)), 'wq': _w((lambda *s: torch.randn(*s, dtype=torch.bfloat16) * 0.05)(D, H * Dh)), 'wk': _w((lambda *s: torch.randn(*s, dtype=torch.bfloat16) * 0.05)(D, Dh)), 'wv': _w((lambda *s: torch.randn(*s, dtype=torch.bfloat16) * 0.05)(D, Dh)), 'wo': _w((lambda *s: torch.randn(*s, dtype=torch.bfloat16) * 0.05)(H * Dh, D))}
    _A_in = _A_setup()

    def _B_setup():
        B, S, D, F = (1, 2048, 1024, 3584)
        return {'x': _w((lambda *s: torch.randn(*s, dtype=torch.bfloat16) * 0.05)(B, S, D)), 'w1': _w((lambda *s: torch.randn(*s, dtype=torch.bfloat16) * 12.8)(D, F) * D ** (-0.5)), 'b1': _w((lambda *s: torch.randn(*s, dtype=torch.bfloat16) * 6.4)(F)), 'w2': _w((lambda *s: torch.randn(*s, dtype=torch.bfloat16) * 0.2)(F, D) * F ** (-0.5)), 'b2': _w((lambda *s: torch.randn(*s, dtype=torch.bfloat16) * 1.6)(D))}
    _B_in = _B_setup()
    return {'A_x': _A_in['x'], 'A_wq': _A_in['wq'], 'A_wk': _A_in['wk'], 'A_wv': _A_in['wv'], 'A_wo': _A_in['wo'], 'B_x': _B_in['x'], 'B_w1': _B_in['w1'], 'B_b1': _B_in['b1'], 'B_w2': _B_in['w2'], 'B_b2': _B_in['b2'], 'c': _w((lambda *s: torch.randn(*s, dtype=torch.bfloat16) * 0.1)(1, 1024) * 8.0), 'w_mod': _w((lambda *s: torch.randn(*s, dtype=torch.bfloat16) * 0.1)(1024, 6 * 1024) * 1024 ** (-0.5) * 8.0)}

def reference(A_x, A_wq, A_wk, A_wv, A_wo, B_x, B_w1, B_b1, B_w2, B_b2, c, w_mod):

    def _A_ref(x, wq, wk, wv, wo):
        B, S, D = x.shape
        H = 32
        Dh = D // H
        q = (lambda x, *d: x.permute(*d))((x @ wq).reshape(B, S, H, Dh), 0, 2, 1, 3)
        k = x @ wk
        v = x @ wv
        scores = torch.einsum('bhqd,bkd->bhqk', q, k) * Dh ** (-0.5)
        p = _softmax(scores, axis=-1)
        o = torch.einsum('bhqk,bkd->bhqd', p, v)
        return (lambda x, *d: x.permute(*d))(o, 0, 2, 1, 3).reshape(B, S, H * Dh) @ wo

    def _B_ref(x, w1, b1, w2, b2):
        y = _layernorm(x, axis=-1)
        h = _gelu(torch.einsum('bsd,df->bsf', y, w1) + b1)
        return torch.einsum('bsf,fd->bsd', h, w2) + b2
    x = A_x
    mod = (_silu(c) @ w_mod).reshape(c.shape[0], 6, 1, -1)
    sa, ca, ga, sb, cb, gb = (mod[:, 0].clone(), mod[:, 1].clone(), mod[:, 2].clone(), mod[:, 3].clone(), mod[:, 4].clone(), mod[:, 5].clone())
    h = _layernorm(x, axis=-1) * (1 + ca) + sa
    x = x + ga * _A_ref(h, A_wq, A_wk, A_wv, A_wo)
    h = _layernorm(x, axis=-1) * (1 + cb) + sb
    x = x + gb * _B_ref(h, B_w1, B_b1, B_w2, B_b2)
    return x
```

```python
class Asm:
    def __init__(self):
        self.L = []
    def __call__(self, txt):
        for line in txt.strip("\n").split("\n"):
            line = line.strip()
            if not line:
                continue
            if line.endswith(":") and not line.startswith(";"):
                self.L.append(line)
            else:
                self.L.append("    " + line)
    def text(self):
        return "\n".join(self.L) + "\n"

def vr(a, n=1):
    return f"v{a}" if n == 1 else f"v[{a}:{a+n-1}]"
def sr(a, n=1):
    return f"s{a}" if n == 1 else f"s[{a}:{a+n-1}]"

def kernel_begin(A, name):
    A.L.append(".text")
    A.L.append(f".globl {name}")
    A.L.append(".p2align 8")
    A.L.append(f".type {name},@function")
    A.L.append(f"{name}:")

def kernel_end(A, name, vgprs, sgprs=102):
    acc = (vgprs + 3) // 4 * 4
    A.L.append(".section .rodata,\"a\"")
    A.L.append(".p2align 6")
    A.L.append(f".amdhsa_kernel {name}")
    A.L.append(f"  .amdhsa_next_free_vgpr {vgprs}")
    A.L.append(f"  .amdhsa_next_free_sgpr {sgprs}")
    A.L.append(f"  .amdhsa_accum_offset {acc}")
    A.L.append("  .amdhsa_group_segment_fixed_size 0")
    A.L.append("  .amdhsa_kernarg_size 120")
    A.L.append("  .amdhsa_user_sgpr_count 2")
    A.L.append("  .amdhsa_user_sgpr_kernarg_segment_ptr 1")
    A.L.append("  .amdhsa_system_sgpr_workgroup_id_x 1")
    A.L.append(".end_amdhsa_kernel")

def srd(A, s, base_pair, off, nbytes):
    if off == 0:
        A(f"s_mov_b32 s{s}, s{base_pair}\ns_mov_b32 s{s+1}, s{base_pair+1}")
    else:
        A(f"s_add_u32 s{s}, s{base_pair}, {off:#x}\ns_addc_u32 s{s+1}, s{base_pair+1}, 0")
    A(f"s_mov_b32 s{s+2}, {nbytes:#x}\ns_mov_b32 s{s+3}, 0x00020000")

KA = dict(x=0, wq=8, wk=16, wv=24, wo=32, bx=40, w1=48, b1=56, w2=64, b2=72, c=80, wmod=88, out=96, dbg=104, ws=112)
WS_MODP = 0x0
WS_MODF = 0x18000
WS_KV   = 0x40000
WS_H    = 0x100000
WS_O    = 0x500000
WS_X1   = 0x900000
WS_Y    = 0xD00000
WS_HH   = 0x1100000
SZ_ACT  = 0x400000
SZ_HH   = 64 * 224 * 1024
LOG2E = 1.4426950408889634
import struct
def f32(x):
    return "0x%08x" % struct.unpack("<I", struct.pack("<f", x))[0]
```

```python
from genlib import *

def gen_k0(A):
    name = "k0_mod_kernel"
    kernel_begin(A, name)
    A(f"""
    s_cmp_ge_u32 s2, 384
    s_cbranch_scc1 K0_END
    s_load_dwordx2 s[4:5], s[0:1], {KA['c']}
    s_load_dwordx2 s[6:7], s[0:1], {KA['wmod']}
    s_load_dwordx2 s[20:21], s[0:1], {KA['ws']}
    s_lshr_b32 s22, s2, 2          ; cb
    s_and_b32 s23, s2, 3           ; ks
    v_lshrrev_b32 v1, 3, v0        ; rg
    v_and_b32 v2, 7, v0            ; cc
    v_mul_u32_u24 v3, 12288, v1
    v_lshl_add_u32 v3, v2, 4, v3   ; w voffset
    v_lshlrev_b32 v4, 1, v1        ; c voffset
    s_waitcnt lgkmcnt(0)
    """)
    srd(A, 8, 4, 0, 2048)
    srd(A, 12, 6, 0, 1024 * 12288)
    srd(A, 16, 20, WS_MODP, 4 * 6144 * 4)
    A(f"""
    s_mul_i32 s24, s23, {256*12288}
    s_lshl_b32 s25, s22, 7
    s_add_u32 s24, s24, s25
    s_lshl_b32 s26, s23, 9         ; c soffset
    """)
    for i in range(8):
        A(f"buffer_load_ushort v{8+i}, v4, s[8:11], s26 offen offset:{i*64}")
    for i in range(8):
        A(f"buffer_load_dwordx4 v[{16+4*i}:{19+4*i}], v3, s[12:15], s24 offen")
        if i < 7:
            A(f"s_add_u32 s24, s24, {32*12288}")
    for j in range(8):
        A(f"v_mov_b32 v{48+j}, 0")
    A("s_waitcnt vmcnt(8)")
    for i in range(8):
        A(f"""
        v_lshlrev_b32 v{8+i}, 16, v{8+i}
        v_mul_f32 v{56+i}, {f32(-LOG2E)}, v{8+i}
        """)
    for i in range(8):
        A(f"v_exp_f32 v{56+i}, v{56+i}")
    for i in range(8):
        A(f"v_add_f32 v{56+i}, 1.0, v{56+i}")
    for i in range(8):
        A(f"v_rcp_f32 v{56+i}, v{56+i}")
    for i in range(8):
        A(f"v_mul_f32 v{8+i}, v{8+i}, v{56+i}")
    for i in range(8):
        A(f"v_cvt_pk_bf16_f32 v{8+i}, v{8+i}, 0")
    for i in range(8):
        A(f"v_lshlrev_b32 v{8+i}, 16, v{8+i}")
    for i in range(8):
        A(f"s_waitcnt vmcnt({7-i})")
        for d in range(4):
            w = 16 + 4*i + d
            A(f"""
            v_lshlrev_b32 v5, 16, v{w}
            v_and_b32 v6, 0xffff0000, v{w}
            v_fmac_f32 v{48+2*d}, v5, v{8+i}
            v_fmac_f32 v{49+2*d}, v6, v{8+i}
            """)
    A(f"""
    v_lshlrev_b32 v5, 5, v0
    ds_write_b128 v5, v[48:51]
    ds_write_b128 v5, v[52:55] offset:16
    s_waitcnt lgkmcnt(0)
    s_barrier
    v_cmp_gt_u32 vcc, 64, v0
    s_and_saveexec_b64 s[28:29], vcc
    s_cbranch_execz K0_END
    v_lshlrev_b32 v5, 2, v0
    """)
    for rg in range(32):
        A(f"ds_read_b32 v{16+rg}, v5 offset:{rg*256}")
    A("s_waitcnt lgkmcnt(0)")
    for st in (16, 8, 4, 2, 1):
        for i in range(st):
            A(f"v_add_f32 v{16+i}, v{16+i}, v{16+i+st}")
    A(f"""
    s_mul_i32 s24, s23, {6144*4}
    s_lshl_b32 s25, s22, 8
    s_add_u32 s24, s24, s25
    buffer_store_dword v16, v5, s[16:19], s24 offen
    K0_END:
    s_endpgm
    """)
    kernel_end(A, name, 64)


def bf16_round_pairs(A, regs, tmp):
    for i in range(0, len(regs), 2):
        A(f"v_cvt_pk_bf16_f32 v{tmp}, v{regs[i]}, v{regs[i+1]}")
        A(f"v_lshlrev_b32 v{regs[i]}, 16, v{tmp}")
        A(f"v_and_b32 v{regs[i+1]}, 0xffff0000, v{tmp}")


def gen_k1(A):
    name = "k1_lnkv_kernel"
    kernel_begin(A, name)
    XR, WR, GR, RED = 0, 65536, 131072, 139264
    A(f"""
    s_cmp_gt_u32 s2, 128
    s_cbranch_scc1 K1_END
    s_load_dwordx2 s[4:5], s[0:1], {KA['x']}
    s_load_dwordx4 s[40:43], s[0:1], {KA['wk']}
    s_load_dwordx2 s[20:21], s[0:1], {KA['ws']}
    v_and_b32 v1, 63, v0           ; l
    v_lshrrev_b32 v2, 6, v0        ; w
    s_nop 0
    v_readfirstlane_b32 s30, v2    ; s30 = wave
    v_and_b32 v3, 31, v0           ; t
    v_bfe_u32 v4, v0, 5, 1         ; h
    s_waitcnt lgkmcnt(0)
    """)
    srd(A, 16, 20, WS_MODP, 4 * 6144 * 4)
    A("s_cmp_eq_u32 s2, 128\ns_cbranch_scc1 K1_FIN")
    A("s_lshr_b32 s31, s2, 1\ns_and_b32 s32, s2, 1")
    srd(A, 8, 4, 0, 2048 * 2048)
    A("""
    s_cmp_eq_u32 s32, 0
    s_cselect_b32 s12, s40, s42
    s_cselect_b32 s13, s41, s43
    s_mov_b32 s14, 65536
    s_mov_b32 s15, 0x00020000
    """)
    srd(A, 24, 20, WS_H, SZ_ACT)
    A("s_cmp_eq_u32 s32, 0\ns_cselect_b32 s26, s26, 0")
    srd(A, 44, 20, WS_KV, 0x40000)
    A(f"""
    v_xor_b32 v5, v3, v4
    v_lshlrev_b32 v5, 4, v5
    v_lshl_add_u32 v5, v4, 11, v5      ; v_a = h*2048 + (p^h)*16
    s_lshl_b32 s33, s31, 16
    s_lshl_b32 s34, s30, 9
    s_add_u32 s33, s33, s34
    s_lshl_b32 s35, s30, 14
    """)
    for i in range(16):
        A(f"""
        v_xor_b32 v6, {((2*i) & 15) << 4}, v5
        s_add_u32 m0, s35, {XR + i*1024}
        s_add_u32 s36, s33, {i*4096}
        buffer_load_dwordx4 v6, s[8:11], s36 offen lds
        """)
    A("v_lshlrev_b32 v7, 4, v1\ns_lshl_b32 s37, s30, 10")
    for p in range(4):
        A(f"s_add_u32 s36, s37, {p*24576}\nbuffer_load_dwordx4 v[{16+4*p}:{19+4*p}], v7, s[16:19], s36 offen")
        A(f"s_add_u32 s36, s37, {p*24576+4096}\nbuffer_load_dwordx4 v[{32+4*p}:{35+4*p}], v7, s[16:19], s36 offen")
    for i in range(16):
        A(f"""
        s_add_u32 m0, s35, {WR + i*1024}
        s_add_u32 s36, s35, {i*1024}
        buffer_load_dwordx4 v7, s[12:15], s36 offen lds
        """)
    A("s_waitcnt vmcnt(16)")
    for e in range(4):
        A(f"""
        v_add_f32 v{16+e}, v{16+e}, v{20+e}
        v_add_f32 v{24+e}, v{24+e}, v{28+e}
        v_add_f32 v{32+e}, v{32+e}, v{36+e}
        v_add_f32 v{40+e}, v{40+e}, v{44+e}
        """)
    for e in range(4):
        A(f"v_add_f32 v{16+e}, v{16+e}, v{24+e}\nv_add_f32 v{32+e}, v{32+e}, v{40+e}")
    bf16_round_pairs(A, [16, 17, 18, 19], 8)
    bf16_round_pairs(A, [32, 33, 34, 35], 8)
    for e in range(4):
        A(f"v_add_f32 v{32+e}, 1.0, v{32+e}")
    bf16_round_pairs(A, [32, 33, 34, 35], 8)
    A(f"""
    s_lshl_b32 s36, s30, 10
    v_add_u32 v8, s36, v7              ; (256w + 4l)*4
    v_add_u32 v8, {GR}, v8
    ds_write_b128 v8, v[32:35]
    ds_write_b128 v8, v[16:19] offset:4096
    """)
    XV = 64
    A(f"""
    v_and_b32 v9, 15, v3
    v_xor_b32 v9, v9, v4
    v_lshlrev_b32 v9, 4, v9
    v_lshl_add_u32 v9, v3, 9, v9       ; t*512 + ((h ^ (t&15))*16)
    v_add_u32 v9, s35, v9
    s_waitcnt vmcnt(16)
    """)
    for s in range(16):
        A(f"v_xor_b32 v10, {32*(s & 7)}, v9")
        A(f"ds_read_b128 v[{XV+4*s}:{XV+4*s+3}], v10 offset:{(s >> 3)*256}")
    A("v_mov_b32 v12, 0\nv_mov_b32 v13, 0\nv_mov_b32 v14, 0x3f803f80\nv_mov_b32 v11, 0\nv_mov_b32 v15, 0")
    for s in range(16):
        A(f"s_waitcnt lgkmcnt({min(15, 15-s)})")
        for d in range(4):
            r = XV + 4*s + d
            a1, a2 = (12, 13) if d % 2 == 0 else (11, 15)
            A(f"v_dot2_f32_bf16 v{a1}, v{r}, v14, v{a1}")
            A(f"v_dot2_f32_bf16 v{a2}, v{r}, v{r}, v{a2}")
    A(f"""
    s_nop 2
    v_add_f32 v12, v12, v11
    v_add_f32 v13, v13, v15
    v_mov_b32 v10, v12
    v_mov_b32 v11, v13
    s_nop 1
    v_permlane32_swap_b32 v12, v10
    v_permlane32_swap_b32 v13, v11
    s_nop 1
    v_add_f32 v12, v12, v10
    v_add_f32 v13, v13, v11
    v_lshlrev_b32 v10, 3, v3           ; t*8
    s_lshl_b32 s36, s30, 8
    v_add_u32 v11, s36, v10
    v_add_u32 v11, {RED}, v11
    ds_write_b64 v11, v[12:13]
    s_waitcnt lgkmcnt(0)
    s_barrier
    v_add_u32 v10, {RED}, v10
    ds_read_b64 v[16:17], v10
    ds_read_b64 v[18:19], v10 offset:256
    ds_read_b64 v[20:21], v10 offset:512
    ds_read_b64 v[22:23], v10 offset:768
    s_waitcnt lgkmcnt(0)
    v_add_f32 v16, v16, v18
    v_add_f32 v17, v17, v19
    v_add_f32 v20, v20, v22
    v_add_f32 v21, v21, v23
    v_add_f32 v16, v16, v20
    v_add_f32 v17, v17, v21
    v_mul_f32 v16, {f32(1/1024)}, v16      ; mean
    v_mul_f32 v17, {f32(1/1024)}, v17      ; E[x^2]
    v_fma_f32 v17, -v16, v16, v17          ; var
    v_add_f32 v17, {f32(1e-5)}, v17
    v_rsq_f32 v12, v17                     ; a = rstd
    s_nop 0
    v_mul_f32 v13, v16, v12
    v_sub_f32 v13, 0, v13
    """)
    A(f"""
    s_lshl_b32 s36, s30, 10
    v_lshlrev_b32 v10, 5, v4
    v_add_u32 v10, s36, v10
    v_add_u32 v10, {GR}, v10               ; GR + w*1024 + h*32
    """)
    def gread(s):
        b = 16 + 16*(s & 1)
        A(f"ds_read_b128 v[{b}:{b+3}], v10 offset:{s*64}")
        A(f"ds_read_b128 v[{b+4}:{b+7}], v10 offset:{s*64+16}")
        A(f"ds_read_b128 v[{b+8}:{b+11}], v10 offset:{4096+s*64}")
        A(f"ds_read_b128 v[{b+12}:{b+15}], v10 offset:{4096+s*64+16}")
    gread(0)
    for s in range(16):
        if s < 15:
            gread(s+1)
            A("s_waitcnt lgkmcnt(4)")
        else:
            A("s_waitcnt lgkmcnt(0)")
        b = 16 + 16*(s & 1)
        for d in range(4):
            r = XV + 4*s + d
            A(f"""
            v_lshlrev_b32 v48, 16, v{r}
            v_and_b32 v49, 0xffff0000, v{r}
            v_fma_f32 v48, v48, v12, v13
            v_fma_f32 v49, v49, v12, v13
            v_fma_f32 v48, v48, v{b+2*d}, v{b+8+2*d}
            v_fma_f32 v49, v49, v{b+2*d+1}, v{b+8+2*d+1}
            v_cvt_pk_bf16_f32 v{r}, v48, v49
            """)
    A(f"""
    s_lshl_b32 s36, s31, 16
    s_lshl_b32 s37, s30, 14
    s_add_u32 s36, s36, s37            ; (tt*64 + 16w)*1024
    """)
    for s in range(16):
        if s and s % 4 == 0:
            A("s_add_u32 s36, s36, 4096")
        A(f"buffer_store_dwordx4 v[{XV+4*s}:{XV+4*s+3}], v7, s[24:27], s36 offen offset:{(s & 3)*1024}")
    WV = 128
    A(f"""
    v_bfe_u32 v10, v1, 2, 2            ; r
    v_lshlrev_b32 v10, 6, v10
    v_bfe_u32 v11, v1, 4, 1            ; G
    v_lshl_add_u32 v10, v11, 5, v10
    v_and_b32 v11, 3, v1
    v_lshl_add_u32 v10, v11, 3, v10
    v_lshl_add_u32 v10, v4, 9, v10     ; + h*512
    v_add_u32 v10, s35, v10
    v_add_u32 v10, {WR}, v10
    s_waitcnt vmcnt(16)
    """)
    for s in range(16):
        for e in range(2):
            A(f"ds_read_b64_tr_b16 v[{WV+4*s+2*e}:{WV+4*s+2*e+1}], v10 offset:{s*1024+e*256}")
    AC = 16
    A("s_waitcnt lgkmcnt(0)\ns_cmp_eq_u32 s32, 0\ns_cbranch_scc0 K1_V")
    for s in range(16):
        c = "0" if s == 0 else f"v[{AC}:{AC+15}]"
        A(f"v_mfma_f32_32x32x16_bf16 v[{AC}:{AC+15}], v[{WV+4*s}:{WV+4*s+3}], v[{XV+4*s}:{XV+4*s+3}], {c}")
    A("s_branch K1_RED\nK1_V:")
    for s in range(16):
        c = "0" if s == 0 else f"v[{AC}:{AC+15}]"
        A(f"v_mfma_f32_32x32x16_bf16 v[{AC}:{AC+15}], v[{XV+4*s}:{XV+4*s+3}], v[{WV+4*s}:{WV+4*s+3}], {c}")
    A(f"""
    K1_RED:
    s_nop 15
    v_add_u32 v10, s35, v7             ; w*16384 + l*16
    """)
    for jq in range(4):
        A(f"ds_write_b128 v10, v[{AC+4*jq}:{AC+4*jq+3}] offset:{jq*1024}")
    A(f"""
    s_waitcnt lgkmcnt(0)
    s_barrier
    s_lshl_b32 s36, s30, 10
    v_add_u32 v10, s36, v7             ; w*1024 + l*16
    ds_read_b128 v[32:35], v10
    ds_read_b128 v[36:39], v10 offset:16384
    ds_read_b128 v[40:43], v10 offset:32768
    ds_read_b128 v[44:47], v10 offset:49152
    s_waitcnt lgkmcnt(0)
    """)
    for e in range(4):
        A(f"v_add_f32 v{32+e}, v{32+e}, v{36+e}\nv_add_f32 v{40+e}, v{40+e}, v{44+e}")
    for e in range(4):
        A(f"v_add_f32 v{32+e}, v{32+e}, v{40+e}")
    A(f"""
    v_cvt_pk_bf16_f32 v32, v32, v33
    v_cvt_pk_bf16_f32 v33, v34, v35
    s_lshl_b32 s36, s31, 12            ; tt*4096
    s_lshl_b32 s37, s32, 11
    s_add_u32 s36, s36, s37
    s_lshr_b32 s37, s30, 1
    s_lshl_b32 s37, s37, 10
    s_add_u32 s36, s36, s37
    s_and_b32 s37, s30, 1
    s_lshl_b32 s37, s37, 3
    s_add_u32 s36, s36, s37
    buffer_store_dwordx2 v[32:33], v7, s[44:47], s36 offen
    s_endpgm
    """)
    A("K1_FIN:")
    srd(A, 24, 20, WS_MODF, 6144 * 4)
    A("v_lshlrev_b32 v7, 4, v0")
    for seg in range(6):
        for p in range(4):
            A(f"s_mov_b32 s36, {p*24576 + seg*4096}")
            A(f"buffer_load_dwordx4 v[{16+16*seg+4*p}:{19+16*seg+4*p}], v7, s[16:19], s36 offen")
    A("s_waitcnt vmcnt(0)")
    for seg in range(6):
        b = 16 + 16*seg
        for e in range(4):
            A(f"v_add_f32 v{b+e}, v{b+e}, v{b+4+e}\nv_add_f32 v{b+8+e}, v{b+8+e}, v{b+12+e}")
        for e in range(4):
            A(f"v_add_f32 v{b+e}, v{b+e}, v{b+8+e}")
        bf16_round_pairs(A, [b, b+1, b+2, b+3], 8)
        if seg in (1, 4):
            for e in range(4):
                A(f"v_add_f32 v{b+e}, 1.0, v{b+e}")
            bf16_round_pairs(A, [b, b+1, b+2, b+3], 8)
        A(f"s_mov_b32 s36, {seg*4096}\nbuffer_store_dwordx4 v[{b}:{b+3}], v7, s[24:27], s36 offen")
    A("K1_END:\ns_endpgm")
    kernel_end(A, name, 192)
```

```python
from genlib import *

ACC, AF, BF = 16, 48, 80

def wg_map_64(A):
    A("""
    s_and_b32 s26, s2, 7
    s_lshr_b32 s27, s2, 3
    s_and_b32 s28, s26, 3
    s_lshl_b32 s28, s28, 2
    s_and_b32 s29, s27, 3
    s_add_u32 s28, s28, s29
    s_lshr_b32 s29, s26, 2
    s_lshl_b32 s29, s29, 3
    s_lshr_b32 s27, s27, 2
    s_add_u32 s29, s29, s27
    """)

def lane_setup(A):
    A("""
    v_and_b32 v1, 63, v0
    v_lshrrev_b32 v5, 6, v0
    v_lshlrev_b32 v2, 4, v1
    v_readfirstlane_b32 s30, v5
    s_nop 3
    s_and_b32 s31, s30, 3
    s_lshr_b32 s32, s30, 2
    """)

def gemm64_setup(A, K, ldw, KS, perm):
    A(f"""
    v_lshrrev_b32 v5, 5, v1
    v_bfe_u32 v6, v1, 2, 2
    v_lshl_add_u32 v5, v5, 2, v6
    v_mul_u32_u24 v3, {ldw}, v5
    v_bfe_u32 v5, v1, 4, 1
    v_lshl_add_u32 v3, v5, 6, v3
    v_and_b32 v7, 3, v1
    v_lshl_add_u32 v3, v7, 4, v3
    v_lshlrev_b32 v4, 6, v6
    v_lshl_add_u32 v4, v5, 5, v4
    v_lshl_add_u32 v4, v7, 3, v4
    v_lshrrev_b32 v5, 5, v1
    v_lshl_add_u32 v4, v5, {9 if perm else 10}, v4
    s_lshl_b32 s36, s32, 13
    v_add_u32 v4, s36, v4
    s_mul_i32 s33, s32, {K//2}
    s_lshl_b32 s36, s31, 4
    s_add_u32 s33, s33, s36
    s_mul_i32 s33, s33, {ldw}
    s_lshl_b32 s36, s29, 7
    s_add_u32 s33, s33, s36
    s_lshl_b32 s34, s28, 2
    s_add_u32 s34, s34, s31
    s_mul_i32 s34, s34, {KS}
    s_mul_i32 s36, s32, {KS//2}
    s_add_u32 s34, s34, s36
    s_lshl_b32 s34, s34, 10
    s_mov_b32 s35, 0
    s_lshl_b32 s39, s32, 13
    s_lshl_b32 s36, s31, 11
    s_add_u32 s39, s39, s36
    s_mov_b32 s40, 0x7f000000
    """)

def gemm64_issue(A, slot, NS, ldw):
    A(f"""
    s_cmp_lt_u32 s35, {NS}
    s_cselect_b32 s36, s33, s40
    s_cselect_b32 s38, s34, s40
    s_add_u32 s37, s36, {8*ldw}
    s_add_u32 m0, s39, {slot*16384}
    s_add_u32 s33, s33, {64*ldw}
    buffer_load_dwordx4 v3, s[8:11], s36 offen lds
    s_add_u32 m0, s39, {slot*16384+1024}
    s_add_u32 s34, s34, 4096
    buffer_load_dwordx4 v3, s[8:11], s37 offen lds
    s_add_u32 s35, s35, 1
    """)
    for ks in range(4):
        b = BF + 16*slot + 4*ks
        A(f"buffer_load_dwordx4 v[{b}:{b+3}], v2, s[12:15], s38 offen offset:{ks*1024}")

def gemm64_loop(A, pfx, NS, ldw, perm):
    es = 1024 if perm else 512
    for i in range(32):
        A(f"v_mov_b32 v{ACC+i}, 0")
    for s in range(3):
        gemm64_issue(A, s, NS, ldw)
    A(f"s_mov_b32 s41, {NS//4}\n{pfx}_LOOP:")
    for slot in range(4):
        A("s_waitcnt vmcnt(12)\ns_barrier")
        gemm64_issue(A, (slot+3) % 4, NS, ldw)
        for ks in range(4):
            for ft in range(2):
                for e in range(2):
                    r = AF + (ks*2+ft)*4 + 2*e
                    A(f"ds_read_b64_tr_b16 v[{r}:{r+1}], v4 offset:{slot*16384 + ks*2048 + e*es + ft*256}")
        for ks in range(4):
            A(f"s_waitcnt lgkmcnt({12-4*ks})")
            b = BF + 16*slot + 4*ks
            for ft in range(2):
                a = AF + (ks*2+ft)*4
                c = ACC + 16*ft
                A(f"v_mfma_f32_32x32x16_bf16 v[{c}:{c+15}], v[{a}:{a+3}], v[{b}:{b+3}], v[{c}:{c+15}]")
    A(f"""
    s_sub_u32 s41, s41, 1
    s_cmp_lg_u32 s41, 0
    s_cbranch_scc1 {pfx}_LOOP
    s_waitcnt vmcnt(0)
    s_barrier
    s_nop 15
    """)

def gemm64_exchange(A, pfx):
    A(f"""
    s_lshl_b32 s36, s31, 13            ; tokt*8192
    v_add_u32 v5, s36, v2
    s_cmp_eq_u32 s32, 0
    s_cbranch_scc0 {pfx}_X1
    """)
    for jq in range(4):
        A(f"ds_write_b128 v5, v[{32+4*jq}:{35+4*jq}] offset:{4096+jq*1024}")
    A(f"s_branch {pfx}_X2\n{pfx}_X1:")
    for jq in range(4):
        A(f"ds_write_b128 v5, v[{16+4*jq}:{19+4*jq}] offset:{jq*1024}")
    A("s_nop 1")
    for i in range(16):
        A(f"v_mov_b32 v{16+i}, v{32+i}")
    A(f"""
    {pfx}_X2:
    s_waitcnt lgkmcnt(0)
    s_barrier
    s_lshl_b32 s36, s32, 12
    v_add_u32 v5, s36, v5
    """)
    for jq in range(4):
        A(f"ds_read_b128 v[{32+4*jq}:{35+4*jq}], v5 offset:{jq*1024}")
    A("s_waitcnt lgkmcnt(0)")
    for i in range(16):
        A(f"v_add_f32 v{16+i}, v{16+i}, v{32+i}")


def gen_k2(A):
    name = "k2_attn_kernel"
    kernel_begin(A, name)
    AR = 65536
    FLAG = 131072
    A(f"""
    s_cmp_ge_u32 s2, 256
    s_cbranch_scc1 K2_END
    s_load_dwordx2 s[4:5], s[0:1], {KA['wq']}
    s_load_dwordx2 s[20:21], s[0:1], {KA['ws']}
    """)
    wg_map_64(A)
    lane_setup(A)
    A("s_waitcnt lgkmcnt(0)")
    srd(A, 8, 4, 0, 1024*2048)
    srd(A, 12, 20, WS_H, SZ_ACT)
    srd(A, 16, 20, WS_KV, 0x40000)
    srd(A, 24, 20, WS_O, SZ_ACT)
    A(f"""
    v_mov_b32 v5, {FLAG}
    v_mov_b32 v6, 0
    ds_write_b32 v5, v6
    s_lshl_b32 s42, s30, 11            ; w*2048
    s_add_u32 s43, s42, {AR}
    """)
    def kv_issue_static(slot, stage):
        A(f"""
        s_add_u32 m0, s43, {slot*16384}
        s_add_u32 s36, s42, {stage*16384}
        buffer_load_dwordx4 v2, s[16:19], s36 offen lds
        buffer_load_dwordx4 v2, s[16:19], s36 offen offset:1024 lds
        """)
    for s in range(3):
        kv_issue_static(s, s)
    gemm64_setup(A, 1024, 2048, 64, perm=False)
    gemm64_loop(A, "K2G", 8, 2048, perm=False)
    gemm64_exchange(A, "K2G")
    Q, C, S0, S1, P, O, Lr, SEL = 48, 56, 72, 88, 104, 112, 128, 132
    KF = [136, 144]; VF = [152, 160]
    SS = [S0, S1]
    qs = (32 ** -0.5) * LOG2E
    for i in range(16):
        A(f"v_mul_f32 v{16+i}, {f32(qs)}, v{16+i}")
    for m in range(8):
        A(f"v_cvt_pk_bf16_f32 v{Q+m}, v{16+2*m}, v{16+2*m+1}")
    A(f"""
    v_and_b32 v5, 3, v1
    v_bfe_u32 v6, v1, 2, 1
    v_bfe_u32 v7, v1, 4, 1
    v_xor_b32 v6, v6, v7
    v_or_b32 v5, v5, v6
    v_cmp_eq_u32 vcc, 0, v5
    v_mov_b32 v6, 0x3f803f80
    v_mov_b32 v5, 0
    s_nop 1
    v_cndmask_b32 v{SEL}, v5, v6, vcc
    v_mov_b32 v{SEL+1}, v{SEL}
    v_mov_b32 v{SEL+2}, v{SEL}
    v_mov_b32 v{SEL+3}, v{SEL}
    v_add_u32 v5, {AR}, v2
    v_add_u32 v6, {AR+16384}, v2
    s_mov_b32 s44, 0                   ; mode
    ds_read_b128 v[{KF[0]}:{KF[0]+3}], v5
    ds_read_b128 v[{KF[0]+4}:{KF[0]+7}], v5 offset:1024
    s_waitcnt lgkmcnt(0)
    v_mfma_f32_32x32x16_bf16 v[{S0}:{S0+15}], v[{KF[0]}:{KF[0]+3}], v[{Q}:{Q+3}], 0
    v_mfma_f32_32x32x16_bf16 v[{S0}:{S0+15}], v[{KF[0]+4}:{KF[0]+7}], v[{Q+4}:{Q+7}], v[{S0}:{S0+15}]
    s_nop 15
    v_max3_f32 v7, v{S0}, v{S0+1}, v{S0+2}
    """)
    for i in range(3, 15, 2):
        A(f"v_max3_f32 v7, v7, v{S0+i}, v{S0+i+1}")
    A(f"""
    v_max_f32 v7, v7, v{S0+15}
    K2_SETC:
    v_mov_b32 v8, v7
    s_nop 1
    v_permlane32_swap_b32 v7, v8
    s_nop 1
    v_max_f32 v7, v7, v8
    v_sub_f32 v7, 0, v7
    """)
    for i in range(16):
        A(f"v_mov_b32 v{C+i}, v7")
    for i in range(16):
        A(f"v_mov_b32 v{O+i}, 0")
    for i in range(4):
        A(f"v_mov_b32 v{Lr+i}, 0")
    A(f"""
    v_add_u32 v5, {AR}, v2
    v_add_u32 v6, {AR+16384}, v2
    ds_read_b128 v[{KF[0]}:{KF[0]+3}], v5
    ds_read_b128 v[{KF[0]+4}:{KF[0]+7}], v5 offset:1024
    ds_read_b128 v[{KF[1]}:{KF[1]+3}], v5 offset:4096
    ds_read_b128 v[{KF[1]+4}:{KF[1]+7}], v5 offset:{4096+1024}
    ds_read_b128 v[{VF[0]}:{VF[0]+3}], v5 offset:2048
    ds_read_b128 v[{VF[0]+4}:{VF[0]+7}], v5 offset:3072
    s_waitcnt lgkmcnt(0)
    v_mfma_f32_32x32x16_bf16 v[{S0}:{S0+15}], v[{KF[0]}:{KF[0]+3}], v[{Q}:{Q+3}], v[{C}:{C+15}]
    v_mfma_f32_32x32x16_bf16 v[{S0}:{S0+15}], v[{KF[0]+4}:{KF[0]+7}], v[{Q+4}:{Q+7}], v[{S0}:{S0+15}]
    s_mov_b32 s45, 0                   ; stage i
    s_mov_b32 s46, {3*16384}
    s_mov_b32 s47, 3
    s_nop 7
    K2_LOOP:
    s_waitcnt vmcnt(2)
    s_barrier
    s_lshl_b32 s36, s47, 14
    s_add_u32 m0, s43, s36
    s_add_u32 s36, s42, s46
    buffer_load_dwordx4 v2, s[16:19], s36 offen lds
    buffer_load_dwordx4 v2, s[16:19], s36 offen offset:1024 lds
    s_add_u32 s46, s46, 16384
    s_add_u32 s47, s47, 1
    s_and_b32 s47, s47, 3
    """)
    for u in range(4):
        S = SS[u % 2]; Sn = SS[(u+1) % 2]
        Kn = KF[(u+1) % 2]; Kl = KF[u % 2]
        V = VF[u % 2]; Vl = VF[(u+1) % 2]
        ka = ("v5", (u+2)*4096) if u+2 < 4 else ("v6", (u+2-4)*4096)
        va = ("v5", (u+1)*4096+2048) if u+1 < 4 else ("v6", 2048)
        A(f"""
        s_waitcnt lgkmcnt(0)
        v_mfma_f32_32x32x16_bf16 v[{Sn}:{Sn+15}], v[{Kn}:{Kn+3}], v[{Q}:{Q+3}], v[{C}:{C+15}]
        ds_read_b128 v[{Kl}:{Kl+3}], {ka[0]} offset:{ka[1]}
        ds_read_b128 v[{Kl+4}:{Kl+7}], {ka[0]} offset:{ka[1]+1024}
        v_exp_f32 v{S}, v{S}
        v_exp_f32 v{S+1}, v{S+1}
        v_exp_f32 v{S+2}, v{S+2}
        v_exp_f32 v{S+3}, v{S+3}
        v_mfma_f32_32x32x16_bf16 v[{Sn}:{Sn+15}], v[{Kn+4}:{Kn+7}], v[{Q+4}:{Q+7}], v[{Sn}:{Sn+15}]
        ds_read_b128 v[{Vl}:{Vl+3}], {va[0]} offset:{va[1]}
        ds_read_b128 v[{Vl+4}:{Vl+7}], {va[0]} offset:{va[1]+1024}
        v_exp_f32 v{S+4}, v{S+4}
        v_exp_f32 v{S+5}, v{S+5}
        v_exp_f32 v{S+6}, v{S+6}
        v_exp_f32 v{S+7}, v{S+7}
        v_cvt_pk_bf16_f32 v{P}, v{S}, v{S+1}
        v_cvt_pk_bf16_f32 v{P+1}, v{S+2}, v{S+3}
        v_cvt_pk_bf16_f32 v{P+2}, v{S+4}, v{S+5}
        v_cvt_pk_bf16_f32 v{P+3}, v{S+6}, v{S+7}
        v_exp_f32 v{S+8}, v{S+8}
        v_exp_f32 v{S+9}, v{S+9}
        v_mfma_f32_32x32x16_bf16 v[{O}:{O+15}], v[{V}:{V+3}], v[{P}:{P+3}], v[{O}:{O+15}]
        v_exp_f32 v{S+10}, v{S+10}
        v_exp_f32 v{S+11}, v{S+11}
        v_mfma_f32_16x16x32_bf16 v[{Lr}:{Lr+3}], v[{SEL}:{SEL+3}], v[{P}:{P+3}], v[{Lr}:{Lr+3}]
        v_exp_f32 v{S+12}, v{S+12}
        v_exp_f32 v{S+13}, v{S+13}
        v_exp_f32 v{S+14}, v{S+14}
        v_exp_f32 v{S+15}, v{S+15}
        v_cvt_pk_bf16_f32 v{P+4}, v{S+8}, v{S+9}
        v_cvt_pk_bf16_f32 v{P+5}, v{S+10}, v{S+11}
        v_cvt_pk_bf16_f32 v{P+6}, v{S+12}, v{S+13}
        v_cvt_pk_bf16_f32 v{P+7}, v{S+14}, v{S+15}
        s_nop 1
        v_mfma_f32_32x32x16_bf16 v[{O}:{O+15}], v[{V+4}:{V+7}], v[{P+4}:{P+7}], v[{O}:{O+15}]
        v_mfma_f32_16x16x32_bf16 v[{Lr}:{Lr+3}], v[{SEL}:{SEL+3}], v[{P+4}:{P+7}], v[{Lr}:{Lr+3}]
        """)
    A(f"""
    v_mov_b32 v5, v6
    s_add_u32 s36, s45, 2
    s_and_b32 s36, s36, 3
    s_lshl_b32 s36, s36, 14
    s_add_u32 s36, s36, {AR}
    v_add_u32 v6, s36, v2
    s_add_u32 s45, s45, 1
    s_cmp_lt_u32 s45, 16
    s_cbranch_scc1 K2_LOOP
    s_waitcnt vmcnt(0) lgkmcnt(0)
    s_nop 15
    ; ---- check
    v_mov_b32 v7, {f32(2.0**100)}
    v_cmp_nlt_f32 vcc, v{Lr}, v7
    s_mov_b64 s[48:49], vcc
    v_mov_b32 v7, 0x207
    """)
    for i in range(16):
        A(f"v_cmp_class_f32 vcc, v{O+i}, v7\ns_or_b64 s[48:49], s[48:49], vcc")
    A(f"""
    s_cmp_lg_u32 s44, 0
    s_cbranch_scc1 K2_FINISH
    s_cmp_eq_u64 s[48:49], 0
    s_cbranch_scc1 K2_NOFLAG
    v_mov_b32 v7, {FLAG}
    v_mov_b32 v8, 1
    ds_write_b32 v7, v8
    K2_NOFLAG:
    s_waitcnt lgkmcnt(0)
    s_barrier
    v_mov_b32 v7, {FLAG}
    ds_read_b32 v8, v7
    s_waitcnt lgkmcnt(0)
    v_readfirstlane_b32 s36, v8
    s_nop 3
    s_cmp_eq_u32 s36, 0
    s_cbranch_scc1 K2_FINISH
    s_mov_b32 s44, 1
    v_mov_b32 v7, 0xff800000
    s_mov_b32 s45, 0
    v_add_u32 v5, {AR}, v2
    K2_MAXL:
    s_barrier
    s_lshl_b32 s36, s45, 14
    s_add_u32 s36, s36, s42
    s_mov_b32 m0, s43
    s_nop 0
    buffer_load_dwordx4 v2, s[16:19], s36 offen lds
    buffer_load_dwordx4 v2, s[16:19], s36 offen offset:1024 lds
    s_waitcnt vmcnt(0)
    s_barrier
    """)
    for u in range(4):
        A(f"""
        ds_read_b128 v[{KF[0]}:{KF[0]+3}], v5 offset:{u*4096}
        ds_read_b128 v[{KF[0]+4}:{KF[0]+7}], v5 offset:{u*4096+1024}
        s_waitcnt lgkmcnt(0)
        v_mfma_f32_32x32x16_bf16 v[{S0}:{S0+15}], v[{KF[0]}:{KF[0]+3}], v[{Q}:{Q+3}], 0
        v_mfma_f32_32x32x16_bf16 v[{S0}:{S0+15}], v[{KF[0]+4}:{KF[0]+7}], v[{Q+4}:{Q+7}], v[{S0}:{S0+15}]
        s_nop 15
        """)
        for i in range(0, 16, 2):
            A(f"v_max3_f32 v7, v7, v{S0+i}, v{S0+i+1}")
    A(f"""
    s_add_u32 s45, s45, 1
    s_cmp_lt_u32 s45, 16
    s_cbranch_scc1 K2_MAXL
    s_barrier
    """)
    for s in range(3):
        kv_issue_static(s, s)
    A(f"""
    s_waitcnt vmcnt(0)
    s_barrier
    s_branch K2_SETC
    K2_FINISH:
    v_rcp_f32 v7, v{Lr}
    s_nop 0
    """)
    for i in range(16):
        A(f"v_mul_f32 v{O+i}, v{O+i}, v7")
    for m in range(8):
        A(f"v_cvt_pk_bf16_f32 v{P+m}, v{O+2*m}, v{O+2*m+1}")
    A(f"""
    s_lshl_b32 s36, s28, 2
    s_add_u32 s36, s36, s31
    s_lshl_b32 s36, s36, 6
    s_lshl_b32 s37, s29, 2
    s_add_u32 s36, s36, s37
    s_lshl_b32 s37, s32, 1
    s_add_u32 s36, s36, s37
    s_lshl_b32 s36, s36, 10
    buffer_store_dwordx4 v[{P}:{P+3}], v2, s[24:27], s36 offen
    buffer_store_dwordx4 v[{P+4}:{P+7}], v2, s[24:27], s36 offen offset:1024
    K2_END:
    s_endpgm
    """)
    kernel_end(A, name, 168)


def load_vec16(A, dst, srd_s, soff_sgpr, vaddr):
    for jq in range(4):
        A(f"buffer_load_dwordx4 v[{dst+4*jq}:{dst+4*jq+3}], v{vaddr}, s[{srd_s}:{srd_s+3}], s{soff_sgpr} offen offset:{jq*32}")


def gen_k3(A):
    name = "k3_wo_kernel"
    kernel_begin(A, name)
    A(f"""
    s_cmp_ge_u32 s2, 256
    s_cbranch_scc1 K3_END
    s_load_dwordx2 s[4:5], s[0:1], {KA['wo']}
    s_load_dwordx2 s[6:7], s[0:1], {KA['x']}
    s_load_dwordx2 s[20:21], s[0:1], {KA['ws']}
    """)
    wg_map_64(A)
    lane_setup(A)
    A("s_waitcnt lgkmcnt(0)")
    srd(A, 8, 4, 0, 1024*2048)
    srd(A, 12, 20, WS_O, SZ_ACT)
    srd(A, 16, 6, 0, 2048*2048)
    srd(A, 24, 20, WS_X1, SZ_ACT)
    srd(A, 44, 20, WS_MODF, 6144*4)
    A(f"""
    v_and_b32 v8, 31, v1               ; t
    v_lshrrev_b32 v9, 5, v1            ; h
    v_lshlrev_b32 v10, 11, v8
    v_lshl_add_u32 v10, v9, 3, v10     ; t*2048 + h*8
    v_lshlrev_b32 v11, 4, v9           ; h*16
    s_lshl_b32 s36, s28, 2
    s_add_u32 s36, s36, s31
    s_lshl_b32 s36, s36, 16
    s_lshl_b32 s37, s29, 7
    s_add_u32 s36, s36, s37
    s_lshl_b32 s37, s32, 6
    s_add_u32 s36, s36, s37
    """)
    for jq in range(4):
        A(f"buffer_load_dwordx2 v[{144+2*jq}:{145+2*jq}], v10, s[16:19], s36 offen offset:{jq*16}")
    A(f"""
    s_lshl_b32 s36, s29, 8
    s_lshl_b32 s37, s32, 7
    s_add_u32 s36, s36, s37
    s_add_u32 s36, s36, {2048*4}
    """)
    load_vec16(A, 152, 44, 36, 11)
    gemm64_setup(A, 1024, 2048, 64, perm=True)
    gemm64_loop(A, "K3G", 8, 2048, perm=True)
    gemm64_exchange(A, "K3G")
    for jq in range(4):
        for d in range(2):
            x = 144 + 2*jq + d
            r = 16 + 4*jq + 2*d
            A(f"""
            v_lshlrev_b32 v8, 16, v{x}
            v_and_b32 v9, 0xffff0000, v{x}
            v_fma_f32 v{r}, v{r}, v{152+4*jq+2*d}, v8
            v_fma_f32 v{r+1}, v{r+1}, v{152+4*jq+2*d+1}, v9
            """)
    for m in range(8):
        A(f"v_cvt_pk_bf16_f32 v{32+m}, v{16+2*m}, v{16+2*m+1}")
    A(f"""
    s_lshl_b32 s36, s28, 2
    s_add_u32 s36, s36, s31
    s_lshl_b32 s36, s36, 6
    s_lshl_b32 s37, s29, 2
    s_add_u32 s36, s36, s37
    s_lshl_b32 s37, s32, 1
    s_add_u32 s36, s36, s37
    s_lshl_b32 s36, s36, 10
    buffer_store_dwordx4 v[32:35], v2, s[24:27], s36 offen
    buffer_store_dwordx4 v[36:39], v2, s[24:27], s36 offen offset:1024
    K3_END:
    s_endpgm
    """)
    kernel_end(A, name, 168)


def gen_k6(A):
    name = "k6_mlp2_kernel"
    kernel_begin(A, name)
    A(f"""
    s_cmp_ge_u32 s2, 256
    s_cbranch_scc1 K6_END
    s_load_dwordx2 s[4:5], s[0:1], {KA['w2']}
    s_load_dwordx2 s[6:7], s[0:1], {KA['b2']}
    s_load_dwordx2 s[22:23], s[0:1], {KA['out']}
    s_load_dwordx2 s[20:21], s[0:1], {KA['ws']}
    """)
    wg_map_64(A)
    lane_setup(A)
    A("s_waitcnt lgkmcnt(0)")
    srd(A, 8, 4, 0, 3584*2048)
    srd(A, 12, 20, WS_HH, SZ_HH)
    srd(A, 16, 6, 0, 2048)
    srd(A, 24, 22, 0, 2048*2048)
    srd(A, 44, 20, WS_MODF, 6144*4)
    srd(A, 48, 20, WS_X1, SZ_ACT)
    A(f"""
    v_lshrrev_b32 v9, 5, v1            ; h
    v_lshlrev_b32 v11, 4, v9           ; h*16
    v_lshlrev_b32 v10, 3, v9           ; h*8
    ; x1 frags
    s_lshl_b32 s36, s28, 2
    s_add_u32 s36, s36, s31
    s_lshl_b32 s36, s36, 6
    s_lshl_b32 s37, s29, 2
    s_add_u32 s36, s36, s37
    s_lshl_b32 s37, s32, 1
    s_add_u32 s36, s36, s37
    s_lshl_b32 s36, s36, 10
    buffer_load_dwordx4 v[144:147], v2, s[48:51], s36 offen
    buffer_load_dwordx4 v[148:151], v2, s[48:51], s36 offen offset:1024
    ; gb
    s_lshl_b32 s36, s29, 8
    s_lshl_b32 s37, s32, 7
    s_add_u32 s36, s36, s37
    s_add_u32 s36, s36, {5*1024*4}
    """)
    load_vec16(A, 152, 44, 36, 11)
    A("""
    s_lshl_b32 s36, s29, 7
    s_lshl_b32 s37, s32, 6
    s_add_u32 s36, s36, s37            ; (j*64+kh*32)*2
    """)
    for jq in range(4):
        A(f"buffer_load_dwordx2 v[{168+2*jq}:{169+2*jq}], v10, s[16:19], s36 offen offset:{jq*16}")
    gemm64_setup(A, 3584, 2048, 224, perm=True)
    gemm64_loop(A, "K6G", 28, 2048, perm=True)
    gemm64_exchange(A, "K6G")
    for jq in range(4):
        for d in range(2):
            x = 144 + 2*jq + d
            b = 168 + 2*jq + d
            r = 16 + 4*jq + 2*d
            A(f"""
            v_lshlrev_b32 v8, 16, v{b}
            v_and_b32 v9, 0xffff0000, v{b}
            v_add_f32 v{r}, v{r}, v8
            v_add_f32 v{r+1}, v{r+1}, v9
            v_lshlrev_b32 v8, 16, v{x}
            v_and_b32 v9, 0xffff0000, v{x}
            v_fma_f32 v{r}, v{r}, v{152+4*jq+2*d}, v8
            v_fma_f32 v{r+1}, v{r+1}, v{152+4*jq+2*d+1}, v9
            """)
    for m in range(8):
        A(f"v_cvt_pk_bf16_f32 v{32+m}, v{16+2*m}, v{16+2*m+1}")
    A(f"""
    s_nop 1
    v_permlane32_swap_b32 v32, v34
    v_permlane32_swap_b32 v33, v35
    v_permlane32_swap_b32 v36, v38
    v_permlane32_swap_b32 v37, v39
    """)
    A(f"""
    v_and_b32 v8, 31, v1
    v_lshrrev_b32 v9, 5, v1
    v_lshlrev_b32 v10, 11, v8
    v_lshl_add_u32 v10, v9, 4, v10      ; t*2048 + h*16
    s_lshl_b32 s36, s28, 2
    s_add_u32 s36, s36, s31
    s_lshl_b32 s36, s36, 16
    s_lshl_b32 s37, s29, 7
    s_add_u32 s36, s36, s37
    s_lshl_b32 s37, s32, 6
    s_add_u32 s36, s36, s37
    buffer_store_dwordx4 v[32:35], v10, s[24:27], s36 offen
    buffer_store_dwordx4 v[36:39], v10, s[24:27], s36 offen offset:32
    K6_END:
    s_endpgm
    """)
    kernel_end(A, name, 176)
```

```python
from genlib import *

def gen_k4(A):
    name = "k4_ln_kernel"
    kernel_begin(A, name)
    GR, RED = 0, 8192
    A(f"""
    s_cmp_ge_u32 s2, 64
    s_cbranch_scc1 K4_END
    s_load_dwordx2 s[20:21], s[0:1], {KA['ws']}
    v_and_b32 v1, 63, v0
    v_lshrrev_b32 v5, 6, v0
    v_lshlrev_b32 v2, 4, v1
    v_readfirstlane_b32 s30, v5
    v_and_b32 v3, 31, v0               ; t
    v_bfe_u32 v4, v0, 5, 1             ; h
    s_waitcnt lgkmcnt(0)
    """)
    srd(A, 8, 20, WS_X1, SZ_ACT)
    srd(A, 12, 20, WS_Y, SZ_ACT)
    srd(A, 16, 20, WS_MODF, 6144*4)
    XV = 16
    A(f"""
    s_lshl_b32 s33, s2, 16
    s_lshl_b32 s36, s30, 13
    s_add_u32 s33, s33, s36            ; (tt*64 + 8w)*1024
    s_add_u32 s34, s33, 4096
    """)
    for s in range(8):
        A(f"buffer_load_dwordx4 v[{XV+4*s}:{XV+4*s+3}], v2, s[8:11], s{33 if s < 4 else 34} offen offset:{(s & 3)*1024}")
    A(f"""
    v_lshlrev_b32 v6, 4, v0            ; tid*16
    s_mov_b32 s36, {3*4096}
    buffer_load_dwordx4 v[48:51], v6, s[16:19], s36 offen
    s_waitcnt vmcnt(0)
    ds_write_b128 v6, v[48:51]
    """)
    A("v_mov_b32 v12, 0\nv_mov_b32 v13, 0\nv_mov_b32 v14, 0x3f803f80\nv_mov_b32 v11, 0\nv_mov_b32 v15, 0")
    for s in range(8):
        for d in range(4):
            r = XV + 4*s + d
            a1, a2 = (12, 13) if d % 2 == 0 else (11, 15)
            A(f"v_dot2_f32_bf16 v{a1}, v{r}, v14, v{a1}")
            A(f"v_dot2_f32_bf16 v{a2}, v{r}, v{r}, v{a2}")
    def reduce(tag, off):
        A(f"""
        s_nop 2
        v_add_f32 v12, v12, v11
        v_add_f32 v13, v13, v15
        v_mov_b32 v10, v12
        v_mov_b32 v11, v13
        s_nop 1
        v_permlane32_swap_b32 v12, v10
        v_permlane32_swap_b32 v13, v11
        s_nop 1
        v_add_f32 v12, v12, v10
        v_add_f32 v13, v13, v11
        v_lshlrev_b32 v10, 3, v3
        s_lshl_b32 s36, s30, 8
        v_add_u32 v11, s36, v10
        ds_write_b64 v11, v[12:13] offset:{off}
        s_waitcnt lgkmcnt(0)
        s_barrier
        """)
        for w in range(8):
            A(f"ds_read_b64 v[{112+2*w}:{113+2*w}], v10 offset:{off + w*256}")
        A("s_waitcnt lgkmcnt(0)")
        for st in (4, 2, 1):
            for i in range(st):
                A(f"v_add_f32 v{112+2*i}, v{112+2*i}, v{112+2*(i+st)}\nv_add_f32 v{113+2*i}, v{113+2*i}, v{113+2*(i+st)}")
        A(f"""
        v_mul_f32 v112, {f32(1/1024)}, v112
        v_mul_f32 v113, {f32(1/1024)}, v113
        v_fma_f32 v113, -v112, v112, v113
        v_add_f32 v113, {f32(1e-5)}, v113
        v_rsq_f32 v12, v113
        s_nop 0
        v_mul_f32 v13, v112, v12
        v_sub_f32 v13, 0, v13
        """)
    reduce("a", RED)
    A(f"""
    s_lshl_b32 s36, s30, 9             ; 8w*16*4
    v_lshlrev_b32 v10, 4, v4           ; h*16
    v_add_u32 v10, s36, v10
    v_mov_b32 v8, 0
    v_mov_b32 v9, 0
    """)
    HV = 48
    for s in range(8):
        A(f"""
        ds_read_b128 v[112:115], v10 offset:{s*64}
        ds_read_b128 v[116:119], v10 offset:{s*64+32}
        ds_read_b128 v[120:123], v10 offset:{4096+s*64}
        ds_read_b128 v[124:127], v10 offset:{4096+s*64+32}
        s_waitcnt lgkmcnt(0)
        """)
        for d in range(4):
            r = XV + 4*s + d
            o = HV + 8*s + 2*d
            A(f"""
            v_lshlrev_b32 v{o}, 16, v{r}
            v_and_b32 v{o+1}, 0xffff0000, v{r}
            v_fma_f32 v{o}, v{o}, v12, v13
            v_fma_f32 v{o+1}, v{o+1}, v12, v13
            v_fma_f32 v{o}, v{o}, v{120+2*d}, v{112+2*d}
            v_fma_f32 v{o+1}, v{o+1}, v{120+2*d+1}, v{112+2*d+1}
            v_add_f32 v8, v8, v{o}
            v_fmac_f32 v9, v{o}, v{o}
            v_add_f32 v8, v8, v{o+1}
            v_fmac_f32 v9, v{o+1}, v{o+1}
            """)
    A("v_mov_b32 v12, v8\nv_mov_b32 v13, v9\nv_mov_b32 v11, 0\nv_mov_b32 v15, 0")
    reduce("b", RED + 2048)
    for s in range(8):
        for d in range(4):
            o = HV + 8*s + 2*d
            A(f"""
            v_fma_f32 v{o}, v{o}, v12, v13
            v_fma_f32 v{o+1}, v{o+1}, v12, v13
            v_cvt_pk_bf16_f32 v{XV+4*s+d}, v{o}, v{o+1}
            """)
    for s in range(8):
        A(f"buffer_store_dwordx4 v[{XV+4*s}:{XV+4*s+3}], v2, s[12:15], s{33 if s < 4 else 34} offen offset:{(s & 3)*1024}")
    A("K4_END:\ns_endpgm")
    kernel_end(A, name, 128)


def wg_map_224(A):
    A("""
    s_and_b32 s26, s2, 7
    s_lshr_b32 s27, s2, 3
    s_and_b32 s28, s26, 1
    s_lshl_b32 s28, s28, 3
    s_and_b32 s29, s27, 7
    s_add_u32 s28, s28, s29
    s_lshr_b32 s29, s26, 1
    s_lshl_b32 s29, s29, 2
    s_lshr_b32 s27, s27, 3
    s_add_u32 s29, s29, s27
    """)

GELU_C1 = -2.0 * 0.7978845608028654 * LOG2E
GELU_C2 = GELU_C1 * 0.044715

def gen_k5(A):
    name = "k5_mlp1_kernel"
    kernel_begin(A, name)
    SLOT = 28672
    ACC, AF, BF = 16, 128, 184
    A(f"""
    s_cmp_ge_u32 s2, 256
    s_cbranch_scc1 K5_END
    s_load_dwordx2 s[4:5], s[0:1], {KA['w1']}
    s_load_dwordx2 s[6:7], s[0:1], {KA['b1']}
    s_load_dwordx2 s[20:21], s[0:1], {KA['ws']}
    """)
    wg_map_224(A)
    A("""
    v_and_b32 v1, 63, v0
    v_lshrrev_b32 v5, 6, v0
    v_lshlrev_b32 v2, 4, v1
    v_readfirstlane_b32 s30, v5
    s_waitcnt lgkmcnt(0)
    """)
    srd(A, 8, 4, 0, 1024*7168)
    srd(A, 12, 20, WS_Y, SZ_ACT)
    srd(A, 16, 6, 0, 7168)
    srd(A, 24, 20, WS_HH, SZ_HH)
    A("s_cmp_ge_u32 s30, 4\ns_cbranch_scc1 K5_LOADER")
    A(f"""
    v_lshrrev_b32 v9, 5, v1
    v_lshlrev_b32 v10, 3, v9           ; h*8
    s_mul_i32 s36, s29, 448
    """)
    for ft in range(7):
        for jq in range(4):
            r = AF + 8*ft + 2*jq
            A(f"buffer_load_dwordx2 v[{r}:{r+1}], v10, s[16:19], s36 offen offset:{ft*64+jq*16}")
    A(f"""
    s_lshl_b32 s34, s28, 2
    s_add_u32 s34, s34, s30
    s_lshl_b32 s34, s34, 16
    """)
    for n in range(8):
        if n == 4:
            A("s_add_u32 s34, s34, 4096")
        A(f"buffer_load_dwordx4 v[{BF+4*n}:{BF+4*n+3}], v2, s[12:15], s34 offen offset:{(n & 3)*1024}")
    A(f"""
    s_add_u32 s34, s34, 4096
    v_bfe_u32 v6, v1, 2, 2
    v_lshlrev_b32 v4, 6, v6
    v_bfe_u32 v5, v1, 4, 1
    v_lshl_add_u32 v4, v5, 5, v4
    v_and_b32 v7, 3, v1
    v_lshl_add_u32 v4, v7, 3, v4
    v_mul_u32_u24 v5, 1792, v9
    v_add_u32 v4, v4, v5
    v_add_u32 v3, {2*SLOT}, v4
    s_waitcnt vmcnt(8)
    """)
    for ft in range(7):
        for jq in range(4):
            for d in range(2):
                src = AF + 8*ft + 2*jq + d
                dst = ACC + 16*ft + 4*jq + 2*d
                A(f"v_lshlrev_b32 v{dst}, 16, v{src}\nv_and_b32 v{dst+1}, 0xffff0000, v{src}")
    def areads(slot, ks, buf):
        va = "v4" if slot < 2 else "v3"
        base = (slot & 1)*SLOT + ks*7168
        out = []
        for ft in range(7):
            for e in range(2):
                r = AF + 28*buf + 4*ft + 2*e
                out.append(f"ds_read_b64_tr_b16 v[{r}:{r+1}], {va} offset:{base + e*3584 + ft*256}")
        return out
    A("s_barrier")
    for x in areads(0, 0, 0):
        A(x)
    A("s_mov_b32 s41, 4\nK5_LOOP:")
    n = 0
    for slot in range(4):
        A("s_barrier")
        for ks in range(4):
            buf = n % 2
            nslot, nks = (slot, ks+1) if ks < 3 else ((slot+1) % 4, 0)
            rd = areads(nslot, nks, 1-buf)
            b = BF + 4*(n % 8)
            A("s_waitcnt vmcnt(7) lgkmcnt(0)")
            for ft in range(7):
                a = AF + 28*buf + 4*ft
                c = ACC + 16*ft
                A(f"v_mfma_f32_32x32x16_bf16 v[{c}:{c+15}], v[{a}:{a+3}], v[{b}:{b+3}], v[{c}:{c+15}]")
                if ft < 5:
                    k = 3 if ft < 4 else 2
                    for x in rd[:k]:
                        A(x)
                    rd = rd[k:]
            if n % 4 == 0 and n > 0:
                pass
            A(f"buffer_load_dwordx4 v[{b}:{b+3}], v2, s[12:15], s34 offen offset:{(n & 3)*1024}")
            if n % 4 == 3:
                A("s_add_u32 s34, s34, 4096")
            n += 1
    A(f"""
    s_sub_u32 s41, s41, 1
    s_cmp_lg_u32 s41, 0
    s_cbranch_scc1 K5_LOOP
    s_waitcnt vmcnt(0) lgkmcnt(0)
    s_nop 15
    """)
    A(f"s_mov_b32 s42, {f32(GELU_C1)}\ns_mov_b32 s43, {f32(GELU_C2)}\nv_mov_b32 v8, s42")
    A(f"""
    ; H soffset = ((G*4+w)*224 + 14j)*1024
    s_lshl_b32 s36, s28, 2
    s_add_u32 s36, s36, s30
    s_mul_i32 s36, s36, 224
    s_mul_i32 s37, s29, 14
    s_add_u32 s36, s36, s37
    s_lshl_b32 s36, s36, 10
    """)
    for ft in range(7):
        c = ACC + 16*ft
        T = 128; E = 144
        for i in range(16):
            A(f"v_mul_f32 v{T+i}, v{c+i}, v{c+i}")
        for i in range(16):
            A(f"v_fma_f32 v{T+i}, v{T+i}, s43, v8")
        for i in range(16):
            A(f"v_mul_f32 v{T+i}, v{T+i}, v{c+i}")
        for i in range(16):
            A(f"v_exp_f32 v{T+i}, v{T+i}")
        for i in range(16):
            A(f"v_add_f32 v{T+i}, 1.0, v{T+i}")
        for i in range(16):
            A(f"v_rcp_f32 v{T+i}, v{T+i}")
        for i in range(16):
            A(f"v_mul_f32 v{T+i}, v{T+i}, v{c+i}")
        P = E + 8*(ft % 2)
        for m in range(8):
            A(f"v_cvt_pk_bf16_f32 v{P+m}, v{T+2*m}, v{T+2*m+1}")
        for e in range(2):
            kidx = 2*ft + e
            if kidx % 4 == 0 and kidx > 0:
                A("s_add_u32 s36, s36, 4096")
            A(f"buffer_store_dwordx4 v[{P+4*e}:{P+4*e+3}], v2, s[24:27], s36 offen offset:{(kidx & 3)*1024}")
    A("s_endpgm")
    A(f"""
    K5_LOADER:
    s_sub_u32 s31, s30, 4              ; lw
    s_mul_i32 s36, s31, 28
    v_lshrrev_b32 v5, 4, v1            ; l>>4
    v_add_u32 v5, s36, v5
    v_bfe_u32 v6, v1, 2, 2             ; r
    v_and_b32 v7, 3, v1                ; c
    """)
    for u in range(7):
        A(f"""
        v_add_u32 v8, {4*u}, v5
        v_mul_u32_u24 v9, 9363, v8
        v_lshrrev_b32 v9, 16, v9           ; q
        v_mul_u32_u24 v10, 7, v9
        v_sub_u32 v10, v8, v10             ; ft
        v_lshl_add_u32 v9, v9, 2, v6       ; row = 4q + r
        v_mul_u32_u24 v9, 7168, v9
        v_lshl_add_u32 v9, v10, 6, v9
        v_lshl_add_u32 v{16+u}, v7, 4, v9
        """)
    A(f"""
    s_mul_i32 s33, s29, 448
    s_mul_i32 s39, s31, 7168
    """)
    def issue(slot_sgpr=None, slot=None):
        for u in range(7):
            if slot is not None:
                A(f"s_add_u32 m0, s39, {slot*SLOT + u*1024}")
            else:
                A(f"s_add_u32 m0, s{slot_sgpr}, {u*1024}")
            A("s_nop 0")
            A(f"buffer_load_dwordx4 v{16+u}, s[8:11], s33 offen lds")
        A(f"s_add_u32 s33, s33, {64*7168}")
    for s in range(3):
        issue(slot=s)
    A(f"""
    s_waitcnt vmcnt(14)
    s_barrier
    s_mov_b32 s41, 16
    s_mov_b32 s42, 3
    K5_LLOOP:
    s_waitcnt vmcnt(7)
    s_barrier
    s_mul_i32 s43, s42, {SLOT}
    s_add_u32 s43, s43, s39
    """)
    issue(slot_sgpr=43)
    A(f"""
    s_add_u32 s42, s42, 1
    s_and_b32 s42, s42, 3
    s_sub_u32 s41, s41, 1
    s_cmp_lg_u32 s41, 0
    s_cbranch_scc1 K5_LLOOP
    s_waitcnt vmcnt(0)
    K5_END:
    s_endpgm
    """)
    kernel_end(A, name, 216)
```

```python
import sys
sys.path.insert(0, "work")
from genlib import *
import k_front, k_gemm, k_mlp1

HEADER = open("adaLN_cond__grouped_kv_mqa__mixer_channel_mlp__prompt.s.ref").read().split("; Override launch")[0]

def build(launches, gens):
    A = Asm()
    txt = HEADER
    for (k, g, b, l) in launches:
        txt += f"; @launch kernel={k} grid=({g},1,1) block=({b},1,1) lds={l}\n"
    txt += '.amdgcn_target "amdgcn-amd-amdhsa--gfx950"\n'
    for g in gens:
        g(A)
    return txt + A.text()

def v1():
    launches = [("k0_mod_kernel", 384, 256, 8192), ("k1_lnkv_kernel", 129, 256, 143360), ("k2_attn_kernel", 256, 512, 131136),
                ("k3_wo_kernel", 256, 512, 65536), ("k4_ln_kernel", 64, 512, 12288), ("k5_mlp1_kernel", 256, 512, 114688),
                ("k6_mlp2_kernel", 256, 512, 65536)]
    gens = [k_front.gen_k0, k_front.gen_k1, k_gemm.gen_k2, k_gemm.gen_k3, k_mlp1.gen_k4, k_mlp1.gen_k5, k_gemm.gen_k6]
    return build(launches, gens)

if __name__ == "__main__":
    out = sys.argv[1] if len(sys.argv) > 1 else "adaLN_cond__grouped_kv_mqa__mixer_channel_mlp__prompt.s"
    open(out, "w").write(v1())
    print("written", out)
```

```python
class Asm:
    def __init__(self):
        self.L = []
    def __call__(self, txt):
        for line in txt.strip("\n").split("\n"):
            line = line.strip()
            if not line:
                continue
            if line.endswith(":") and not line.startswith(";"):
                self.L.append(line)
            else:
                self.L.append("    " + line)
    def text(self):
        return "\n".join(self.L) + "\n"

def vr(a, n=1):
    return f"v{a}" if n == 1 else f"v[{a}:{a+n-1}]"
def sr(a, n=1):
    return f"s{a}" if n == 1 else f"s[{a}:{a+n-1}]"

def kernel_begin(A, name):
    A.L.append(".text")
    A.L.append(f".globl {name}")
    A.L.append(".p2align 8")
    A.L.append(f".type {name},@function")
    A.L.append(f"{name}:")

def kernel_end(A, name, vgprs, sgprs=102):
    acc = (vgprs + 3) // 4 * 4
    A.L.append(".section .rodata,\"a\"")
    A.L.append(".p2align 6")
    A.L.append(f".amdhsa_kernel {name}")
    A.L.append(f"  .amdhsa_next_free_vgpr {vgprs}")
    A.L.append(f"  .amdhsa_next_free_sgpr {sgprs}")
    A.L.append(f"  .amdhsa_accum_offset {acc}")
    A.L.append("  .amdhsa_group_segment_fixed_size 0")
    A.L.append("  .amdhsa_kernarg_size 120")
    A.L.append("  .amdhsa_user_sgpr_count 2")
    A.L.append("  .amdhsa_user_sgpr_kernarg_segment_ptr 1")
    A.L.append("  .amdhsa_system_sgpr_workgroup_id_x 1")
    A.L.append(".end_amdhsa_kernel")

def srd(A, s, base_pair, off, nbytes):
    if off == 0:
        A(f"s_mov_b32 s{s}, s{base_pair}\ns_mov_b32 s{s+1}, s{base_pair+1}")
    else:
        A(f"s_add_u32 s{s}, s{base_pair}, {off:#x}\ns_addc_u32 s{s+1}, s{base_pair+1}, 0")
    A(f"s_mov_b32 s{s+2}, {nbytes:#x}\ns_mov_b32 s{s+3}, 0x00020000")

KA = dict(x=0, wq=8, wk=16, wv=24, wo=32, bx=40, w1=48, b1=56, w2=64, b2=72, c=80, wmod=88, out=96, dbg=104, ws=112)
WS_MODP = 0x0
WS_MODR = 0x10000
WS_MODF = 0x18000
WS_UVW  = 0x20000
WS_ST   = 0x2200000
WS_GRAM = 0x20000 + 43008
WS_KV   = 0x40000
WS_H    = 0x100000
WS_O    = 0x500000
WS_X1   = 0x900000
WS_Y    = 0xD00000
WS_HH   = 0x1100000
SZ_ACT  = 0x400000
SZ_HH   = 64 * 224 * 1024
LOG2E = 1.4426950408889634
import struct
def f32(x):
    return "0x%08x" % struct.unpack("<I", struct.pack("<f", x))[0]

PROF = False
WS_PROF = 0x2000000
def prof_init(A, kidx):
    if not PROF: return
    A(f"""
    s_lshl_b32 s66, s2, 7
    s_add_u32 s66, s66, {WS_PROF + kidx*512*128:#x}
    s_add_u32 s64, s20, s66
    s_addc_u32 s65, s21, 0
    """)
def prof_stamp(A, slot, early=False):
    if not PROF: return
    A(f"s_memrealtime s[{68}:{69}]\ns_memtime s[{72+2*slot}:{73+2*slot}]\ns_waitcnt lgkmcnt(0)\ns_mov_b32 s{73+2*slot}, s68")
def prof_dump(A, nslots):
    if not PROF: return
    A(f"""
    v_cmp_eq_u32 vcc, 0, v0
    s_and_saveexec_b64 s[68:69], vcc
    s_cbranch_execz PROF_SKIP_{len(A.L)}
    """)
    lab = A.L[-1].split()[-1]
    for i in range(nslots):
        A(f"v_mov_b32 v4, s{72+2*i}\nv_mov_b32 v5, s{73+2*i}\nv_mov_b32 v6, {8*i}\nglobal_store_dwordx2 v6, v[4:5], s[64:65]")
    A(f"{lab}:\ns_mov_b64 exec, s[68:69]")
```

```python
from genlib import *
import genlib
from k_gemm import *
import k_gemm

def gen_k2(A):
    name = "k2_attn_kernel"
    kernel_begin(A, name)
    prof_stamp(A, 0)
    SB = [65536, 98304, 0]
    FLAG = 131072
    A(f"""
    s_cmp_ge_u32 s2, 256
    s_cbranch_scc1 K2_END
    s_load_dwordx2 s[4:5], s[0:1], {KA['wq']}
    s_load_dwordx2 s[20:21], s[0:1], {KA['ws']}
    s_load_dwordx2 s[6:7], s[0:1], {KA['wo']}
    s_load_dwordx2 s[22:23], s[0:1], {KA['w1']}
    s_load_dwordx2 s[50:51], s[0:1], {KA['w2']}
    """)
    wg_map_64(A)
    lane_setup(A)
    A("s_waitcnt lgkmcnt(0)")
    prof_init(A, 2)
    srd(A, 8, 4, 0, 1024*2048)
    srd(A, 12, 20, WS_H, SZ_ACT)
    srd(A, 16, 20, WS_KV, 0x40000)
    srd(A, 24, 20, WS_O, SZ_ACT)
    srd(A, 64-20, 20, 0, 0x14000)
    gemm64_setup(A, 1024, 2048, 64, perm=False)
    prof_stamp(A, 1)
    gemm64_prologue(A, 8, 2048)
    A(f"""
    v_mov_b32 v5, {FLAG}
    v_mov_b32 v6, 0
    ds_write_b32 v5, v6
    s_lshl_b32 s42, s30, 12            ; w*4096
    """)
    def kv_issue(lds_const, stage):
        A(f"""
        s_add_u32 m0, s42, {lds_const}
        s_add_u32 s36, s42, {stage*32768}
        """)
        for q in range(4):
            A(f"buffer_load_dwordx4 v2, s[16:19], s36 offen offset:{q*1024} lds")
    if OPT["pf_attn"]:
        A(f"""
        s_lshr_b32 s52, s2, 3              ; idx
        s_and_b32 s53, s2, 7               ; xcd
        v_lshrrev_b32 v5, 3, v1
        v_lshlrev_b32 v5, 11, v5
        v_and_b32 v6, 7, v1
        v_lshl_add_u32 v5, v6, 7, v5       ; (l>>3)*2048 + (l&7)*128
        s_lshl_b32 s36, s52, 5
        s_lshl_b32 s37, s30, 3
        s_add_u32 s36, s36, s37
        s_lshl_b32 s36, s36, 11
        s_lshr_b32 s37, s53, 2
        s_lshl_b32 s37, s37, 10
        s_add_u32 s36, s36, s37
        v_add_u32 v5, s36, v5
        v_lshrrev_b32 v6, 4, v1
        v_mul_u32_u24 v6, 7168, v6
        v_and_b32 v7, 15, v1
        v_min_u32 v7, 13, v7
        v_lshl_add_u32 v6, v7, 7, v6
        s_xor_b32 s37, s30, 4              ; u
        s_lshl_b32 s37, s37, 2
        s_lshl_b32 s36, s52, 5
        s_add_u32 s36, s36, s37
        s_mul_i32 s36, s36, 7168
        s_lshr_b32 s37, s53, 1
        s_mul_i32 s37, s37, 1792
        s_add_u32 s36, s36, s37
        v_add_u32 v6, s36, v6              ; W1 offset
        s_mul_i32 s36, s2, 224
        s_sub_u32 s37, s30, 4
        s_and_b32 s37, s37, 3
        s_lshl_b32 s37, s37, 6
        s_add_u32 s36, s36, s37
        v_add_u32 v7, s36, v1
        v_min_u32 v7, 57343, v7
        v_lshlrev_b32 v7, 7, v7            ; W2 offset
        s_cmp_lt_u32 s30, 4
        s_cselect_b32 s60, s6, s22
        s_cselect_b32 s61, s7, s23
        s_cselect_b32 s62, s22, s50
        s_cselect_b32 s63, s23, s51
        s_cselect_b64 vcc, -1, 0
        s_nop 1
        v_cndmask_b32 v168, v6, v5, vcc    ; A: w<4 ? Wo : W1
        v_cndmask_b32 v169, v7, v6, vcc    ; B: w<4 ? W1 : W2
        """)
    def hook2(A):
        kv_issue(SB[0], 0)
        kv_issue(SB[1], 1)
        A(f"""
        s_lshr_b32 s52, s2, 6
        s_and_b32 s53, s2, 63
        s_lshl_b32 s53, s53, 6             ; k0*4
        s_add_u32 s36, s52, 1
        s_and_b32 s36, s36, 2
        s_cmp_lg_u32 s36, 0
        s_mov_b32 s54, 8192
        s_cselect_b32 s54, 16384, s54
        s_cselect_b32 s55, 0, 0x10000      ; base
        s_mul_i32 s36, s52, 4096
        s_add_u32 s36, s36, 4096
        s_lshr_b32 s37, s52, 1
        s_lshl_b32 s37, s37, 12
        s_cselect_b32 s36, s36, s36
        s_add_u32 s38, s52, 1
        s_and_b32 s38, s38, 2
        s_cmp_lg_u32 s38, 0
        s_cselect_b32 s36, s36, s37
        s_add_u32 s55, s55, s36
        s_add_u32 s55, s55, s53
        v_lshlrev_b32 v8, 2, v1
        buffer_load_dword v171, v8, s[44:47], s55 offen
        s_add_u32 s55, s55, s54
        buffer_load_dword v172, v8, s[44:47], s55 offen
        s_add_u32 s55, s55, s54
        s_cmp_lg_u32 s38, 0
        s_cselect_b32 s36, s55, 0x7f000000
        buffer_load_dword v173, v8, s[44:47], s36 offen
        s_add_u32 s55, s55, s54
        s_cmp_lg_u32 s38, 0
        s_cselect_b32 s36, s55, 0x7f000000
        buffer_load_dword v174, v8, s[44:47], s36 offen
        """)
    gemm64_loop(A, "K2G", 8, 2048, perm=False, hook=hook2, extra_vm=12)
    prof_stamp(A, 2)
    srd(A, 44, 20, WS_MODF, 4096*4)
    A(f"""
    s_cmp_eq_u32 s30, 7
    s_cbranch_scc0 K2_NOMOD
    v_add_f32 v171, v171, v172
    v_add_f32 v173, v173, v174
    v_add_f32 v171, v171, v173
    v_cvt_pk_bf16_f32 v171, v171, v171
    v_lshlrev_b32 v171, 16, v171
    s_cmp_eq_u32 s52, 2
    s_cselect_b32 s36, 1.0, 0
    v_add_f32 v171, s36, v171
    v_cvt_pk_bf16_f32 v171, v171, v171
    v_lshlrev_b32 v171, 16, v171
    s_lshl_b32 s36, s2, 6
    v_lshlrev_b32 v8, 2, v1
    v_cmp_gt_u32 vcc, 16, v1
    s_and_saveexec_b64 s[54:55], vcc
    buffer_store_dword v171, v8, s[44:47], s36 offen
    s_mov_b64 exec, s[54:55]
    K2_NOMOD:
    """)
    gemm64_exchange(A, "K2G")
    Q, C, S0, S1, P, O, Lr, SEL = 48, 56, 72, 88, 104, 112, 128, 132
    KF = [136, 144]; VF = [152, 160]
    SS = [S0, S1]
    qs = (32 ** -0.5) * LOG2E
    for i in range(16):
        A(f"v_mul_f32 v{16+i}, {f32(qs)}, v{16+i}")
    for m in range(8):
        A(f"v_cvt_pk_bf16_f32 v{Q+m}, v{16+2*m}, v{16+2*m+1}")
    A(f"""
    v_add_u32 v5, {SB[0]}, v2
    ds_read_b128 v[{KF[0]}:{KF[0]+3}], v5
    ds_read_b128 v[{KF[0]+4}:{KF[0]+7}], v5 offset:1024
    v_and_b32 v5, 3, v1
    v_bfe_u32 v6, v1, 2, 1
    v_bfe_u32 v7, v1, 4, 1
    v_xor_b32 v6, v6, v7
    v_or_b32 v5, v5, v6
    v_cmp_eq_u32 vcc, 0, v5
    v_mov_b32 v6, 0x3f803f80
    v_mov_b32 v5, 0
    s_mov_b32 s44, 0                   ; mode
    s_nop 0
    v_cndmask_b32 v{SEL}, v5, v6, vcc
    s_waitcnt lgkmcnt(0)
    v_mfma_f32_32x32x16_bf16 v[{S0}:{S0+15}], v[{KF[0]}:{KF[0]+3}], v[{Q}:{Q+3}], 0
    v_mfma_f32_32x32x16_bf16 v[{S0}:{S0+15}], v[{KF[0]+4}:{KF[0]+7}], v[{Q+4}:{Q+7}], v[{S0}:{S0+15}]
    v_mov_b32 v{SEL+1}, v{SEL}
    v_mov_b32 v{SEL+2}, v{SEL}
    v_mov_b32 v{SEL+3}, v{SEL}
    s_nop 12
    v_max3_f32 v7, v{S0}, v{S0+1}, v{S0+2}
    """)
    for i in range(3, 15, 2):
        A(f"v_max3_f32 v7, v7, v{S0+i}, v{S0+i+1}")
    A(f"""
    v_max_f32 v7, v7, v{S0+15}
    K2_SETC:
    v_mov_b32 v8, v7
    v_add_u32 v5, {SB[0]}, v2
    v_add_u32 v6, {SB[1]}, v2
    v_permlane32_swap_b32 v7, v8
    ds_read_b128 v[{KF[0]}:{KF[0]+3}], v5
    ds_read_b128 v[{KF[0]+4}:{KF[0]+7}], v5 offset:1024
    ds_read_b128 v[{KF[1]}:{KF[1]+3}], v5 offset:4096
    ds_read_b128 v[{KF[1]+4}:{KF[1]+7}], v5 offset:{4096+1024}
    ds_read_b128 v[{VF[0]}:{VF[0]+3}], v5 offset:2048
    ds_read_b128 v[{VF[0]+4}:{VF[0]+7}], v5 offset:3072
    v_max_f32 v7, v7, v8
    v_sub_f32 v7, 0, v7
    """)
    for i in range(16):
        A(f"v_mov_b32 v{C+i}, v7")
    for i in range(16):
        A(f"v_mov_b32 v{O+i}, 0")
    for i in range(4):
        A(f"v_mov_b32 v{Lr+i}, 0")
    for i in range(4):
        A(f"v_mov_b32 v{P+4+i}, 0\nv_mov_b32 v{VF[1]+4+i}, 0")
    A(f"""
    s_waitcnt lgkmcnt(0)
    v_mfma_f32_32x32x16_bf16 v[{S0}:{S0+15}], v[{KF[0]}:{KF[0]+3}], v[{Q}:{Q+3}], v[{C}:{C+15}]
    v_mfma_f32_32x32x16_bf16 v[{S0}:{S0+15}], v[{KF[0]+4}:{KF[0]+7}], v[{Q+4}:{Q+7}], v[{S0}:{S0+15}]
    s_mov_b32 s45, 0                   ; stage i
    s_add_u32 s46, s42, {2*32768}
    s_mov_b32 s47, {SB[2]}
    s_mov_b32 s56, {SB[0]}             ; cur
    s_mov_b32 s57, {SB[1]}             ; next
    s_nop 5
    """)
    prof_stamp(A, 3)
    A(f"""
    K2_LOOP:
    s_cmp_lt_u32 s45, 3
    s_cbranch_scc1 K2_W1
    s_waitcnt vmcnt(0)
    K2_W1:
    s_waitcnt vmcnt(1)
    s_barrier
    s_add_u32 m0, s47, s42
    """)
    P0, P1 = P, P + 4
    def E(S, i): return f"v_exp_f32 v{S+i}, v{S+i}"
    def Cv(S, m): return f"v_cvt_pk_bf16_f32 v{P+m}, v{S+2*m}, v{S+2*m+1}"
    NT = 8
    for u in range(NT):
        S = SS[u % 2]; Sn = SS[(u+1) % 2]
        Kn = KF[(u+1) % 2]; Kl = KF[u % 2]
        V = VF[u % 2]; Vp = VF[(u+1) % 2]
        ka = ("v5", (u+2)*4096) if u+2 < NT else ("v6", (u+2-NT)*4096)
        va = ("v5", (u+1)*4096+2048) if u+1 < NT else ("v6", 2048)
        QKa = f"v_mfma_f32_32x32x16_bf16 v[{Sn}:{Sn+15}], v[{Kn}:{Kn+3}], v[{Q}:{Q+3}], v[{C}:{C+15}]"
        QKb = f"v_mfma_f32_32x32x16_bf16 v[{Sn}:{Sn+15}], v[{Kn+4}:{Kn+7}], v[{Q+4}:{Q+7}], v[{Sn}:{Sn+15}]"
        PVa = f"v_mfma_f32_32x32x16_bf16 v[{O}:{O+15}], v[{V}:{V+3}], v[{P0}:{P0+3}], v[{O}:{O+15}]"
        La = f"v_mfma_f32_16x16x32_bf16 v[{Lr}:{Lr+3}], v[{SEL}:{SEL+3}], v[{P0}:{P0+3}], v[{Lr}:{Lr+3}]"
        PVb_prev = f"v_mfma_f32_32x32x16_bf16 v[{O}:{O+15}], v[{Vp+4}:{Vp+7}], v[{P1}:{P1+3}], v[{O}:{O+15}]"
        Lb_prev = f"v_mfma_f32_16x16x32_bf16 v[{Lr}:{Lr+3}], v[{SEL}:{SEL+3}], v[{P1}:{P1+3}], v[{Lr}:{Lr+3}]"
        rdK = [f"ds_read_b128 v[{Kl}:{Kl+3}], {ka[0]} offset:{ka[1]}", f"ds_read_b128 v[{Kl+4}:{Kl+7}], {ka[0]} offset:{ka[1]+1024}"]
        rdV = [f"ds_read_b128 v[{Vp}:{Vp+3}], {va[0]} offset:{va[1]}", f"ds_read_b128 v[{Vp+4}:{Vp+7}], {va[0]} offset:{va[1]+1024}"]
        vm = []
        if u < 4:
            vm = [f"s_cmp_lt_u32 s45, 6", f"s_cbranch_scc0 K2_ND{u}",
                  f"buffer_load_dwordx4 v2, s[16:19], s46 offen offset:{u*1024} lds", f"K2_ND{u}:"]
        if u == 5 and OPT["pf_attn"]:
            vm = ["s_cmp_eq_u32 s45, 0", "s_cbranch_scc0 K2_PFA", "global_load_dword v170, v168, s[60:61]", "K2_PFA:",
                  "s_cmp_eq_u32 s45, 1", "s_cbranch_scc0 K2_PFB", "global_load_dword v170, v169, s[62:63]", "K2_PFB:"]
        seq = ["s_waitcnt lgkmcnt(0)", QKa, E(S,0), E(S,1), E(S,2),
               PVb_prev, E(S,3), E(S,4), E(S,5),
               Lb_prev, rdK[0], rdK[1], E(S,6), E(S,7), Cv(S,0), Cv(S,1),
               QKb, rdV[0], rdV[1], Cv(S,2), Cv(S,3), E(S,8), E(S,9),
               PVa] + vm + [E(S,10), E(S,11), E(S,12),
               La, E(S,13), E(S,14), E(S,15), Cv(S,4), Cv(S,5), Cv(S,6), Cv(S,7)]
        for x in seq: A(x)
    A(f"""
    v_mov_b32 v5, v6
    v_add_u32 v6, s47, v2
    s_mov_b32 s36, s56
    s_mov_b32 s56, s57
    s_mov_b32 s57, s47
    s_mov_b32 s47, s36
    s_add_u32 s46, s46, 32768
    s_add_u32 s45, s45, 1
    s_cmp_lt_u32 s45, 8
    s_cbranch_scc1 K2_LOOP
    v_mfma_f32_32x32x16_bf16 v[{O}:{O+15}], v[{VF[1]+4}:{VF[1]+7}], v[{P+4}:{P+7}], v[{O}:{O+15}]
    v_mfma_f32_16x16x32_bf16 v[{Lr}:{Lr+3}], v[{SEL}:{SEL+3}], v[{P+4}:{P+7}], v[{Lr}:{Lr+3}]
    s_waitcnt vmcnt(0) lgkmcnt(0)
    s_nop 15
    """)
    prof_stamp(A, 4)
    A(f"""
    ; ---- check
    v_mov_b32 v7, {f32(2.0**100)}
    v_cmp_nlt_f32 vcc, v{Lr}, v7
    s_mov_b64 s[48:49], vcc
    v_mov_b32 v7, 0x207
    """)
    for i in range(16):
        A(f"v_cmp_class_f32 vcc, v{O+i}, v7\ns_or_b64 s[48:49], s[48:49], vcc")
    A(f"""
    s_cmp_lg_u32 s44, 0
    s_cbranch_scc1 K2_FINISH
    s_cmp_eq_u64 s[48:49], 0
    s_cbranch_scc1 K2_NOFLAG
    v_mov_b32 v7, {FLAG}
    v_mov_b32 v8, 1
    ds_write_b32 v7, v8
    K2_NOFLAG:
    v_rcp_f32 v9, v{Lr}
    s_waitcnt lgkmcnt(0)
    s_barrier
    v_mov_b32 v7, {FLAG}
    ds_read_b32 v8, v7
    s_waitcnt lgkmcnt(0)
    v_readfirstlane_b32 s36, v8
    s_nop 3
    s_cmp_eq_u32 s36, 0
    s_cbranch_scc1 K2_FINISH
    s_mov_b32 s44, 1
    v_mov_b32 v7, 0xff800000
    s_mov_b32 s45, 0
    v_add_u32 v5, {SB[0]}, v2
    K2_MAXL:
    s_barrier
    s_lshl_b32 s36, s45, 15
    s_add_u32 s36, s36, s42
    s_add_u32 m0, s42, {SB[0]}
    s_nop 0
    """)
    for q in range(4):
        A(f"buffer_load_dwordx4 v2, s[16:19], s36 offen offset:{q*1024} lds")
    A("s_waitcnt vmcnt(0)\ns_barrier")
    for u in range(8):
        A(f"""
        ds_read_b128 v[{KF[0]}:{KF[0]+3}], v5 offset:{u*4096}
        ds_read_b128 v[{KF[0]+4}:{KF[0]+7}], v5 offset:{u*4096+1024}
        s_waitcnt lgkmcnt(0)
        v_mfma_f32_32x32x16_bf16 v[{S0}:{S0+15}], v[{KF[0]}:{KF[0]+3}], v[{Q}:{Q+3}], 0
        v_mfma_f32_32x32x16_bf16 v[{S0}:{S0+15}], v[{KF[0]+4}:{KF[0]+7}], v[{Q+4}:{Q+7}], v[{S0}:{S0+15}]
        s_nop 15
        """)
        for i in range(0, 16, 2):
            A(f"v_max3_f32 v7, v7, v{S0+i}, v{S0+i+1}")
    A(f"""
    s_add_u32 s45, s45, 1
    s_cmp_lt_u32 s45, 8
    s_cbranch_scc1 K2_MAXL
    s_barrier
    """)
    kv_issue(SB[0], 0)
    kv_issue(SB[1], 1)
    A(f"""
    s_waitcnt vmcnt(0)
    s_barrier
    s_branch K2_SETC
    K2_FINISH:
    v_rcp_f32 v7, v{Lr}
    s_nop 0
    """)
    for i in range(16):
        A(f"v_mul_f32 v{O+i}, v{O+i}, v7")
    for m in range(8):
        A(f"v_cvt_pk_bf16_f32 v{P+m}, v{O+2*m}, v{O+2*m+1}")
    A(f"""
    s_lshl_b32 s36, s28, 2
    s_add_u32 s36, s36, s31
    s_lshl_b32 s36, s36, 6
    s_lshl_b32 s37, s29, 2
    s_add_u32 s36, s36, s37
    s_lshl_b32 s37, s32, 1
    s_add_u32 s36, s36, s37
    s_lshl_b32 s36, s36, 10
    buffer_store_dwordx4 v[{P}:{P+3}], v2, s[24:27], s36 offen
    buffer_store_dwordx4 v[{P+4}:{P+7}], v2, s[24:27], s36 offen offset:1024
    """)
    if genlib.PROF: A("s_waitcnt vmcnt(0)")
    prof_stamp(A, 5)
    prof_dump(A, 10)
    A("""
    K2_END:
    s_endpgm
    """)
    kernel_end(A, name, 176)
```

```python
from genlib import *
import genlib


def silu_regs(A, regs, tmp):
    n = len(regs)
    for i in range(n):
        A(f"v_lshlrev_b32 v{regs[i]}, 16, v{regs[i]}\nv_mul_f32 v{tmp+i}, {f32(-LOG2E)}, v{regs[i]}")
    for i in range(n): A(f"v_exp_f32 v{tmp+i}, v{tmp+i}")
    for i in range(n): A(f"v_add_f32 v{tmp+i}, 1.0, v{tmp+i}")
    for i in range(n): A(f"v_rcp_f32 v{tmp+i}, v{tmp+i}")
    for i in range(n): A(f"v_mul_f32 v{regs[i]}, v{regs[i]}, v{tmp+i}")
    for i in range(n): A(f"v_cvt_pk_bf16_f32 v{regs[i]}, v{regs[i]}, 0")
    for i in range(n): A(f"v_lshlrev_b32 v{regs[i]}, 16, v{regs[i]}")

def gen_k0(A):
    name = "k0_mod_kernel"
    kernel_begin(A, name)
    prof_stamp(A, 0)
    A(f"""
    s_cmp_ge_u32 s2, 256
    s_cbranch_scc1 K0_END
    s_load_dwordx2 s[4:5], s[0:1], {KA['c']}
    s_load_dwordx2 s[6:7], s[0:1], {KA['wmod']}
    s_load_dwordx2 s[20:21], s[0:1], {KA['ws']}
    s_load_dwordx2 s[30:31], s[0:1], {KA['x']}
    s_lshr_b32 s22, s2, 2          ; cb (0..63)
    s_and_b32 s23, s2, 3           ; ks
    v_lshrrev_b32 v1, 3, v0        ; rg (0..31)
    v_and_b32 v2, 7, v0            ; cc
    v_mul_u32_u24 v3, 12288, v1
    v_lshl_add_u32 v3, v2, 4, v3   ; w voffset
    v_lshlrev_b32 v4, 1, v1        ; c voffset
    s_waitcnt lgkmcnt(0)
    """)
    prof_init(A, 0)
    prof_stamp(A, 1)
    srd(A, 8, 4, 0, 2048)
    srd(A, 12, 6, 0, 1024 * 12288)
    srd(A, 16, 20, WS_MODP, 4 * 4096 * 4)
    srd(A, 32, 30, 0, 2048*2048)
    A(f"""
    s_mul_i32 s24, s23, {256*12288}
    s_lshl_b32 s25, s22, 7
    s_add_u32 s24, s24, s25
    s_cmp_ge_u32 s22, 32
    s_cselect_b32 s25, 2048, 0
    s_add_u32 s24, s24, s25
    s_lshl_b32 s26, s23, 9         ; c soffset
    """)
    for i in range(8):
        A(f"buffer_load_ushort v{8+i}, v4, s[8:11], s26 offen offset:{i*64}")
    for i in range(8):
        A(f"buffer_load_dwordx4 v[{16+4*i}:{19+4*i}], v3, s[12:15], s24 offen nt")
        if i < 7:
            A(f"s_add_u32 s24, s24, {32*12288}")
    A(f"""
    s_and_b32 s27, s2, 7
    s_lshr_b32 s27, s27, 1         ; c>>1
    s_lshr_b32 s28, s2, 3          ; idx
    s_lshr_b32 s29, s28, 1
    s_lshl_b32 s29, s29, 2
    s_add_u32 s27, s27, s29
    s_lshl_b32 s27, s27, 16
    s_and_b32 s28, s28, 1
    s_lshl_b32 s28, s28, 15
    s_add_u32 s27, s27, s28
    v_lshlrev_b32 v5, 7, v0
    buffer_load_dword v70, v5, s[32:35], s27 offen
    """)
    for j in range(8):
        A(f"v_mov_b32 v{48+j}, 0")
    A("s_waitcnt vmcnt(9)")
    silu_regs(A, list(range(8, 16)), 56)
    for i in range(8):
        A(f"s_waitcnt vmcnt({8-i})")
        if i == 0: prof_stamp(A, 2)
        for d in range(4):
            w = 16 + 4*i + d
            A(f"""
            v_lshlrev_b32 v5, 16, v{w}
            v_and_b32 v6, 0xffff0000, v{w}
            v_fmac_f32 v{48+2*d}, v5, v{8+i}
            v_fmac_f32 v{49+2*d}, v6, v{8+i}
            """)
    A(f"""
    v_lshlrev_b32 v5, 5, v0
    ds_write_b128 v5, v[48:51]
    ds_write_b128 v5, v[52:55] offset:16
    s_waitcnt lgkmcnt(0)
    s_barrier
    """)
    prof_stamp(A, 3)
    A(f"""
    v_and_b32 v6, 63, v0
    v_lshrrev_b32 v7, 6, v0
    v_lshlrev_b32 v5, 11, v7           ; part*8*256
    v_lshl_add_u32 v5, v6, 2, v5
    """)
    for r in range(8):
        A(f"ds_read_b32 v{16+r}, v5 offset:{r*256}")
    A("s_waitcnt lgkmcnt(0)")
    for st in (4, 2, 1):
        for i in range(st):
            A(f"v_add_f32 v{16+i}, v{16+i}, v{16+i+st}")
    A(f"""
    v_lshlrev_b32 v5, 2, v0
    ds_write_b32 v5, v16 offset:8192
    s_waitcnt lgkmcnt(0)
    s_barrier
    v_cmp_gt_u32 vcc, 64, v0
    s_and_saveexec_b64 s[28:29], vcc
    s_cbranch_execz K0_END
    """)
    for r in range(4):
        A(f"ds_read_b32 v{16+r}, v5 offset:{8192 + r*256}")
    A(f"""
    s_waitcnt lgkmcnt(0)
    v_add_f32 v16, v16, v17
    v_add_f32 v18, v18, v19
    v_add_f32 v16, v16, v18
    s_lshl_b32 s24, s23, 14            ; ks*4096*4
    s_lshl_b32 s25, s22, 8             ; cb*64*4
    s_add_u32 s24, s24, s25
    buffer_store_dword v16, v5, s[16:19], s24 offen
    """)
    prof_stamp(A, 4)
    if genlib.PROF: A("s_waitcnt vmcnt(0)")
    prof_stamp(A, 5)
    prof_dump(A, 6)
    A("""
    K0_END:
    s_endpgm
    """)
    kernel_end(A, name, 72)


def bf16_round_pairs(A, regs, tmp):
    for i in range(0, len(regs), 2):
        A(f"v_cvt_pk_bf16_f32 v{tmp}, v{regs[i]}, v{regs[i+1]}")
        A(f"v_lshlrev_b32 v{regs[i]}, 16, v{tmp}")
        A(f"v_and_b32 v{regs[i+1]}, 0xffff0000, v{tmp}")


def gen_k1(A):
    name = "k1_lnkv_kernel"
    kernel_begin(A, name)
    prof_stamp(A, 0)
    XR, WR, GR, RED = 0, 65536, 131072, 139264
    A(f"""
    s_cmp_ge_u32 s2, 256
    s_cbranch_scc1 K1_END
    s_load_dwordx2 s[4:5], s[0:1], {KA['x']}
    s_load_dwordx4 s[40:43], s[0:1], {KA['wk']}
    s_load_dwordx2 s[20:21], s[0:1], {KA['ws']}
    s_load_dwordx4 s[48:51], s[0:1], {KA['c']}      ; c, wmod
    s_load_dwordx2 s[52:53], s[0:1], {KA['wq']}
    v_and_b32 v1, 63, v0           ; l
    v_lshrrev_b32 v2, 6, v0        ; w
    v_lshlrev_b32 v7, 4, v1        ; l*16
    v_readfirstlane_b32 s30, v2    ; s30 = wave
    v_and_b32 v3, 31, v0           ; t
    v_bfe_u32 v4, v0, 5, 1         ; h
    s_waitcnt lgkmcnt(0)
    """)
    prof_init(A, 1)
    prof_stamp(A, 1)
    A("s_cmp_ge_u32 s2, 128\ns_cbranch_scc1 K1_REST")
    srd(A, 16, 20, WS_MODP, 4 * 4096 * 4)
    A("s_lshr_b32 s31, s2, 1\ns_and_b32 s32, s2, 1")
    srd(A, 8, 4, 0, 2048 * 2048)
    A("""
    s_cmp_eq_u32 s32, 0
    s_cselect_b32 s12, s40, s42
    s_cselect_b32 s13, s41, s43
    s_mov_b32 s14, 65536
    s_mov_b32 s15, 0x00020000
    """)
    srd(A, 24, 20, WS_H, SZ_ACT)
    A("s_cmp_eq_u32 s32, 0\ns_cselect_b32 s26, s26, 0")
    srd(A, 44, 20, WS_KV, 0x40000)
    A(f"""
    v_lshrrev_b32 v5, 4, v1            ; j>>4
    v_and_b32 v6, 15, v1               ; p
    v_xor_b32 v6, v6, v5
    v_lshlrev_b32 v6, 4, v6
    v_lshl_add_u32 v5, v5, 11, v6      ; v_a
    s_lshl_b32 s33, s31, 16
    s_lshl_b32 s34, s30, 8
    s_add_u32 s33, s33, s34
    s_lshl_b32 s35, s30, 13            ; w*8192
    """)
    for i in range(8):
        A(f"""
        v_xor_b32 v6, {((4*i) & 15) << 4}, v5
        s_add_u32 m0, s35, {XR + i*1024}
        s_add_u32 s36, s33, {i*8192}
        buffer_load_dwordx4 v6, s[8:11], s36 offen lds
        """)
    A(f"""
    v_lshlrev_b32 v8, 4, v3
    v_lshl_add_u32 v8, v4, 12, v8      ; t*16 + h*4096
    s_lshl_b32 s37, s30, 9             ; w*512
    """)
    for p in range(4):
        A(f"s_add_u32 s36, s37, {p*16384}\nbuffer_load_dwordx4 v[{16+4*p}:{19+4*p}], v8, s[16:19], s36 offen")
    XV = 64
    A(f"""
    v_and_b32 v9, 15, v3
    v_xor_b32 v9, v9, v4
    v_lshlrev_b32 v9, 4, v9
    v_lshl_add_u32 v9, v3, 8, v9       ; t*256 + ((h ^ (t&15))*16)
    v_add_u32 v9, s35, v9
    v_mov_b32 v12, 0
    v_mov_b32 v13, 0
    v_mov_b32 v14, 0x3f803f80
    v_mov_b32 v11, 0
    v_mov_b32 v15, 0
    s_waitcnt vmcnt(4)
    """)
    prof_stamp(A, 2)
    for s_ in range(8):
        A(f"v_xor_b32 v10, {32*s_}, v9")
        A(f"ds_read_b128 v[{XV+4*s_}:{XV+4*s_+3}], v10")
    for s_ in range(8):
        A(f"s_waitcnt lgkmcnt({7-s_})")
        for d in range(4):
            r = XV + 4*s_ + d
            a1, a2 = (12, 13) if d % 2 == 0 else (11, 15)
            A(f"v_dot2_f32_bf16 v{a1}, v{r}, v14, v{a1}")
            A(f"v_dot2_f32_bf16 v{a2}, v{r}, v{r}, v{a2}")
    A(f"""
    s_nop 2
    v_add_f32 v12, v12, v11
    v_add_f32 v13, v13, v15
    v_mov_b32 v10, v12
    v_mov_b32 v11, v13
    s_nop 1
    v_permlane32_swap_b32 v12, v10
    v_permlane32_swap_b32 v13, v11
    s_nop 1
    v_add_f32 v12, v12, v10
    v_add_f32 v13, v13, v11
    v_lshlrev_b32 v10, 3, v3           ; t*8
    s_lshl_b32 s36, s30, 8
    v_add_u32 v11, s36, v10
    v_add_u32 v11, {RED}, v11
    ds_write_b64 v11, v[12:13]
    s_waitcnt vmcnt(0)
    """)
    for i in range(8):
        A(f"""
        s_add_u32 m0, s35, {WR + i*1024}
        s_add_u32 s36, s35, {i*1024}
        buffer_load_dwordx4 v7, s[12:15], s36 offen lds
        """)
    for e in range(4):
        A(f"v_add_f32 v{16+e}, v{16+e}, v{20+e}\nv_add_f32 v{24+e}, v{24+e}, v{28+e}")
    for e in range(4):
        A(f"v_add_f32 v{16+e}, v{16+e}, v{24+e}")
    bf16_round_pairs(A, [16, 17, 18, 19], 20)
    A("v_cvt_f32_u32 v20, v4")
    for e in range(4):
        A(f"v_add_f32 v{16+e}, v20, v{16+e}")
    bf16_round_pairs(A, [16, 17, 18, 19], 20)
    A(f"""
    v_xor_b32 v20, 1, v4
    v_lshlrev_b32 v20, 12, v20         ; h? 0 : 4096
    v_lshl_add_u32 v20, v3, 4, v20
    s_lshl_b32 s36, s30, 9
    v_add_u32 v20, s36, v20
    v_add_u32 v20, {GR}, v20
    ds_write_b128 v20, v[16:19]
    s_waitcnt lgkmcnt(0)
    s_barrier
    v_add_u32 v10, {RED}, v10
    """)
    prof_stamp(A, 3)
    for w_ in range(8):
        A(f"ds_read_b64 v[{16+2*w_}:{17+2*w_}], v10 offset:{w_*256}")
    A("s_waitcnt lgkmcnt(0)")
    for st in (4, 2, 1):
        for i in range(st):
            A(f"v_add_f32 v{16+2*i}, v{16+2*i}, v{16+2*(i+st)}\nv_add_f32 v{17+2*i}, v{17+2*i}, v{17+2*(i+st)}")
    A(f"""
    v_mul_f32 v16, {f32(1/1024)}, v16      ; mean
    v_mul_f32 v17, {f32(1/1024)}, v17      ; E[x^2]
    v_fma_f32 v17, -v16, v16, v17          ; var
    v_add_f32 v17, {f32(1e-5)}, v17
    v_rsq_f32 v12, v17                     ; a = rstd
    s_lshl_b32 s36, s30, 9
    v_mul_f32 v13, v16, v12
    v_sub_f32 v13, 0, v13
    v_lshlrev_b32 v10, 5, v4
    v_add_u32 v10, s36, v10
    v_add_u32 v10, {GR}, v10               ; GR + w*512 + h*32
    """)
    def gread(s_):
        b = 16 + 16*(s_ & 1)
        A(f"ds_read_b128 v[{b}:{b+3}], v10 offset:{s_*64}")
        A(f"ds_read_b128 v[{b+4}:{b+7}], v10 offset:{s_*64+16}")
        A(f"ds_read_b128 v[{b+8}:{b+11}], v10 offset:{4096+s_*64}")
        A(f"ds_read_b128 v[{b+12}:{b+15}], v10 offset:{4096+s_*64+16}")
    gread(0)
    A(f"""
    s_lshl_b32 s36, s31, 16
    s_lshl_b32 s37, s30, 13
    s_add_u32 s36, s36, s37            ; (tt*64 + 8w)*1024
    s_add_u32 s37, s36, 4096
    """)
    for s_ in range(8):
        if s_ < 7:
            gread(s_+1)
            A("s_waitcnt lgkmcnt(4)")
        else:
            A("s_waitcnt lgkmcnt(0)")
        b = 16 + 16*(s_ & 1)
        for d in range(4):
            r = XV + 4*s_ + d
            t0, t1 = 48 + 2*(d & 1), 49 + 2*(d & 1)
            A(f"""
            v_lshlrev_b32 v{t0}, 16, v{r}
            v_and_b32 v{t1}, 0xffff0000, v{r}
            v_fma_f32 v{t0}, v{t0}, v12, v13
            v_fma_f32 v{t1}, v{t1}, v12, v13
            v_fma_f32 v{t0}, v{t0}, v{b+2*d}, v{b+8+2*d}
            v_fma_f32 v{t1}, v{t1}, v{b+2*d+1}, v{b+8+2*d+1}
            v_cvt_pk_bf16_f32 v{r}, v{t0}, v{t1}
            """)
        A(f"buffer_store_dwordx4 v[{XV+4*s_}:{XV+4*s_+3}], v7, s[24:27], s{36 if s_ < 4 else 37} offen offset:{(s_ & 3)*1024}")
    WV = 96
    A(f"""
    v_bfe_u32 v10, v1, 2, 2            ; r
    v_lshlrev_b32 v10, 6, v10
    v_bfe_u32 v11, v1, 4, 1            ; G
    v_lshl_add_u32 v10, v11, 5, v10
    v_and_b32 v11, 3, v1
    v_lshl_add_u32 v10, v11, 3, v10
    v_lshl_add_u32 v10, v4, 9, v10     ; + h*512
    v_add_u32 v10, s35, v10
    v_add_u32 v10, {WR}, v10
    s_waitcnt vmcnt(8)
    """)
    prof_stamp(A, 4)
    for s_ in range(8):
        for e in range(2):
            A(f"ds_read_b64_tr_b16 v[{WV+4*s_+2*e}:{WV+4*s_+2*e+1}], v10 offset:{s_*1024+e*256}")
    AC = 16
    A("s_waitcnt lgkmcnt(0)\ns_cmp_eq_u32 s32, 0\ns_cbranch_scc0 K1_V")
    for s_ in range(8):
        c = "0" if s_ == 0 else f"v[{AC}:{AC+15}]"
        A(f"v_mfma_f32_32x32x16_bf16 v[{AC}:{AC+15}], v[{WV+4*s_}:{WV+4*s_+3}], v[{XV+4*s_}:{XV+4*s_+3}], {c}")
    A("s_branch K1_RED\nK1_V:")
    for s_ in range(8):
        c = "0" if s_ == 0 else f"v[{AC}:{AC+15}]"
        A(f"v_mfma_f32_32x32x16_bf16 v[{AC}:{AC+15}], v[{XV+4*s_}:{XV+4*s_+3}], v[{WV+4*s_}:{WV+4*s_+3}], {c}")
    A(f"""
    K1_RED:
    s_nop 15
    v_add_u32 v10, s35, v7             ; w*8192 + l*16
    """)
    for jq in range(4):
        A(f"ds_write_b128 v10, v[{AC+4*jq}:{AC+4*jq+3}] offset:{jq*1024}")
    A(f"""
    s_waitcnt lgkmcnt(0)
    s_barrier
    s_lshr_b32 s36, s30, 1
    s_lshl_b32 s36, s36, 10            ; jq*1024
    s_and_b32 s37, s30, 1
    s_lshl_b32 s37, s37, 3
    s_add_u32 s36, s36, s37
    v_add_u32 v10, s36, v7
    """)
    for w_ in range(8):
        A(f"ds_read_b64 v[{32+2*w_}:{33+2*w_}], v10 offset:{w_*8192}")
    A("s_waitcnt lgkmcnt(0)")
    for st in (4, 2, 1):
        for i in range(st):
            A(f"v_add_f32 v{32+2*i}, v{32+2*i}, v{32+2*(i+st)}\nv_add_f32 v{33+2*i}, v{33+2*i}, v{33+2*(i+st)}")
    A(f"""
    v_cvt_pk_bf16_f32 v32, v32, v33
    s_lshl_b32 s36, s31, 12            ; tt*4096
    s_lshl_b32 s37, s32, 11
    s_add_u32 s36, s36, s37
    s_lshr_b32 s37, s30, 2             ; jq>>1
    s_lshl_b32 s37, s37, 10
    s_add_u32 s36, s36, s37
    s_and_b32 s37, s30, 3
    s_lshl_b32 s37, s37, 2
    s_add_u32 s36, s36, s37
    buffer_store_dword v32, v7, s[44:47], s36 offen
    """)
    if genlib.PROF: A("s_waitcnt vmcnt(0)")
    prof_stamp(A, 5)
    prof_dump(A, 6)
    A("s_endpgm")
    A("K1_REST:\ns_cmp_ge_u32 s2, 192\ns_cbranch_scc1 K1_UVW")
    srd(A, 8, 48, 0, 2048)
    srd(A, 12, 50, 0, 1024 * 12288)
    srd(A, 16, 20, WS_MODR, 2 * 2048 * 4)
    srd(A, 56, 52, 0, 1024*2048)
    A(f"""
    s_sub_u32 s31, s2, 128
    s_lshr_b32 s22, s31, 1
    s_and_b32 s23, s31, 1          ; ks
    v_lshrrev_b32 v1, 3, v0        ; rg (0..63)
    v_and_b32 v2, 7, v0            ; cc
    v_mul_u32_u24 v3, 12288, v1
    v_lshl_add_u32 v3, v2, 4, v3
    v_lshlrev_b32 v4, 1, v1
    s_mul_i32 s24, s23, {512*12288}
    s_lshl_b32 s25, s22, 7
    s_add_u32 s24, s24, s25
    s_mov_b32 s25, {2048*2}
    s_cmp_ge_u32 s22, 16
    s_cselect_b32 s25, {(5120-1024)*2}, s25
    s_add_u32 s24, s24, s25
    s_lshl_b32 s26, s23, 10
    """)
    for i in range(8):
        A(f"buffer_load_ushort v{8+i}, v4, s[8:11], s26 offen offset:{i*128}")
    for i in range(8):
        A(f"buffer_load_dwordx4 v[{16+4*i}:{19+4*i}], v3, s[12:15], s24 offen nt")
        if i < 7:
            A(f"s_add_u32 s24, s24, {64*12288}")
    A(f"""
    s_lshr_b32 s27, s31, 3         ; idx8
    s_lshl_b32 s27, s27, 7
    s_lshl_b32 s28, s30, 4
    s_add_u32 s27, s27, s28
    s_lshl_b32 s27, s27, 11        ; row*2048
    s_and_b32 s28, s2, 7
    s_lshr_b32 s28, s28, 2
    s_lshl_b32 s28, s28, 10
    s_add_u32 s27, s27, s28
    s_add_u32 s28, s27, {8*2048}
    v_and_b32 v5, 63, v0
    v_lshrrev_b32 v6, 3, v5
    v_lshlrev_b32 v6, 11, v6
    v_and_b32 v5, 7, v5
    v_lshl_add_u32 v5, v5, 7, v6
    buffer_load_dword v62, v5, s[56:59], s27 offen
    buffer_load_dword v63, v5, s[56:59], s28 offen
    """)
    for j in range(8):
        A(f"v_mov_b32 v{48+j}, 0")
    A("s_waitcnt vmcnt(10)")
    silu_regs(A, list(range(8, 16)), 64)
    A("s_waitcnt vmcnt(2)")
    for i in range(8):
        for d in range(4):
            w = 16 + 4*i + d
            A(f"""
            v_lshlrev_b32 v5, 16, v{w}
            v_and_b32 v6, 0xffff0000, v{w}
            v_fmac_f32 v{48+2*d}, v5, v{8+i}
            v_fmac_f32 v{49+2*d}, v6, v{8+i}
            """)
    A(f"""
    v_lshlrev_b32 v5, 5, v0
    ds_write_b128 v5, v[48:51]
    ds_write_b128 v5, v[52:55] offset:16
    s_waitcnt lgkmcnt(0)
    s_barrier
    v_and_b32 v6, 63, v0
    v_lshrrev_b32 v7, 6, v0
    v_lshlrev_b32 v5, 11, v7           ; part*8*256
    v_lshl_add_u32 v5, v6, 2, v5
    """)
    for r in range(8):
        A(f"ds_read_b32 v{16+r}, v5 offset:{r*256}")
    A("s_waitcnt lgkmcnt(0)")
    for st in (4, 2, 1):
        for i in range(st):
            A(f"v_add_f32 v{16+i}, v{16+i}, v{16+i+st}")
    A(f"""
    v_lshlrev_b32 v5, 2, v0
    ds_write_b32 v5, v16 offset:16384
    s_waitcnt lgkmcnt(0)
    s_barrier
    v_cmp_gt_u32 vcc, 64, v0
    s_and_saveexec_b64 s[28:29], vcc
    s_cbranch_execz K1_END
    """)
    for r in range(8):
        A(f"ds_read_b32 v{16+r}, v5 offset:{16384 + r*256}")
    A("s_waitcnt lgkmcnt(0)")
    for st in (4, 2, 1):
        for i in range(st):
            A(f"v_add_f32 v{16+i}, v{16+i}, v{16+i+st}")
    A(f"""
    s_lshl_b32 s24, s23, 13            ; ks*2048*4
    s_lshl_b32 s25, s22, 8
    s_add_u32 s24, s24, s25
    buffer_store_dword v16, v5, s[16:19], s24 offen
    s_endpgm
    """)
    A("K1_UVW:\ns_cmp_ge_u32 s2, 248\ns_cbranch_scc1 K1_END")
    A(f"s_load_dwordx2 s[54:55], s[0:1], {KA['w1']}\ns_waitcnt lgkmcnt(0)")
    srd(A, 8, 54, 0, 1024*7168)
    srd(A, 16, 20, WS_MODP, 4 * 4096 * 4)
    srd(A, 24, 20, WS_UVW, 3*3584*4 + 64)
    A(f"""
    s_sub_u32 s31, s2, 192             ; blk
    v_lshrrev_b32 v5, 5, v1
    v_bfe_u32 v6, v1, 2, 2
    v_lshl_add_u32 v5, v5, 2, v6
    v_mul_u32_u24 v3, 7168, v5
    v_bfe_u32 v5, v1, 4, 1
    v_lshl_add_u32 v3, v5, 6, v3
    v_and_b32 v8, 3, v1
    v_lshl_add_u32 v3, v8, 4, v3
    s_lshl_b32 s33, s30, 7
    s_mul_i32 s33, s33, 7168
    s_lshl_b32 s34, s31, 7
    s_add_u32 s33, s33, s34            ; soffset
    s_lshl_b32 s35, s30, 14            ; w*16384
    """)
    A(f"""
    v_and_b32 v9, 31, v1
    v_lshlrev_b32 v8, 4, v9
    v_lshl_add_u32 v8, v4, 12, v8      ; t*16 + h*4096
    s_lshl_b32 s37, s30, 9
    s_add_u32 s37, s37, 8192           ; + 2048*4
    """)
    for p in range(4):
        A(f"s_add_u32 s36, s37, {p*16384}\nbuffer_load_dwordx4 v[{16+4*p}:{19+4*p}], v8, s[16:19], s36 offen")
    for i in range(16):
        A(f"""
        s_add_u32 m0, s35, {i*1024}
        s_add_u32 s36, s33, {i*8*7168}
        buffer_load_dwordx4 v3, s[8:11], s36 offen lds
        """)
    A("s_waitcnt vmcnt(16)")
    for e in range(4):
        A(f"v_add_f32 v{16+e}, v{16+e}, v{20+e}\nv_add_f32 v{24+e}, v{24+e}, v{28+e}")
    for e in range(4):
        A(f"v_add_f32 v{16+e}, v{16+e}, v{24+e}")
    bf16_round_pairs(A, [16, 17, 18, 19], 20)
    A("v_cvt_f32_u32 v20, v4")
    for e in range(4):
        A(f"v_add_f32 v{16+e}, v20, v{16+e}")
    VEC = 131072
    A(f"""
    v_cvt_pk_bf16_f32 v16, v16, v17
    v_cvt_pk_bf16_f32 v17, v18, v19
    v_xor_b32 v20, 1, v4
    v_lshlrev_b32 v20, 8, v20
    v_lshl_add_u32 v20, v9, 3, v20
    s_lshl_b32 s36, s30, 9
    v_add_u32 v20, s36, v20
    v_add_u32 v20, {VEC}, v20
    ds_write_b64 v20, v[16:17]
    v_min_u32 v21, 1, v9
    v_lshlrev_b32 v21, 8, v21
    v_lshl_add_u32 v21, v4, 4, v21
    v_add_u32 v21, s36, v21
    v_add_u32 v21, {VEC}, v21
    s_waitcnt lgkmcnt(0)
    """)
    BV = 64
    for s_ in range(8):
        A(f"ds_read_b128 v[{BV+4*s_}:{BV+4*s_+3}], v21 offset:{s_*32}")
    A(f"""
    v_bfe_u32 v10, v1, 2, 2
    v_lshlrev_b32 v10, 6, v10
    v_bfe_u32 v11, v1, 4, 1
    v_lshl_add_u32 v10, v11, 5, v10
    v_and_b32 v11, 3, v1
    v_lshl_add_u32 v10, v11, 3, v10
    v_lshl_add_u32 v10, v4, 10, v10
    v_add_u32 v10, s35, v10
    v_cmp_eq_u32 vcc, 2, v9
    v_cmp_lt_u32 s[38:39], v9, 2
    v_mov_b32 v22, 0x3f803f80
    v_mov_b32 v23, 0
    s_waitcnt lgkmcnt(0)
    v_cndmask_b32 v22, v23, v22, vcc           ; t==2 ? ones : 0
    """)
    for i in range(32):
        A(f"v_cndmask_b32 v{BV+i}, v22, v{BV+i}, s[38:39]")
    A("s_waitcnt vmcnt(0)")
    AV = 96
    for s_ in range(8):
        for ft in range(2):
            for e in range(2):
                r = AV + (s_*2+ft)*4 + 2*e
                A(f"ds_read_b64_tr_b16 v[{r}:{r+1}], v10 offset:{s_*2048 + e*512 + ft*256}")
    A("s_waitcnt lgkmcnt(0)")
    for s_ in range(8):
        for ft in range(2):
            c = 16 + 16*ft
            cc = "0" if s_ == 0 else f"v[{c}:{c+15}]"
            a_ = AV + (s_*2+ft)*4
            A(f"v_mfma_f32_32x32x16_bf16 v[{c}:{c+15}], v[{a_}:{a_+3}], v[{BV+4*s_}:{BV+4*s_+3}], {cc}")
        cc = "0" if s_ == 0 else "v[48:63]"
        A(f"v_mfma_f32_32x32x16_bf16 v[48:63], v[{BV+4*s_}:{BV+4*s_+3}], v[{BV+4*s_}:{BV+4*s_+3}], {cc}")
    RED2 = 135168
    A(f"""
    s_nop 15
    v_cmp_gt_u32 vcc, 4, v9
    s_and_saveexec_b64 s[28:29], vcc
    v_lshlrev_b32 v10, 8, v9           ; t*256
    v_lshl_add_u32 v10, v4, 4, v10     ; + h*16
    s_lshl_b32 s36, s30, 10
    v_add_u32 v10, s36, v10
    v_add_u32 v10, {RED2}, v10
    """)
    for ft in range(2):
        for jq in range(4):
            c = 16 + 16*ft + 4*jq
            A(f"ds_write_b128 v10, v[{c}:{c+3}] offset:{ft*128 + jq*32}")
    A(f"""
    v_lshlrev_b32 v11, 4, v9
    s_lshl_b32 s36, s30, 6
    v_add_u32 v11, s36, v11
    v_add_u32 v11, {RED2 + 8192}, v11
    v_cmp_eq_u32 vcc, 0, v4
    s_and_b64 exec, exec, vcc
    ds_write_b128 v11, v[48:51]
    s_mov_b64 exec, s[28:29]
    s_waitcnt lgkmcnt(0)
    s_barrier
    s_cmp_eq_u32 s31, 0
    s_cbranch_scc0 K1_NOGRAM
    s_cmp_eq_u32 s30, 7
    s_cbranch_scc0 K1_NOGRAM
    v_cmp_gt_u32 vcc, 16, v1
    s_and_saveexec_b64 s[28:29], vcc
    v_lshlrev_b32 v10, 2, v1
    v_add_u32 v11, {RED2 + 8192}, v10
    """)
    for w_ in range(8):
        A(f"ds_read_b32 v{16+w_}, v11 offset:{w_*64}")
    A("s_waitcnt lgkmcnt(0)")
    for st in (4, 2, 1):
        for i in range(st):
            A(f"v_add_f32 v{16+i}, v{16+i}, v{16+i+st}")
    A(f"""
    s_mov_b32 s36, {3*3584*4}
    buffer_store_dword v16, v10, s[24:27], s36 offen
    s_mov_b64 exec, s[28:29]
    K1_NOGRAM:
    v_cmp_gt_u32 vcc, 192, v0          ; thread = t*64 + f
    s_and_saveexec_b64 s[28:29], vcc
    s_cbranch_execz K1_END
    v_lshlrev_b32 v10, 2, v0
    v_add_u32 v11, {RED2}, v10
    """)
    for w_ in range(8):
        A(f"ds_read_b32 v{16+w_}, v11 offset:{w_*1024}")
    A("s_waitcnt lgkmcnt(0)")
    for st in (4, 2, 1):
        for i in range(st):
            A(f"v_add_f32 v{16+i}, v{16+i}, v{16+i+st}")
    A(f"""
    v_lshrrev_b32 v12, 6, v0           ; t
    v_mul_u32_u24 v12, {3584*4}, v12
    v_and_b32 v13, 63, v0
    v_lshl_add_u32 v12, v13, 2, v12
    s_lshl_b32 s36, s31, 8
    buffer_store_dword v16, v12, s[24:27], s36 offen
    K1_END:
    s_endpgm
    """)
    kernel_end(A, name, 160)
```

```python
from genlib import *
import genlib
from k_front import bf16_round_pairs

ACC, AF, BF = 16, 48, 80
OPT = dict(pf_b=False, pf_k6=False, pf_attn=True, pd=6, same_addr=False, depth=3, attn_sched=0, attn_prio=0, x_nobar=0, x_nodma=0, align=-1)

def k6_prefetch_setup(A, PD):
    A(f"""
    v_lshlrev_b32 v14, 7, v1
    v_lshlrev_b32 v13, 11, v1
    s_and_b32 s36, s29, 7
    s_lshr_b32 s37, s36, 1
    s_lshl_b32 s38, s28, 2
    s_add_u32 s37, s37, s38
    s_mul_i32 s37, s37, 224
    s_and_b32 s36, s36, 1
    s_mul_i32 s36, s36, 112
    s_add_u32 s37, s37, s36
    s_add_u32 s37, s37, {4*PD}
    s_lshl_b32 s58, s37, 10
    s_and_b32 s36, s28, 3
    s_lshr_b32 s37, s36, 1
    s_mul_i32 s37, s37, 1792
    s_and_b32 s36, s36, 1
    s_lshl_b32 s36, s36, 6
    s_add_u32 s37, s37, s36
    s_add_u32 s37, s37, {64*PD}
    s_lshl_b32 s37, s37, 11
    s_lshl_b32 s36, s29, 7
    s_add_u32 s59, s37, s36
    """)

def k6_loop_prefetch(A, slot):
    lab = f"K6_PF{slot}"
    A(f"s_cmp_eq_u32 s30, {slot*2}\ns_cbranch_scc0 {lab}")
    if slot % 2 == 0:
        A("buffer_load_dword v12, v14, s[12:15], s58 offen")
    else:
        A("buffer_load_dword v12, v13, s[8:11], s59 offen")
    A(f"{lab}:")
    if slot % 2 == 0:
        A("s_add_u32 s58, s58, 8192")
    else:
        A(f"s_add_u32 s59, s59, {128*2048}")

def wg_map_64(A):
    A("""
    s_and_b32 s26, s2, 7
    s_lshr_b32 s27, s2, 3
    s_and_b32 s28, s26, 3
    s_lshl_b32 s28, s28, 2
    s_and_b32 s29, s27, 3
    s_add_u32 s28, s28, s29
    s_lshr_b32 s29, s26, 2
    s_lshl_b32 s29, s29, 3
    s_lshr_b32 s27, s27, 2
    s_add_u32 s29, s29, s27
    """)

def lane_setup(A):
    A("""
    v_and_b32 v1, 63, v0
    v_lshrrev_b32 v5, 6, v0
    v_lshlrev_b32 v2, 4, v1
    v_readfirstlane_b32 s30, v5
    s_nop 3
    s_and_b32 s31, s30, 3
    s_lshr_b32 s32, s30, 2
    """)

def gemm64_setup(A, K, ldw, KS, perm):
    A(f"""
    v_lshrrev_b32 v5, 5, v1
    v_bfe_u32 v6, v1, 2, 2
    v_lshl_add_u32 v5, v5, 2, v6
    v_mul_u32_u24 v3, {ldw}, v5
    v_bfe_u32 v5, v1, 4, 1
    v_lshl_add_u32 v3, v5, 6, v3
    v_and_b32 v7, 3, v1
    v_lshl_add_u32 v3, v7, 4, v3
    v_lshlrev_b32 v4, 6, v6
    v_lshl_add_u32 v4, v5, 5, v4
    v_lshl_add_u32 v4, v7, 3, v4
    v_lshrrev_b32 v5, 5, v1
    v_lshl_add_u32 v4, v5, {9 if perm else 10}, v4
    s_lshl_b32 s36, s32, 13
    v_add_u32 v4, s36, v4
    s_mul_i32 s33, s32, {K//2}
    s_lshl_b32 s36, s31, 4
    s_add_u32 s33, s33, s36
    s_mul_i32 s33, s33, {ldw}
    s_lshl_b32 s36, s29, 7
    s_add_u32 s33, s33, s36
    s_lshl_b32 s34, s28, 2
    s_add_u32 s34, s34, s31
    s_mul_i32 s34, s34, {KS}
    s_mul_i32 s36, s32, {KS//2}
    s_add_u32 s34, s34, s36
    s_lshl_b32 s34, s34, 10
    s_lshl_b32 s39, s32, 13
    s_lshl_b32 s36, s31, 11
    s_add_u32 s39, s39, s36
    """)

def gemm64_issue_parts(slot, NS, ldw):
    setup = f"s_add_u32 s37, s33, {8*ldw}"
    g = []
    g.append(f"s_add_u32 m0, s39, {slot*16384}\ns_nop 0\nbuffer_load_dwordx4 v3, s[8:11], s33 offen lds")
    g.append(f"s_add_u32 m0, s39, {slot*16384+1024}\ns_nop 0\nbuffer_load_dwordx4 v3, s[8:11], s37 offen lds")
    for ks in range(4):
        b = BF + 16*slot + 4*ks
        g.append(f"buffer_load_dwordx4 v[{b}:{b+3}], v2, s[12:15], s34 offen offset:{ks*1024}")
    post = f"s_add_u32 s33, s33, {0 if OPT['same_addr'] else 64*ldw}\ns_add_u32 s34, s34, {0 if OPT['same_addr'] else 4096}"
    return setup, g, post

def gemm64_prologue(A, NS, ldw):
    for s in range(3):
        setup, g, post = gemm64_issue_parts(s, NS, ldw)
        A(setup)
        for x in g: A(x)
        A(post)
        if s == 0:
            for i in range(32):
                A(f"v_mov_b32 v{ACC+i}, 0")
        if s < 2: A("s_barrier")

def gemm64_stage(A, slot, ldw, perm, wait, issue, hook=None, stamp=None):
    es = 1024 if perm else 512
    A(f"s_waitcnt vmcnt({wait})\ns_barrier")
    if genlib.PROF and stamp is not None:
        A(stamp)
    for ks in range(4):
        for ft in range(2):
            for e in range(2):
                r = AF + (ks*2+ft)*4 + 2*e
                A(f"ds_read_b64_tr_b16 v[{r}:{r+1}], v4 offset:{slot*16384 + ks*2048 + e*es + ft*256}")
    if issue:
        setup, g, post = gemm64_issue_parts((slot+3) % 4, 0, ldw)
        A(setup)
    plan = [[0], [1], [2, 3], [4, 5]]
    for ks in range(4):
        A(f"s_waitcnt lgkmcnt({12-4*ks})")
        b = BF + 16*slot + 4*ks
        for ft in range(2):
            a = AF + (ks*2+ft)*4
            c = ACC + 16*ft
            A(f"v_mfma_f32_32x32x16_bf16 v[{c}:{c+15}], v[{a}:{a+3}], v[{b}:{b+3}], v[{c}:{c+15}]")
        if issue:
            for gi in plan[ks]:
                A(g[gi])
        if hook and ks == 0: hook(A)
    if issue: A(post)

def gemm64_loop(A, pfx, NS, ldw, perm, extra_vm=0, hook=None):
    nmain = NS//4 - 1
    A(f"s_mov_b32 s41, {nmain}\n{pfx}_LOOP:")
    for slot in range(4):
        st = f"s_memtime s[68:69]\ns_waitcnt lgkmcnt(0)\ns_cmp_eq_u32 s41, {nmain}\ns_cselect_b32 s{84+slot}, s68, s{84+slot}"
        gemm64_stage(A, slot, ldw, perm, 12, True, stamp=st)
    A(f"""
    s_sub_u32 s41, s41, 1
    s_cmp_lg_u32 s41, 0
    s_cbranch_scc1 {pfx}_LOOP
    """)
    waits = [12, 12, 6 + extra_vm, extra_vm]
    for slot in range(4):
        st = f"s_memtime s[68:69]\ns_waitcnt lgkmcnt(0)\ns_mov_b32 s{88+slot}, s68"
        gemm64_stage(A, slot, ldw, perm, waits[slot], slot == 0, hook=(hook if slot == 1 else None), stamp=st)
    A("""
    s_waitcnt vmcnt(0)
    s_barrier
    s_nop 15
    """)

def gemm64_exchange(A, pfx):
    A(f"""
    s_lshl_b32 s36, s31, 13            ; tokt*8192
    v_add_u32 v5, s36, v2
    s_cmp_eq_u32 s32, 0
    s_cbranch_scc0 {pfx}_X1
    """)
    for jq in range(4):
        A(f"ds_write_b128 v5, v[{32+4*jq}:{35+4*jq}] offset:{4096+jq*1024}")
    A(f"s_branch {pfx}_X2\n{pfx}_X1:")
    for jq in range(4):
        A(f"ds_write_b128 v5, v[{16+4*jq}:{19+4*jq}] offset:{jq*1024}")
    A("s_nop 1")
    for i in range(16):
        A(f"v_mov_b32 v{16+i}, v{32+i}")
    A(f"""
    {pfx}_X2:
    s_waitcnt lgkmcnt(0)
    s_barrier
    s_lshl_b32 s36, s32, 12
    v_add_u32 v5, s36, v5
    """)
    for jq in range(4):
        A(f"ds_read_b128 v[{32+4*jq}:{35+4*jq}], v5 offset:{jq*1024}")
    A("s_waitcnt lgkmcnt(0)")
    for i in range(16):
        A(f"v_add_f32 v{16+i}, v{16+i}, v{32+i}")


def gen_k2(A):
    name = "k2_attn_kernel"
    kernel_begin(A, name)
    prof_stamp(A, 0)
    AR = 65536
    FLAG = 131072
    A(f"""
    s_cmp_ge_u32 s2, 256
    s_cbranch_scc1 K2_END
    s_load_dwordx2 s[4:5], s[0:1], {KA['wq']}
    s_load_dwordx2 s[20:21], s[0:1], {KA['ws']}
    s_load_dwordx2 s[6:7], s[0:1], {KA['wo']}
    s_load_dwordx2 s[22:23], s[0:1], {KA['w1']}
    s_load_dwordx2 s[50:51], s[0:1], {KA['w2']}
    """)
    wg_map_64(A)
    lane_setup(A)
    A("s_waitcnt lgkmcnt(0)")
    prof_init(A, 2)
    srd(A, 8, 4, 0, 1024*2048)
    srd(A, 12, 20, WS_H, SZ_ACT)
    srd(A, 16, 20, WS_KV, 0x40000)
    srd(A, 24, 20, WS_O, SZ_ACT)
    if OPT["pf_b"]: b_prefetch(A, 64, 256)
    A(f"""
    v_mov_b32 v5, {FLAG}
    v_mov_b32 v6, 0
    ds_write_b32 v5, v6
    s_lshl_b32 s42, s30, 11            ; w*2048
    s_add_u32 s43, s42, {AR}
    """)
    def kv_issue_static(slot, stage):
        A(f"""
        s_add_u32 m0, s43, {slot*16384}
        s_add_u32 s36, s42, {stage*16384}
        buffer_load_dwordx4 v2, s[16:19], s36 offen lds
        buffer_load_dwordx4 v2, s[16:19], s36 offen offset:1024 lds
        """)
    gemm64_setup(A, 1024, 2048, 64, perm=False)
    prof_stamp(A, 1)
    gemm64_prologue(A, 8, 2048)
    def hook2(A):
        for s in range(3):
            kv_issue_static(s, s)
    gemm64_loop(A, "K2G", 8, 2048, perm=False, hook=hook2, extra_vm=6)
    prof_stamp(A, 2)
    gemm64_exchange(A, "K2G")
    if OPT["pf_attn"]:
        A(f"""
        s_lshr_b32 s52, s2, 3              ; idx
        s_and_b32 s53, s2, 7               ; xcd
        v_lshrrev_b32 v5, 3, v1
        v_lshlrev_b32 v5, 11, v5
        v_and_b32 v6, 7, v1
        v_lshl_add_u32 v5, v6, 7, v5       ; (l>>3)*2048 + (l&7)*128
        s_lshl_b32 s36, s52, 5
        s_lshl_b32 s37, s30, 3
        s_add_u32 s36, s36, s37
        s_lshl_b32 s36, s36, 11
        s_lshr_b32 s37, s53, 2
        s_lshl_b32 s37, s37, 10
        s_add_u32 s36, s36, s37
        v_add_u32 v5, s36, v5
        v_lshrrev_b32 v6, 4, v1
        v_mul_u32_u24 v6, 7168, v6
        v_and_b32 v7, 15, v1
        v_min_u32 v7, 13, v7
        v_lshl_add_u32 v6, v7, 7, v6
        s_xor_b32 s37, s30, 4              ; u
        s_lshl_b32 s37, s37, 2
        s_lshl_b32 s36, s52, 5
        s_add_u32 s36, s36, s37
        s_mul_i32 s36, s36, 7168
        s_lshr_b32 s37, s53, 1
        s_mul_i32 s37, s37, 1792
        s_add_u32 s36, s36, s37
        v_add_u32 v6, s36, v6              ; W1 offset
        s_mul_i32 s36, s2, 224
        s_sub_u32 s37, s30, 4
        s_and_b32 s37, s37, 3
        s_lshl_b32 s37, s37, 6
        s_add_u32 s36, s36, s37
        v_add_u32 v7, s36, v1
        v_min_u32 v7, 57343, v7
        v_lshlrev_b32 v7, 7, v7            ; W2 offset
        s_cmp_lt_u32 s30, 4
        s_cselect_b32 s60, s6, s22
        s_cselect_b32 s61, s7, s23
        s_cselect_b32 s62, s22, s50
        s_cselect_b32 s63, s23, s51
        s_cselect_b64 vcc, -1, 0
        s_nop 1
        v_cndmask_b32 v168, v6, v5, vcc    ; A: w<4 ? Wo : W1
        v_cndmask_b32 v169, v7, v6, vcc    ; B: w<4 ? W1 : W2
        """)
    Q, C, S0, S1, P, O, Lr, SEL = 48, 56, 72, 88, 104, 112, 128, 132
    KF = [136, 144]; VF = [152, 160]
    SS = [S0, S1]
    qs = (32 ** -0.5) * LOG2E
    for i in range(16):
        A(f"v_mul_f32 v{16+i}, {f32(qs)}, v{16+i}")
    for m in range(8):
        A(f"v_cvt_pk_bf16_f32 v{Q+m}, v{16+2*m}, v{16+2*m+1}")
    A(f"""
    v_and_b32 v5, 3, v1
    v_bfe_u32 v6, v1, 2, 1
    v_bfe_u32 v7, v1, 4, 1
    v_xor_b32 v6, v6, v7
    v_or_b32 v5, v5, v6
    v_cmp_eq_u32 vcc, 0, v5
    v_mov_b32 v6, 0x3f803f80
    v_mov_b32 v5, 0
    s_nop 1
    v_cndmask_b32 v{SEL}, v5, v6, vcc
    v_mov_b32 v{SEL+1}, v{SEL}
    v_mov_b32 v{SEL+2}, v{SEL}
    v_mov_b32 v{SEL+3}, v{SEL}
    v_add_u32 v5, {AR}, v2
    v_add_u32 v6, {AR+16384}, v2
    s_mov_b32 s44, 0                   ; mode
    ds_read_b128 v[{KF[0]}:{KF[0]+3}], v5
    ds_read_b128 v[{KF[0]+4}:{KF[0]+7}], v5 offset:1024
    s_waitcnt lgkmcnt(0)
    v_mfma_f32_32x32x16_bf16 v[{S0}:{S0+15}], v[{KF[0]}:{KF[0]+3}], v[{Q}:{Q+3}], 0
    v_mfma_f32_32x32x16_bf16 v[{S0}:{S0+15}], v[{KF[0]+4}:{KF[0]+7}], v[{Q+4}:{Q+7}], v[{S0}:{S0+15}]
    s_nop 15
    v_max3_f32 v7, v{S0}, v{S0+1}, v{S0+2}
    """)
    for i in range(3, 15, 2):
        A(f"v_max3_f32 v7, v7, v{S0+i}, v{S0+i+1}")
    A(f"""
    v_max_f32 v7, v7, v{S0+15}
    K2_SETC:
    v_mov_b32 v8, v7
    s_nop 1
    v_permlane32_swap_b32 v7, v8
    s_nop 1
    v_max_f32 v7, v7, v8
    v_sub_f32 v7, 0, v7
    """)
    for i in range(16):
        A(f"v_mov_b32 v{C+i}, v7")
    for i in range(16):
        A(f"v_mov_b32 v{O+i}, 0")
    for i in range(4):
        A(f"v_mov_b32 v{Lr+i}, 0")
    for i in range(4):
        A(f"v_mov_b32 v{P+4+i}, 0\nv_mov_b32 v{VF[1]+4+i}, 0")
    A(f"""
    v_add_u32 v5, {AR}, v2
    v_add_u32 v6, {AR+16384}, v2
    ds_read_b128 v[{KF[0]}:{KF[0]+3}], v5
    ds_read_b128 v[{KF[0]+4}:{KF[0]+7}], v5 offset:1024
    ds_read_b128 v[{KF[1]}:{KF[1]+3}], v5 offset:4096
    ds_read_b128 v[{KF[1]+4}:{KF[1]+7}], v5 offset:{4096+1024}
    ds_read_b128 v[{VF[0]}:{VF[0]+3}], v5 offset:2048
    ds_read_b128 v[{VF[0]+4}:{VF[0]+7}], v5 offset:3072
    s_waitcnt lgkmcnt(0)
    v_mfma_f32_32x32x16_bf16 v[{S0}:{S0+15}], v[{KF[0]}:{KF[0]+3}], v[{Q}:{Q+3}], v[{C}:{C+15}]
    v_mfma_f32_32x32x16_bf16 v[{S0}:{S0+15}], v[{KF[0]+4}:{KF[0]+7}], v[{Q+4}:{Q+7}], v[{S0}:{S0+15}]
    s_mov_b32 s45, 0                   ; stage i
    s_mov_b32 s46, {3*16384}
    s_mov_b32 s47, 3
    s_nop 7
    """)
    prof_stamp(A, 3)
    if OPT["attn_prio"] == 1:
        A("s_cmp_ge_u32 s30, 4\ns_cbranch_scc0 K2_NOPRIO\ns_setprio 1\nK2_NOPRIO:")
    if OPT["align"] >= 0:
        A(".p2align 6")
        for i in range(OPT["align"]): A("s_nop 0")
    A(f"""
    K2_LOOP:
    """)
    if not OPT["x_nobar"]: A("s_waitcnt vmcnt(2)\ns_barrier")
    if not OPT["x_nodma"]:
      A(f"""
      s_lshl_b32 s36, s47, 14
      s_add_u32 m0, s43, s36
      s_add_u32 s36, s42, s46
      buffer_load_dwordx4 v2, s[16:19], s36 offen lds
      buffer_load_dwordx4 v2, s[16:19], s36 offen offset:1024 lds
      """)
    A(f"""
    s_add_u32 s46, s46, 16384
    s_add_u32 s47, s47, 1
    s_and_b32 s47, s47, 3
    """)
    if OPT["pf_attn"]:
        A("""
        s_cmp_eq_u32 s45, s30
        s_cbranch_scc0 K2_PFA
        global_load_dword v170, v168, s[60:61]
        K2_PFA:
        s_sub_u32 s36, s45, 8
        s_cmp_eq_u32 s36, s30
        s_cbranch_scc0 K2_PFB
        global_load_dword v170, v169, s[62:63]
        K2_PFB:
        """)
    P0, P1 = P, P + 4
    def E(S, i): return f"v_exp_f32 v{S+i}, v{S+i}"
    def Cv(S, m): return f"v_cvt_pk_bf16_f32 v{P+m}, v{S+2*m}, v{S+2*m+1}"
    for u in range(4):
        S = SS[u % 2]; Sn = SS[(u+1) % 2]
        Kn = KF[(u+1) % 2]; Kl = KF[u % 2]
        V = VF[u % 2]; Vp = VF[(u+1) % 2]
        ka = ("v5", (u+2)*4096) if u+2 < 4 else ("v6", (u+2-4)*4096)
        va = ("v5", (u+1)*4096+2048) if u+1 < 4 else ("v6", 2048)
        QKa = f"v_mfma_f32_32x32x16_bf16 v[{Sn}:{Sn+15}], v[{Kn}:{Kn+3}], v[{Q}:{Q+3}], v[{C}:{C+15}]"
        QKb = f"v_mfma_f32_32x32x16_bf16 v[{Sn}:{Sn+15}], v[{Kn+4}:{Kn+7}], v[{Q+4}:{Q+7}], v[{Sn}:{Sn+15}]"
        PVa = f"v_mfma_f32_32x32x16_bf16 v[{O}:{O+15}], v[{V}:{V+3}], v[{P0}:{P0+3}], v[{O}:{O+15}]"
        La = f"v_mfma_f32_16x16x32_bf16 v[{Lr}:{Lr+3}], v[{SEL}:{SEL+3}], v[{P0}:{P0+3}], v[{Lr}:{Lr+3}]"
        PVb_prev = f"v_mfma_f32_32x32x16_bf16 v[{O}:{O+15}], v[{Vp+4}:{Vp+7}], v[{P1}:{P1+3}], v[{O}:{O+15}]"
        Lb_prev = f"v_mfma_f32_16x16x32_bf16 v[{Lr}:{Lr+3}], v[{SEL}:{SEL+3}], v[{P1}:{P1+3}], v[{Lr}:{Lr+3}]"
        rdK = [f"ds_read_b128 v[{Kl}:{Kl+3}], {ka[0]} offset:{ka[1]}", f"ds_read_b128 v[{Kl+4}:{Kl+7}], {ka[0]} offset:{ka[1]+1024}"]
        rdV = [f"ds_read_b128 v[{Vp}:{Vp+3}], {va[0]} offset:{va[1]}", f"ds_read_b128 v[{Vp+4}:{Vp+7}], {va[0]} offset:{va[1]+1024}"]
        if OPT["attn_sched"] == 0:
            seq = ["s_waitcnt lgkmcnt(0)", QKa, E(S,0), E(S,1), E(S,2),
                   PVb_prev, E(S,3), E(S,4), E(S,5),
                   Lb_prev, rdK[0], rdK[1], E(S,6), E(S,7), Cv(S,0), Cv(S,1),
                   QKb, rdV[0], rdV[1], Cv(S,2), Cv(S,3), E(S,8), E(S,9),
                   PVa, E(S,10), E(S,11), E(S,12),
                   La, E(S,13), E(S,14), E(S,15), Cv(S,4), Cv(S,5), Cv(S,6), Cv(S,7)]
        elif OPT["attn_sched"] == 1:
            seq = ["s_waitcnt lgkmcnt(0)", QKa, E(S,0), E(S,1), E(S,2), E(S,3),
                   PVb_prev, rdK[0], rdK[1], E(S,4), E(S,5), E(S,6),
                   Lb_prev, E(S,7), Cv(S,0), Cv(S,1), Cv(S,2),
                   QKb, rdV[0], rdV[1], Cv(S,3), E(S,8), E(S,9), E(S,10),
                   PVa, E(S,11), E(S,12), E(S,13),
                   La, E(S,14), E(S,15), Cv(S,4), Cv(S,5), Cv(S,6), Cv(S,7)]
        for x in seq: A(x)
    A(f"""
    v_mov_b32 v5, v6
    s_add_u32 s36, s45, 2
    s_and_b32 s36, s36, 3
    s_lshl_b32 s36, s36, 14
    s_add_u32 s36, s36, {AR}
    v_add_u32 v6, s36, v2
    s_add_u32 s45, s45, 1
    s_cmp_lt_u32 s45, 16
    s_cbranch_scc1 K2_LOOP
    s_nop 1
    v_mfma_f32_32x32x16_bf16 v[{O}:{O+15}], v[{VF[1]+4}:{VF[1]+7}], v[{P+4}:{P+7}], v[{O}:{O+15}]
    v_mfma_f32_16x16x32_bf16 v[{Lr}:{Lr+3}], v[{SEL}:{SEL+3}], v[{P+4}:{P+7}], v[{Lr}:{Lr+3}]
    s_waitcnt vmcnt(0) lgkmcnt(0)
    s_nop 15
    """)
    prof_stamp(A, 4)
    A(f"""
    ; ---- check
    v_mov_b32 v7, {f32(2.0**100)}
    v_cmp_nlt_f32 vcc, v{Lr}, v7
    s_mov_b64 s[48:49], vcc
    v_mov_b32 v7, 0x207
    """)
    for i in range(16):
        A(f"v_cmp_class_f32 vcc, v{O+i}, v7\ns_or_b64 s[48:49], s[48:49], vcc")
    A(f"""
    s_cmp_lg_u32 s44, 0
    s_cbranch_scc1 K2_FINISH
    s_cmp_eq_u64 s[48:49], 0
    s_cbranch_scc1 K2_NOFLAG
    v_mov_b32 v7, {FLAG}
    v_mov_b32 v8, 1
    ds_write_b32 v7, v8
    K2_NOFLAG:
    s_waitcnt lgkmcnt(0)
    s_barrier
    v_mov_b32 v7, {FLAG}
    ds_read_b32 v8, v7
    s_waitcnt lgkmcnt(0)
    v_readfirstlane_b32 s36, v8
    s_nop 3
    s_cmp_eq_u32 s36, 0
    s_cbranch_scc1 K2_FINISH
    s_mov_b32 s44, 1
    v_mov_b32 v7, 0xff800000
    s_mov_b32 s45, 0
    v_add_u32 v5, {AR}, v2
    K2_MAXL:
    s_barrier
    s_lshl_b32 s36, s45, 14
    s_add_u32 s36, s36, s42
    s_mov_b32 m0, s43
    s_nop 0
    buffer_load_dwordx4 v2, s[16:19], s36 offen lds
    buffer_load_dwordx4 v2, s[16:19], s36 offen offset:1024 lds
    s_waitcnt vmcnt(0)
    s_barrier
    """)
    for u in range(4):
        A(f"""
        ds_read_b128 v[{KF[0]}:{KF[0]+3}], v5 offset:{u*4096}
        ds_read_b128 v[{KF[0]+4}:{KF[0]+7}], v5 offset:{u*4096+1024}
        s_waitcnt lgkmcnt(0)
        v_mfma_f32_32x32x16_bf16 v[{S0}:{S0+15}], v[{KF[0]}:{KF[0]+3}], v[{Q}:{Q+3}], 0
        v_mfma_f32_32x32x16_bf16 v[{S0}:{S0+15}], v[{KF[0]+4}:{KF[0]+7}], v[{Q+4}:{Q+7}], v[{S0}:{S0+15}]
        s_nop 15
        """)
        for i in range(0, 16, 2):
            A(f"v_max3_f32 v7, v7, v{S0+i}, v{S0+i+1}")
    A(f"""
    s_add_u32 s45, s45, 1
    s_cmp_lt_u32 s45, 16
    s_cbranch_scc1 K2_MAXL
    s_barrier
    """)
    for s in range(3):
        kv_issue_static(s, s)
    A(f"""
    s_waitcnt vmcnt(0)
    s_barrier
    s_branch K2_SETC
    K2_FINISH:
    v_rcp_f32 v7, v{Lr}
    s_nop 0
    """)
    for i in range(16):
        A(f"v_mul_f32 v{O+i}, v{O+i}, v7")
    for m in range(8):
        A(f"v_cvt_pk_bf16_f32 v{P+m}, v{O+2*m}, v{O+2*m+1}")
    A(f"""
    s_lshl_b32 s36, s28, 2
    s_add_u32 s36, s36, s31
    s_lshl_b32 s36, s36, 6
    s_lshl_b32 s37, s29, 2
    s_add_u32 s36, s36, s37
    s_lshl_b32 s37, s32, 1
    s_add_u32 s36, s36, s37
    s_lshl_b32 s36, s36, 10
    buffer_store_dwordx4 v[{P}:{P+3}], v2, s[24:27], s36 offen
    buffer_store_dwordx4 v[{P+4}:{P+7}], v2, s[24:27], s36 offen offset:1024
    """)
    if genlib.PROF: A("s_waitcnt vmcnt(0)")
    prof_stamp(A, 5)
    prof_dump(A, 10)
    A("""
    K2_END:
    s_endpgm
    """)
    kernel_end(A, name, 172)


def load_vec16(A, dst, srd_s, soff_sgpr, vaddr):
    for jq in range(4):
        A(f"buffer_load_dwordx4 v[{dst+4*jq}:{dst+4*jq+3}], v{vaddr}, s[{srd_s}:{srd_s+3}], s{soff_sgpr} offen offset:{jq*32}")


def mod64_to_lds(A, p0, p1, ldsoff):
    A(f"""
    v_add_f32 v{p0}, v{p0}, v{p1}
    v_cvt_pk_bf16_f32 v{p0}, v{p0}, v{p0}
    v_lshlrev_b32 v{p0}, 16, v{p0}
    v_lshlrev_b32 v{p1}, 2, v1
    ds_write_b32 v{p1}, v{p0} offset:{ldsoff}
    """)

def mod16_from_lds(A, dst, ldsoff):
    A(f"""
    v_lshrrev_b32 v9, 5, v1
    v_lshlrev_b32 v9, 4, v9
    s_lshl_b32 s36, s32, 7
    v_add_u32 v9, s36, v9
    """)
    for jq in range(4):
        A(f"ds_read_b128 v[{dst+4*jq}:{dst+4*jq+3}], v9 offset:{ldsoff + jq*32}")
    A("s_waitcnt lgkmcnt(0)")

def load_mod16(A, dst, tmp, srd_s, seg, vaddr):
    A(f"""
    s_lshl_b32 s36, s29, 8
    s_lshl_b32 s37, s32, 7
    s_add_u32 s36, s36, s37
    s_add_u32 s36, s36, {seg*4096}
    s_add_u32 s37, s36, 16384
    """)
    load_vec16(A, dst, srd_s, 36, vaddr)
    load_vec16(A, tmp, srd_s, 37, vaddr)

def finish_mod16(A, dst, tmp):
    for i in range(16):
        A(f"v_add_f32 v{dst+i}, v{dst+i}, v{tmp+i}")
    bf16_round_pairs(A, list(range(dst, dst+16)), tmp)

def b_prefetch(A, KS, nlines_per_wg):
    A(f"""
    s_and_b32 s36, s29, 7
    s_lshr_b32 s37, s36, 1
    s_lshl_b32 s38, s28, 2
    s_add_u32 s37, s37, s38            ; tile
    s_mul_i32 s37, s37, {KS}
    s_and_b32 s36, s36, 1
    s_mul_i32 s36, s36, {KS//2}
    s_add_u32 s37, s37, s36
    s_lshl_b32 s37, s37, 10
    s_lshl_b32 s36, s30, 12
    s_add_u32 s37, s37, s36
    v_and_b32 v5, 31, v1
    v_lshlrev_b32 v5, 7, v5
    v_cmp_gt_u32 vcc, 32, v1
    s_and_saveexec_b64 s[54:55], vcc
    buffer_load_dword v15, v5, s[12:15], s37 offen
    s_mov_b64 exec, s[54:55]
    """)

def modf_to_lds(A, reg, ldsoff):
    A(f"v_lshlrev_b32 v8, 2, v1\nds_write_b32 v8, v{reg} offset:{ldsoff}")

def gen_k3(A):
    name = "k3_wo_kernel"
    kernel_begin(A, name)
    prof_stamp(A, 0)
    A(f"""
    s_cmp_ge_u32 s2, 256
    s_cbranch_scc1 K3_END
    s_load_dwordx2 s[4:5], s[0:1], {KA['wo']}
    s_load_dwordx2 s[6:7], s[0:1], {KA['x']}
    s_load_dwordx2 s[20:21], s[0:1], {KA['ws']}
    """)
    wg_map_64(A)
    lane_setup(A)
    A("s_waitcnt lgkmcnt(0)")
    prof_init(A, 3)
    srd(A, 8, 4, 0, 1024*2048)
    srd(A, 12, 20, WS_O, SZ_ACT)
    srd(A, 16, 6, 0, 2048*2048)
    srd(A, 24, 20, WS_X1, SZ_ACT)
    srd(A, 44, 20, WS_MODF, 4096*4)
    srd(A, 48, 20, WS_Y, SZ_ACT)
    srd(A, 52, 20, WS_ST, 0x100000)
    gemm64_setup(A, 1024, 2048, 64, perm=True)
    prof_stamp(A, 1)
    gemm64_prologue(A, 8, 2048)
    prof_stamp(A, 4)
    def hook3(A):
      A(f"""
      v_and_b32 v8, 31, v1               ; t
      v_lshrrev_b32 v9, 5, v1            ; h
      v_lshlrev_b32 v10, 11, v8
      v_lshl_add_u32 v10, v9, 4, v10     ; t*2048 + h*16
      s_lshl_b32 s36, s28, 2
      s_add_u32 s36, s36, s31
      s_lshl_b32 s36, s36, 16
      s_lshl_b32 s37, s29, 7
      s_add_u32 s36, s36, s37
      s_lshl_b32 s37, s32, 6
      s_add_u32 s36, s36, s37
      buffer_load_dwordx4 v[144:147], v10, s[16:19], s36 offen
      buffer_load_dwordx4 v[148:151], v10, s[16:19], s36 offen offset:32
      v_lshlrev_b32 v11, 2, v1
      s_lshl_b32 s36, s29, 8
      buffer_load_dword v152, v11, s[44:47], s36 offen
      s_add_u32 s36, s36, 4096
      buffer_load_dword v153, v11, s[44:47], s36 offen
      s_add_u32 s36, s36, 4096
      buffer_load_dword v154, v11, s[44:47], s36 offen
      """)
    gemm64_loop(A, "K3G", 8, 2048, perm=True, hook=hook3, extra_vm=5)
    prof_stamp(A, 2)
    A(f"""
    v_lshlrev_b32 v8, 2, v1
    ds_write_b32 v8, v152 offset:32768
    ds_write_b32 v8, v154 offset:33024
    v_lshlrev_b32 v8, 1, v1
    ds_write_b16_d16_hi v8, v153 offset:33280
    ds_write_b16_d16_hi v8, v154 offset:33408
    """)
    gemm64_exchange(A, "K3G")
    prof_stamp(A, 3)
    GA, G2, SBP, G2P = 152, 168, 184, 192
    A(f"""
    v_lshrrev_b32 v9, 5, v1
    v_lshlrev_b32 v10, 4, v9
    s_lshl_b32 s36, s32, 7
    v_add_u32 v10, s36, v10
    v_lshlrev_b32 v11, 3, v9
    s_lshl_b32 s36, s32, 6
    v_add_u32 v11, s36, v11
    """)
    for jq in range(4):
        A(f"ds_read_b128 v[{GA+4*jq}:{GA+4*jq+3}], v10 offset:{32768 + jq*32}")
    for jq in range(4):
        A(f"ds_read_b128 v[{G2+4*jq}:{G2+4*jq+3}], v10 offset:{33024 + jq*32}")
    for jq in range(4):
        A(f"ds_read_b64 v[{SBP+2*jq}:{SBP+2*jq+1}], v11 offset:{33280 + jq*16}")
        A(f"ds_read_b64 v[{G2P+2*jq}:{G2P+2*jq+1}], v11 offset:{33408 + jq*16}")
    A("v_permlane32_swap_b32 v144, v146\nv_permlane32_swap_b32 v145, v147\nv_permlane32_swap_b32 v148, v150\nv_permlane32_swap_b32 v149, v151")
    A(f"""
    s_lshl_b32 s36, s28, 2
    s_add_u32 s36, s36, s31
    s_lshl_b32 s36, s36, 6
    s_lshl_b32 s37, s29, 2
    s_add_u32 s36, s36, s37
    s_lshl_b32 s37, s32, 1
    s_add_u32 s36, s36, s37
    s_lshl_b32 s36, s36, 10
    v_mov_b32 v70, 0x3f803f80
    s_waitcnt lgkmcnt(8)
    """)
    for jq in range(4):
        for d in range(2):
            x = 144 + 2*jq + d
            r = 16 + 4*jq + 2*d
            t = 72 + 2*((2*jq+d) % 4)
            A(f"""
            v_lshlrev_b32 v{t}, 16, v{x}
            v_and_b32 v{t+1}, 0xffff0000, v{x}
            v_fma_f32 v{r}, v{r}, v{GA+4*jq+2*d}, v{t}
            v_fma_f32 v{r+1}, v{r+1}, v{GA+4*jq+2*d+1}, v{t+1}
            """)
    A("s_waitcnt lgkmcnt(0)")
    Z = 48
    for m in range(8):
        A(f"v_cvt_pk_bf16_f32 v{32+m}, v{16+2*m}, v{16+2*m+1}")
        A(f"v_mul_f32 v{Z+2*m}, v{16+2*m}, v{G2+2*m}\nv_mul_f32 v{Z+2*m+1}, v{16+2*m+1}, v{G2+2*m+1}")
    A(f"""
    buffer_store_dwordx4 v[32:35], v2, s[24:27], s36 offen
    buffer_store_dwordx4 v[36:39], v2, s[24:27], s36 offen offset:1024
    """)
    for m in range(8):
        A(f"v_cvt_pk_bf16_f32 v{40+m}, v{Z+2*m}, v{Z+2*m+1}")
    A(f"""
    buffer_store_dwordx4 v[40:43], v2, s[48:51], s36 offen
    buffer_store_dwordx4 v[44:47], v2, s[48:51], s36 offen offset:1024
    """)
    S = 64
    for m in range(8):
        c = (lambda k: "0" if m == 0 else f"v{S+k}")
        A(f"""
        v_dot2_f32_bf16 v{S}, v{32+m}, v70, {c(0)}
        v_dot2_f32_bf16 v{S+1}, v{32+m}, v{32+m}, {c(1)}
        v_dot2_f32_bf16 v{S+2}, v{40+m}, v70, {c(2)}
        v_dot2_f32_bf16 v{S+3}, v{40+m}, v{G2P+m}, {c(3)}
        v_dot2_f32_bf16 v{S+4}, v{40+m}, v{40+m}, {c(4)}
        v_dot2_f32_bf16 v{S+5}, v{40+m}, v{SBP+m}, {c(5)}
        """)
    A("s_nop 2")
    for k in range(6):
        A(f"v_mov_b32 v{72+k}, v{S+k}")
    A("s_nop 1")
    for k in range(6):
        A(f"v_permlane32_swap_b32 v{S+k}, v{72+k}")
    A("s_nop 1")
    for k in range(6):
        A(f"v_add_f32 v{S+k}, v{S+k}, v{72+k}")
    A(f"""
    v_and_b32 v8, 31, v1
    v_lshlrev_b32 v8, 5, v8
    s_lshl_b32 s37, s31, 10
    v_add_u32 v8, s37, v8
    v_mov_b32 v{S+6}, 0
    v_mov_b32 v{S+7}, 0
    s_cmp_eq_u32 s32, 1
    s_cbranch_scc0 K3_ST0
    ds_write_b128 v8, v[{S}:{S+3}] offset:34816
    ds_write_b128 v8, v[{S+4}:{S+7}] offset:{34816+16}
    s_waitcnt lgkmcnt(0)
    s_barrier
    s_branch K3_STE
    K3_ST0:
    s_barrier
    ds_read_b128 v[72:75], v8 offset:34816
    ds_read_b128 v[76:79], v8 offset:{34816+16}
    s_waitcnt lgkmcnt(0)
    """)
    for k in range(6):
        A(f"v_add_f32 v{S+k}, v{S+k}, v{72+k}")
    A(f"""
    v_cmp_lt_u32 vcc, 31, v1
    s_nop 1
    v_cndmask_b32 v{S}, v{S}, v{S+4}, vcc
    v_cndmask_b32 v{S+1}, v{S+1}, v{S+5}, vcc
    v_cndmask_b32 v{S+2}, v{S+2}, v{S+6}, vcc
    v_cndmask_b32 v{S+3}, v{S+3}, v{S+7}, vcc
    s_lshl_b32 s36, s28, 2
    s_add_u32 s36, s36, s31
    s_lshl_b32 s36, s36, 3
    s_lshr_b32 s37, s29, 1
    s_add_u32 s36, s36, s37
    s_lshl_b32 s36, s36, 11
    s_and_b32 s37, s29, 1
    s_lshl_b32 s37, s37, 9
    s_add_u32 s36, s36, s37
    v_and_b32 v8, 31, v1
    v_lshlrev_b32 v8, 4, v8
    v_lshrrev_b32 v9, 5, v1
    v_lshl_add_u32 v8, v9, 10, v8
    buffer_store_dwordx4 v[{S}:{S+3}], v8, s[52:55], s36 offen
    K3_STE:
    """)
    if genlib.PROF: A("s_waitcnt vmcnt(0)")
    prof_stamp(A, 5)
    prof_dump(A, 10)
    A("""
    K3_END:
    s_endpgm
    """)
    kernel_end(A, name, 200)


def gen_k6(A):
    name = "k6_mlp2_kernel"
    kernel_begin(A, name)
    prof_stamp(A, 0)
    A(f"""
    s_cmp_ge_u32 s2, 256
    s_cbranch_scc1 K6_END
    s_load_dwordx2 s[4:5], s[0:1], {KA['w2']}
    s_load_dwordx2 s[6:7], s[0:1], {KA['b2']}
    s_load_dwordx2 s[22:23], s[0:1], {KA['out']}
    s_load_dwordx2 s[20:21], s[0:1], {KA['ws']}
    """)
    wg_map_64(A)
    lane_setup(A)
    A("s_waitcnt lgkmcnt(0)")
    prof_init(A, 6)
    srd(A, 8, 4, 0, 3584*2048)
    srd(A, 12, 20, WS_HH, SZ_HH)
    srd(A, 16, 6, 0, 2048)
    srd(A, 24, 22, 0, 2048*2048)
    srd(A, 44, 20, WS_MODF, 4096*4)
    srd(A, 48, 20, WS_X1, SZ_ACT)
    gemm64_setup(A, 3584, 2048, 224, perm=True)
    pass
    prof_stamp(A, 1)
    gemm64_prologue(A, 28, 2048)
    def hook6(A):
      A(f"""
      s_lshl_b32 s36, s28, 2
      s_add_u32 s36, s36, s31
      s_lshl_b32 s36, s36, 6
      s_lshl_b32 s37, s29, 2
      s_add_u32 s36, s36, s37
      s_lshl_b32 s37, s32, 1
      s_add_u32 s36, s36, s37
      s_lshl_b32 s36, s36, 10
      buffer_load_dwordx4 v[144:147], v2, s[48:51], s36 offen
      buffer_load_dwordx4 v[148:151], v2, s[48:51], s36 offen offset:1024
      v_lshlrev_b32 v11, 2, v1
      s_lshl_b32 s36, s29, 8
      s_add_u32 s36, s36, {3*4096}
      buffer_load_dword v152, v11, s[44:47], s36 offen
      v_lshlrev_b32 v11, 1, v1
      s_lshl_b32 s36, s29, 7
      buffer_load_ushort v154, v11, s[16:19], s36 offen
      """)
    gemm64_loop(A, "K6G", 28, 2048, perm=True, hook=hook6, extra_vm=4)
    prof_stamp(A, 2)
    A("v_lshlrev_b32 v154, 16, v154\nv_lshlrev_b32 v155, 2, v1\nds_write_b32 v155, v154 offset:33024")
    modf_to_lds(A, 152, 32768)
    gemm64_exchange(A, "K6G")
    prof_stamp(A, 3)
    mod16_from_lds(A, 152, 32768)
    mod16_from_lds(A, 168, 33024)
    for jq in range(4):
        for d in range(2):
            x = 144 + 2*jq + d
            r = 16 + 4*jq + 2*d
            A(f"""
            v_add_f32 v{r}, v{r}, v{168+4*jq+2*d}
            v_add_f32 v{r+1}, v{r+1}, v{168+4*jq+2*d+1}
            v_lshlrev_b32 v8, 16, v{x}
            v_and_b32 v9, 0xffff0000, v{x}
            v_fma_f32 v{r}, v{r}, v{152+4*jq+2*d}, v8
            v_fma_f32 v{r+1}, v{r+1}, v{152+4*jq+2*d+1}, v9
            """)
    for m in range(8):
        A(f"v_cvt_pk_bf16_f32 v{32+m}, v{16+2*m}, v{16+2*m+1}")
    A(f"""
    s_nop 1
    v_permlane32_swap_b32 v32, v34
    v_permlane32_swap_b32 v33, v35
    v_permlane32_swap_b32 v36, v38
    v_permlane32_swap_b32 v37, v39
    """)
    A(f"""
    v_and_b32 v8, 31, v1
    v_lshrrev_b32 v9, 5, v1
    v_lshlrev_b32 v10, 11, v8
    v_lshl_add_u32 v10, v9, 4, v10      ; t*2048 + h*16
    s_lshl_b32 s36, s28, 2
    s_add_u32 s36, s36, s31
    s_lshl_b32 s36, s36, 16
    s_lshl_b32 s37, s29, 7
    s_add_u32 s36, s36, s37
    s_lshl_b32 s37, s32, 6
    s_add_u32 s36, s36, s37
    buffer_store_dwordx4 v[32:35], v10, s[24:27], s36 offen
    buffer_store_dwordx4 v[36:39], v10, s[24:27], s36 offen offset:32
    """)
    if genlib.PROF: A("s_waitcnt vmcnt(0)")
    prof_stamp(A, 4)
    prof_stamp(A, 5)
    prof_dump(A, 10)
    A("""
    K6_END:
    s_endpgm
    """)
    kernel_end(A, name, 192)
```

```python
from genlib import *
import genlib
from k_front import bf16_round_pairs

def wg_map_224(A):
    A("""
    s_and_b32 s26, s2, 7
    s_lshr_b32 s27, s2, 3
    s_and_b32 s28, s26, 1
    s_lshl_b32 s28, s28, 3
    s_and_b32 s29, s27, 7
    s_add_u32 s28, s28, s29
    s_lshr_b32 s29, s26, 1
    s_lshl_b32 s29, s29, 2
    s_lshr_b32 s27, s27, 3
    s_add_u32 s29, s29, s27
    """)

GELU_C1 = -2.0 * 0.7978845608028654 * LOG2E
GELU_C2 = GELU_C1 * 0.044715

def split_hilo(A, x, hi, lo, tmp):
    A(f"""
    v_cvt_pk_bf16_f32 v{tmp}, v{x}, v{x}
    v_and_b32 v{hi}, 0xffff0000, v{tmp}
    v_sub_f32 v{lo}, v{x}, v{hi}
    v_cvt_pk_bf16_f32 v{tmp}, v{lo}, v{lo}
    v_and_b32 v{lo}, 0xffff0000, v{tmp}
    """)

def gen_k5(A):
    name = "k5_mlp1_kernel"
    kernel_begin(A, name)
    prof_stamp(A, 0)
    SLOT = 28672
    ACC, AF, BF = 16, 128, 184
    AX = 4*SLOT
    BX = AX + 7168
    AL = BX + 4096
    A(f"""
    s_cmp_ge_u32 s2, 256
    s_cbranch_scc1 K5_END
    s_load_dwordx2 s[4:5], s[0:1], {KA['w1']}
    s_load_dwordx2 s[6:7], s[0:1], {KA['b1']}
    s_load_dwordx2 s[20:21], s[0:1], {KA['ws']}
    """)
    wg_map_224(A)
    A("""
    v_and_b32 v1, 63, v0
    v_lshrrev_b32 v5, 6, v0
    v_lshlrev_b32 v2, 4, v1
    v_readfirstlane_b32 s30, v5
    s_waitcnt lgkmcnt(0)
    """)
    prof_init(A, 5)
    srd(A, 8, 4, 0, 1024*7168)
    srd(A, 12, 20, WS_Y, SZ_ACT)
    srd(A, 16, 6, 0, 7168)
    srd(A, 24, 20, WS_HH, SZ_HH)
    A("s_cmp_ge_u32 s30, 4\ns_cbranch_scc1 K5_LOADER")
    A(f"""
    v_lshrrev_b32 v9, 5, v1            ; h
    s_lshl_b32 s34, s28, 2
    s_add_u32 s34, s34, s30
    s_lshl_b32 s34, s34, 16
    """)
    for n in range(8):
        if n == 4:
            A("s_add_u32 s34, s34, 4096")
        A(f"buffer_load_dwordx4 v[{BF+4*n}:{BF+4*n+3}], v2, s[12:15], s34 offen offset:{(n & 3)*1024}")
    A(f"""
    s_add_u32 s34, s34, 4096
    v_bfe_u32 v6, v1, 2, 2
    v_lshlrev_b32 v4, 6, v6
    v_bfe_u32 v5, v1, 4, 1
    v_lshl_add_u32 v4, v5, 5, v4
    v_and_b32 v7, 3, v1
    v_lshl_add_u32 v4, v7, 3, v4
    v_mul_u32_u24 v5, 1792, v9
    v_add_u32 v4, v4, v5
    v_add_u32 v3, {2*SLOT}, v4
    """)
    for i in range(112):
        A(f"v_mov_b32 v{ACC+i}, 0")
    def areads(slot, ks, buf):
        va = "v4" if slot < 2 else "v3"
        base = (slot & 1)*SLOT + ks*7168
        out = []
        for ft in range(7):
            for e in range(2):
                r = AF + 28*buf + 4*ft + 2*e
                out.append(f"ds_read_b64_tr_b16 v[{r}:{r+1}], {va} offset:{base + e*3584 + ft*256}")
        return out
    prof_stamp(A, 1)
    A("s_barrier")
    prof_stamp(A, 2)
    for x in areads(0, 0, 0):
        A(x)
    A("s_mov_b32 s41, 4\nK5_LOOP:")
    n = 0
    for slot in range(4):
        A("s_barrier")
        if genlib.PROF:
            A("s_memtime s[68:69]\ns_waitcnt lgkmcnt(0)")
            if slot == 0:
                for it in range(4):
                    A(f"s_cmp_eq_u32 s41, {4-it}\ns_cselect_b32 s{84+it}, s68, s{84+it}")
            elif slot == 2:
                for it in range(4):
                    A(f"s_cmp_eq_u32 s41, {4-it}\ns_cselect_b32 s{88+it}, s68, s{88+it}")
        for ks in range(4):
            buf = n % 2
            nslot, nks = (slot, ks+1) if ks < 3 else ((slot+1) % 4, 0)
            rd = areads(nslot, nks, 1-buf)
            b = BF + 4*(n % 8)
            A("s_waitcnt vmcnt(7) lgkmcnt(0)")
            for ft in range(7):
                a = AF + 28*buf + 4*ft
                c = ACC + 16*ft
                A(f"v_mfma_f32_32x32x16_bf16 v[{c}:{c+15}], v[{a}:{a+3}], v[{b}:{b+3}], v[{c}:{c+15}]")
                if ft < 5:
                    k = 3 if ft < 4 else 2
                    for x in rd[:k]:
                        A(x)
                    rd = rd[k:]
            A(f"buffer_load_dwordx4 v[{b}:{b+3}], v2, s[12:15], s34 offen offset:{(n & 3)*1024}")
            if n % 4 == 3:
                A("s_add_u32 s34, s34, 4096")
            n += 1
    A(f"""
    s_sub_u32 s41, s41, 1
    s_cmp_lg_u32 s41, 0
    s_cbranch_scc1 K5_LOOP
    s_waitcnt lgkmcnt(0)
    v_add_u32 v10, {AX}, v2
    """)
    for ft in range(7):
        A(f"ds_read_b128 v[{AF+4*ft}:{AF+4*ft+3}], v10 offset:{ft*1024}")
    A(f"""
    s_lshl_b32 s36, s30, 10
    v_add_u32 v11, s36, v10
    ds_read_b128 v[{AF+28}:{AF+31}], v11 offset:{BX-AX}
    v_and_b32 v11, 31, v1
    v_lshlrev_b32 v11, 2, v11
    s_lshl_b32 s36, s30, 7
    v_add_u32 v11, s36, v11
    v_add_u32 v11, {AL}, v11
    ds_read_b32 v12, v11
    s_waitcnt lgkmcnt(0)
    """)
    for ft in range(7):
        c = ACC + 16*ft
        A(f"v_mfma_f32_32x32x16_bf16 v[{c}:{c+15}], v[{AF+4*ft}:{AF+4*ft+3}], v[{AF+28}:{AF+31}], v[{c}:{c+15}]")
    A("s_waitcnt vmcnt(0)\ns_nop 15")
    prof_stamp(A, 3)
    A(f"s_mov_b32 s42, {f32(GELU_C1)}\ns_mov_b32 s43, {f32(GELU_C2)}\nv_mov_b32 v8, s42")
    A(f"""
    s_lshl_b32 s36, s28, 2
    s_add_u32 s36, s36, s30
    s_mul_i32 s36, s36, 224
    s_mul_i32 s37, s29, 14
    s_add_u32 s36, s36, s37
    s_lshl_b32 s36, s36, 10
    """)
    for ft in range(7):
        c = ACC + 16*ft
        T = 160; E = 176
        for i in range(16):
            A(f"v_mul_f32 v{c+i}, v{c+i}, v12")
        for i in range(16):
            A(f"v_mul_f32 v{T+i}, v{c+i}, v{c+i}")
        for i in range(16):
            A(f"v_fma_f32 v{T+i}, v{T+i}, s43, v8")
        for i in range(16):
            A(f"v_mul_f32 v{T+i}, v{T+i}, v{c+i}")
        for i in range(16):
            A(f"v_exp_f32 v{T+i}, v{T+i}")
        for i in range(16):
            A(f"v_add_f32 v{T+i}, 1.0, v{T+i}")
        for i in range(16):
            A(f"v_rcp_f32 v{T+i}, v{T+i}")
        for i in range(16):
            A(f"v_mul_f32 v{T+i}, v{T+i}, v{c+i}")
        P = E + 8*(ft % 2)
        for m in range(8):
            A(f"v_cvt_pk_bf16_f32 v{P+m}, v{T+2*m}, v{T+2*m+1}")
        for e in range(2):
            kidx = 2*ft + e
            if kidx % 4 == 0 and kidx > 0:
                A("s_add_u32 s36, s36, 4096")
            A(f"buffer_store_dwordx4 v[{P+4*e}:{P+4*e+3}], v2, s[24:27], s36 offen offset:{(kidx & 3)*1024}")
    if genlib.PROF: A("s_waitcnt vmcnt(0)")
    prof_stamp(A, 4)
    prof_stamp(A, 5)
    prof_dump(A, 10)
    A("s_endpgm")
    A(f"""
    K5_LOADER:
    s_sub_u32 s31, s30, 4              ; lw
    s_mul_i32 s36, s31, 28
    v_lshrrev_b32 v5, 4, v1            ; l>>4
    v_add_u32 v5, s36, v5
    v_bfe_u32 v6, v1, 2, 2             ; r
    v_and_b32 v7, 3, v1                ; c
    """)
    for u in range(7):
        A(f"""
        v_add_u32 v8, {4*u}, v5
        v_mul_u32_u24 v9, 9363, v8
        v_lshrrev_b32 v9, 16, v9           ; q
        v_mul_u32_u24 v10, 7, v9
        v_sub_u32 v10, v8, v10             ; ft
        v_lshl_add_u32 v9, v9, 2, v6       ; row = 4q + r
        v_mul_u32_u24 v9, 7168, v9
        v_lshl_add_u32 v9, v10, 6, v9
        v_lshl_add_u32 v{16+u}, v7, 4, v9
        """)
    A(f"""
    s_mul_i32 s33, s29, 448
    s_mul_i32 s39, s31, 7168
    """)
    def issue(slot_sgpr=None, slot=None):
        for u in range(7):
            if slot is not None:
                A(f"s_add_u32 m0, s39, {slot*SLOT + u*1024}")
            else:
                A(f"s_add_u32 m0, s{slot_sgpr}, {u*1024}")
            A("s_nop 0")
            A(f"buffer_load_dwordx4 v{16+u}, s[8:11], s33 offen lds")
        A(f"s_add_u32 s33, s33, {64*7168}")
    Q = []
    def issue_stage(st):
        issue(slot=st % 4)
        Q.extend([("W", st)]*7)
    def wait_tag(tag):
        idx = max(i for i, t in enumerate(Q) if t == tag)
        return len(Q) - 1 - idx
    srd(A, 44, 20, WS_ST, 0x100000)
    srd(A, 48, 20, WS_UVW, 3*3584*4 + 64)
    ST = 32
    UV = 96
    A(f"""
    s_lshl_b32 s44, s28, 2
    """.replace("s44", "s52"))
    A(f"""
    s_add_u32 s52, s52, s31
    s_lshl_b32 s52, s52, 14            ; tile*16384
    v_and_b32 v8, 31, v1               ; f
    s_mul_i32 s36, s29, 224
    s_lshl_b32 s37, s31, 5
    s_add_u32 s36, s36, s37            ; F0 = j*224 + lw*32
    v_add_u32 v8, s36, v8              ; F
    v_lshlrev_b32 v14, 2, v8           ; F*4
    v_lshlrev_b32 v15, 1, v8           ; F*2
    v_mov_b32 v11, 0
    s_mov_b32 s53, {3584*4}
    s_mov_b32 s54, {2*3584*4}
    s_mov_b32 s55, {3*3584*4}
    """)
    side = []
    for qp in range(16):
        pre = f"s_add_u32 s52, s52, 4096\n" if (qp and qp % 4 == 0) else ""
        side.append(pre + f"buffer_load_dwordx4 v[{ST+4*qp}:{ST+4*qp+3}], v2, s[44:47], s52 offen offset:{(qp & 3)*1024}")
    side += [f"buffer_load_dword v{UV}, v14, s[48:51], 0 offen",
             f"buffer_load_dword v{UV+1}, v14, s[48:51], s53 offen",
             f"buffer_load_dword v{UV+2}, v14, s[48:51], s54 offen",
             f"buffer_load_ushort v{UV+3}, v15, s[16:19], 0 offen",
             f"buffer_load_dword v{UV+4}, v14, s[48:51], 0 offen offset:512",
             f"buffer_load_dword v{UV+5}, v14, s[48:51], s53 offen offset:512",
             f"buffer_load_dword v{UV+6}, v14, s[48:51], s54 offen offset:512",
             f"buffer_load_ushort v{UV+7}, v15, s[16:19], 0 offen offset:256",
             f"buffer_load_dwordx4 v[104:107], v11, s[48:51], s55 offen",
             f"buffer_load_dwordx4 v[108:111], v11, s[48:51], s55 offen offset:16"]
    issue_stage(0)
    issue_stage(1)
    A(f"s_waitcnt vmcnt({wait_tag(('W', 0))})\ns_barrier")
    issue_stage(2)
    def liter(i, nside=0):
        A(f"s_waitcnt vmcnt({wait_tag(('W', i+1))})\ns_barrier")
        if i + 3 < 16: issue_stage(i+3)
        for k in range(nside):
            if side:
                A(side.pop(0)); Q.append(("S", 0))
    for i in range(0, 10):
        liter(i, 2 if i < 8 else 5)
    assert not side
    liter(10)
    A(f"s_waitcnt vmcnt({wait_tag(('S', 0))})")
    for k in range(8):
        pass
    for q in range(1, 8):
        for e in range(4):
            A(f"v_add_f32 v{ST+e}, v{ST+e}, v{ST+8*q+e}")
        for e in range(2):
            A(f"v_add_f32 v{ST+4+e}, v{ST+4+e}, v{ST+8*q+4+e}")
    for k in range(6):
        A(f"v_mov_b32 v{112+k}, v{ST+k}")
    A("s_nop 1")
    for k in range(6):
        A(f"v_permlane32_swap_b32 v{ST+k}, v{112+k}")
    A("s_nop 1")
    for k in range(6):
        A(f"v_add_f32 v{ST+k}, v{ST+k}, v{112+k}")
    S1, S2, S3, S4, S5, S6 = [ST+k for k in range(6)]
    G2c, GS, G1c, SB2, SB1 = 104, 105, 106, 109, 110
    iD = f32(1/1024)
    A(f"""
    v_mul_f32 v112, {iD}, v{S1}            ; mu1
    v_mul_f32 v113, {iD}, v{S2}
    v_fma_f32 v113, -v112, v112, v113      ; var1
    v_add_f32 v113, {f32(1e-5)}, v113
    v_rsq_f32 v114, v113                   ; r1
    s_nop 0
    v_mul_f32 v115, v113, v114             ; 1/r1
    v_fma_f32 v116, -v112, v{G1c}, v{S3}
    v_fma_f32 v116, v116, v114, v{SB1}
    v_mul_f32 v116, {iD}, v116             ; m2
    v_mul_f32 v117, v112, v{G2c}
    v_fma_f32 v117, -2.0, v{S4}, v117      ; mu1*G2 - 2 S4
    v_fma_f32 v117, v117, v112, v{S5}
    v_mul_f32 v117, v117, v114
    v_fma_f32 v118, -v112, v{GS}, v{S6}
    v_fma_f32 v117, 2.0, v118, v117        ; r1*(..) + 2(..)
    v_fma_f32 v117, v117, v114, v{SB2}
    v_mul_f32 v117, {iD}, v117             ; E2
    v_fma_f32 v117, -v116, v116, v117      ; var2
    v_add_f32 v117, {f32(1e-5)}, v117
    v_rsq_f32 v118, v117                   ; r2
    s_nop 0
    v_mul_f32 v119, v117, v118             ; 1/r2
    v_mul_f32 v120, v114, v118             ; alpha
    v_sub_f32 v121, 0, v112                ; c1 = -mu1
    ; c2 = 1/r1 = v115
    v_mul_f32 v122, v116, v115
    v_sub_f32 v122, 0, v122                ; c3 = -m2/r1
    v_mul_f32 v123, v115, v119             ; c4 = 1/alpha
    """)
    split_hilo(A, 121, 124, 125, 8)
    split_hilo(A, 115, 126, 127, 8)
    split_hilo(A, 122, 128, 129, 8)
    split_hilo(A, 123, 130, 131, 8)
    def pk(dst, lo, hi):
        if lo is None and hi is None: A(f"v_mov_b32 v{dst}, 0")
        elif hi is None: A(f"v_lshrrev_b32 v{dst}, 16, v{lo}")
        else: A(f"v_lshrrev_b32 v{dst}, 16, v{lo}\nv_or_b32 v{dst}, v{dst}, v{hi}")
    pk(132, 124, 124); pk(133, 125, 126); pk(134, 126, 127); pk(135, 128, 128)
    pk(136, 129, 130); pk(137, 131, None); pk(138, None, None); pk(139, None, None)
    A(f"""
    v_cmp_lt_u32 vcc, 31, v1
    s_nop 1
    v_cndmask_b32 v132, v132, v136, vcc
    v_cndmask_b32 v133, v133, v137, vcc
    v_cndmask_b32 v134, v134, v138, vcc
    v_cndmask_b32 v135, v135, v139, vcc
    s_lshl_b32 s36, s31, 10
    v_add_u32 v10, s36, v2
    v_add_u32 v10, {BX}, v10
    ds_write_b128 v10, v[132:135]
    v_and_b32 v10, 31, v1
    v_lshlrev_b32 v10, 2, v10
    s_lshl_b32 s36, s31, 7
    v_add_u32 v10, s36, v10
    v_add_u32 v10, {AL}, v10
    ds_write_b32 v10, v120
    """)
    A("s_waitcnt lgkmcnt(0)")
    liter(11)
    for tsel in range(2):
        u_, v_, w_, b_ = UV+4*tsel, UV+4*tsel+1, UV+4*tsel+2, UV+4*tsel+3
        split_hilo(A, u_, 124, 125, 8)
        split_hilo(A, v_, 126, 127, 8)
        split_hilo(A, w_, 128, 129, 8)
        A(f"v_lshlrev_b32 v130, 16, v{b_}")
        pk(132, 124, 125); pk(133, 124, 126); pk(134, 127, 126); pk(135, 128, 129)
        pk(136, 128, 130); pk(137, 130, None); pk(138, None, None); pk(139, None, None)
        A(f"""
        v_cndmask_b32 v132, v132, v136, vcc
        v_cndmask_b32 v133, v133, v137, vcc
        v_cndmask_b32 v134, v134, v138, vcc
        v_cndmask_b32 v135, v135, v139, vcc
        s_add_u32 s36, s31, {4*tsel}
        s_cmp_lt_u32 s36, 7
        s_cbranch_scc0 K5_NOAX{tsel}
        s_lshl_b32 s36, s36, 10
        v_add_u32 v10, s36, v2
        v_add_u32 v10, {AX}, v10
        ds_write_b128 v10, v[132:135]
        K5_NOAX{tsel}:
        """)
    A("s_waitcnt lgkmcnt(0)")
    for i in range(12, 15):
        liter(i)
    A("s_barrier")
    A("""
    K5_END:
    s_endpgm
    """)
    kernel_end(A, name, 216)
```

```python
import sys
sys.path.insert(0, "work")
from genlib import *
import k_front, k_gemm, k_mlp1, k_attn

HEADER = open("adaLN_cond__grouped_kv_mqa__mixer_channel_mlp__prompt.s.ref").read().split("; Override launch")[0]

def build(launches, gens):
    A = Asm()
    txt = HEADER
    for (k, g, b, l) in launches:
        txt += f"; @launch kernel={k} grid=({g},1,1) block=({b},1,1) lds={l}\n"
    txt += '.amdgcn_target "amdgcn-amd-amdhsa--gfx950"\n'
    for g in gens:
        g(A)
    return txt + A.text()

def v1():
    launches = [("k0_mod_kernel", 256, 256, 9216), ("k1_lnkv_kernel", 256, 512, 144384), ("k2_attn_kernel", 256, 512, 131136),
                ("k3_wo_kernel", 256, 512, 65536), ("k5_mlp1_kernel", 256, 512, 126464),
                ("k6_mlp2_kernel", 256, 512, 65536)]
    gens = [k_front.gen_k0, k_front.gen_k1, k_attn.gen_k2, k_gemm.gen_k3, k_mlp1.gen_k5, k_gemm.gen_k6]
    return build(launches, gens)

if __name__ == "__main__":
    import genlib, os
    genlib.PROF = bool(os.environ.get("PROF"))
    for kv in os.environ.get("OPT", "").split(","):
        if kv:
            k, v = kv.split("="); k_gemm.OPT[k] = int(v)
    out = sys.argv[1] if len(sys.argv) > 1 else "adaLN_cond__grouped_kv_mqa__mixer_channel_mlp__prompt.s"
    open(out, "w").write(v1())
    print("written", out)
```

```python
from genlib import *
import genlib


def silu_regs(A, regs, tmp):
    n = len(regs)
    for i in range(n):
        A(f"v_lshlrev_b32 v{regs[i]}, 16, v{regs[i]}\nv_mul_f32 v{tmp+i}, {f32(-LOG2E)}, v{regs[i]}")
    for i in range(n): A(f"v_exp_f32 v{tmp+i}, v{tmp+i}")
    for i in range(n): A(f"v_add_f32 v{tmp+i}, 1.0, v{tmp+i}")
    for i in range(n): A(f"v_rcp_f32 v{tmp+i}, v{tmp+i}")
    for i in range(n): A(f"v_mul_f32 v{regs[i]}, v{regs[i]}, v{tmp+i}")
    for i in range(n): A(f"v_cvt_pk_bf16_f32 v{regs[i]}, v{regs[i]}, 0")
    for i in range(n): A(f"v_lshlrev_b32 v{regs[i]}, 16, v{regs[i]}")

def gen_k0(A):
    name = "k0_mod_kernel"
    kernel_begin(A, name)
    prof_stamp(A, 0)
    A(f"""
    s_cmp_ge_u32 s2, 256
    s_cbranch_scc1 K0_END
    s_load_dwordx2 s[4:5], s[0:1], {KA['c']}
    s_load_dwordx2 s[6:7], s[0:1], {KA['wmod']}
    s_load_dwordx2 s[20:21], s[0:1], {KA['ws']}
    s_load_dwordx2 s[30:31], s[0:1], {KA['x']}
    s_lshr_b32 s22, s2, 2          ; cb (0..63)
    s_and_b32 s23, s2, 3           ; ks
    v_lshrrev_b32 v1, 3, v0        ; rg (0..31)
    v_and_b32 v2, 7, v0            ; cc
    v_mul_u32_u24 v3, 12288, v1
    v_lshl_add_u32 v3, v2, 4, v3   ; w voffset
    v_lshlrev_b32 v4, 1, v1        ; c voffset
    s_waitcnt lgkmcnt(0)
    """)
    prof_init(A, 0)
    prof_stamp(A, 1)
    srd(A, 8, 4, 0, 2048)
    srd(A, 12, 6, 0, 1024 * 12288)
    srd(A, 16, 20, WS_MODP, 4 * 4096 * 4)
    srd(A, 32, 30, 0, 2048*2048)
    A(f"""
    s_mul_i32 s24, s23, {256*12288}
    s_lshl_b32 s25, s22, 7
    s_add_u32 s24, s24, s25
    s_cmp_ge_u32 s22, 32
    s_cselect_b32 s25, 2048, 0
    s_add_u32 s24, s24, s25
    s_lshl_b32 s26, s23, 9         ; c soffset
    """)
    for i in range(8):
        A(f"buffer_load_ushort v{8+i}, v4, s[8:11], s26 offen offset:{i*64}")
    for i in range(8):
        A(f"buffer_load_dwordx4 v[{16+4*i}:{19+4*i}], v3, s[12:15], s24 offen nt")
        if i < 7:
            A(f"s_add_u32 s24, s24, {32*12288}")
    srd(A, 36, 20, 0x30000, 0x2400)
    A("""
    v_lshlrev_b32 v5, 2, v0
    v_mov_b32 v6, 0
    s_lshl_b32 s27, s2, 10
    buffer_store_dword v6, v5, s[36:39], s27 offen
    """)
    A(f"""
    s_and_b32 s27, s2, 7
    s_lshr_b32 s27, s27, 1         ; c>>1
    s_lshr_b32 s28, s2, 3          ; idx
    s_lshr_b32 s29, s28, 1
    s_lshl_b32 s29, s29, 2
    s_add_u32 s27, s27, s29
    s_lshl_b32 s27, s27, 16
    s_and_b32 s28, s28, 1
    s_lshl_b32 s28, s28, 15
    s_add_u32 s27, s27, s28
    v_lshlrev_b32 v5, 7, v0
    buffer_load_dword v70, v5, s[32:35], s27 offen
    """)
    for j in range(8):
        A(f"v_mov_b32 v{48+j}, 0")
    A("s_waitcnt vmcnt(10)")
    silu_regs(A, list(range(8, 16)), 56)
    for i in range(8):
        A(f"s_waitcnt vmcnt({9-i})")
        if i == 0: prof_stamp(A, 2)
        for d in range(4):
            w = 16 + 4*i + d
            A(f"""
            v_lshlrev_b32 v5, 16, v{w}
            v_and_b32 v6, 0xffff0000, v{w}
            v_fmac_f32 v{48+2*d}, v5, v{8+i}
            v_fmac_f32 v{49+2*d}, v6, v{8+i}
            """)
    A(f"""
    v_lshlrev_b32 v5, 5, v0
    ds_write_b128 v5, v[48:51]
    ds_write_b128 v5, v[52:55] offset:16
    s_waitcnt lgkmcnt(0)
    s_barrier
    """)
    prof_stamp(A, 3)
    A(f"""
    v_and_b32 v6, 63, v0
    v_lshrrev_b32 v7, 6, v0
    v_lshlrev_b32 v5, 11, v7           ; part*8*256
    v_lshl_add_u32 v5, v6, 2, v5
    """)
    for r in range(8):
        A(f"ds_read_b32 v{16+r}, v5 offset:{r*256}")
    A("s_waitcnt lgkmcnt(0)")
    for st in (4, 2, 1):
        for i in range(st):
            A(f"v_add_f32 v{16+i}, v{16+i}, v{16+i+st}")
    A(f"""
    v_lshlrev_b32 v5, 2, v0
    ds_write_b32 v5, v16 offset:8192
    s_waitcnt lgkmcnt(0)
    s_barrier
    v_cmp_gt_u32 vcc, 64, v0
    s_and_saveexec_b64 s[28:29], vcc
    s_cbranch_execz K0_END
    """)
    for r in range(4):
        A(f"ds_read_b32 v{16+r}, v5 offset:{8192 + r*256}")
    A(f"""
    s_waitcnt lgkmcnt(0)
    v_add_f32 v16, v16, v17
    v_add_f32 v18, v18, v19
    v_add_f32 v16, v16, v18
    s_lshl_b32 s24, s23, 14            ; ks*4096*4
    s_lshl_b32 s25, s22, 8             ; cb*64*4
    s_add_u32 s24, s24, s25
    buffer_store_dword v16, v5, s[16:19], s24 offen
    """)
    prof_stamp(A, 4)
    if genlib.PROF: A("s_waitcnt vmcnt(0)")
    prof_stamp(A, 5)
    prof_dump(A, 6)
    A("""
    K0_END:
    s_endpgm
    """)
    kernel_end(A, name, 72)


def bf16_round_pairs(A, regs, tmp):
    for i in range(0, len(regs), 2):
        A(f"v_cvt_pk_bf16_f32 v{tmp}, v{regs[i]}, v{regs[i+1]}")
        A(f"v_lshlrev_b32 v{regs[i]}, 16, v{tmp}")
        A(f"v_and_b32 v{regs[i+1]}, 0xffff0000, v{tmp}")


def gen_k1(A):
    name = "k1_lnkv_kernel"
    kernel_begin(A, name)
    prof_stamp(A, 0)
    XR, WR, GR, RED = 0, 65536, 131072, 139264
    A(f"""
    s_cmp_ge_u32 s2, 256
    s_cbranch_scc1 K1_END
    s_load_dwordx2 s[4:5], s[0:1], {KA['x']}
    s_load_dwordx4 s[40:43], s[0:1], {KA['wk']}
    s_load_dwordx2 s[20:21], s[0:1], {KA['ws']}
    s_load_dwordx4 s[48:51], s[0:1], {KA['c']}      ; c, wmod
    s_load_dwordx2 s[52:53], s[0:1], {KA['wq']}
    v_and_b32 v1, 63, v0           ; l
    v_lshrrev_b32 v2, 6, v0        ; w
    v_lshlrev_b32 v7, 4, v1        ; l*16
    v_readfirstlane_b32 s30, v2    ; s30 = wave
    v_and_b32 v3, 31, v0           ; t
    v_bfe_u32 v4, v0, 5, 1         ; h
    s_waitcnt lgkmcnt(0)
    """)
    prof_init(A, 1)
    prof_stamp(A, 1)
    A("s_cmp_ge_u32 s2, 128\ns_cbranch_scc1 K1_REST")
    srd(A, 16, 20, WS_MODP, 4 * 4096 * 4)
    A("s_lshr_b32 s31, s2, 1\ns_and_b32 s32, s2, 1")
    srd(A, 8, 4, 0, 2048 * 2048)
    A("""
    s_cmp_eq_u32 s32, 0
    s_cselect_b32 s12, s40, s42
    s_cselect_b32 s13, s41, s43
    s_mov_b32 s14, 65536
    s_mov_b32 s15, 0x00020000
    """)
    srd(A, 24, 20, WS_H, SZ_ACT)
    A("s_cmp_eq_u32 s32, 0\ns_cselect_b32 s26, s26, 0")
    srd(A, 44, 20, WS_KV, 0x40000)
    A(f"""
    v_lshrrev_b32 v5, 4, v1            ; j>>4
    v_and_b32 v6, 15, v1               ; p
    v_xor_b32 v6, v6, v5
    v_lshlrev_b32 v6, 4, v6
    v_lshl_add_u32 v5, v5, 11, v6      ; v_a
    s_lshl_b32 s33, s31, 16
    s_lshl_b32 s34, s30, 8
    s_add_u32 s33, s33, s34
    s_lshl_b32 s35, s30, 13            ; w*8192
    """)
    for i in range(8):
        A(f"""
        v_xor_b32 v6, {((4*i) & 15) << 4}, v5
        s_add_u32 m0, s35, {XR + i*1024}
        s_add_u32 s36, s33, {i*8192}
        buffer_load_dwordx4 v6, s[8:11], s36 offen lds
        """)
    A(f"""
    v_lshlrev_b32 v8, 4, v3
    v_lshl_add_u32 v8, v4, 12, v8      ; t*16 + h*4096
    s_lshl_b32 s37, s30, 9             ; w*512
    """)
    for p in range(4):
        A(f"s_add_u32 s36, s37, {p*16384}\nbuffer_load_dwordx4 v[{16+4*p}:{19+4*p}], v8, s[16:19], s36 offen")
    XV = 64
    A(f"""
    v_and_b32 v9, 15, v3
    v_xor_b32 v9, v9, v4
    v_lshlrev_b32 v9, 4, v9
    v_lshl_add_u32 v9, v3, 8, v9       ; t*256 + ((h ^ (t&15))*16)
    v_add_u32 v9, s35, v9
    v_mov_b32 v12, 0
    v_mov_b32 v13, 0
    v_mov_b32 v14, 0x3f803f80
    v_mov_b32 v11, 0
    v_mov_b32 v15, 0
    s_waitcnt vmcnt(4)
    """)
    prof_stamp(A, 2)
    for s_ in range(8):
        A(f"v_xor_b32 v10, {32*s_}, v9")
        A(f"ds_read_b128 v[{XV+4*s_}:{XV+4*s_+3}], v10")
    for s_ in range(8):
        A(f"s_waitcnt lgkmcnt({7-s_})")
        for d in range(4):
            r = XV + 4*s_ + d
            a1, a2 = (12, 13) if d % 2 == 0 else (11, 15)
            A(f"v_dot2_f32_bf16 v{a1}, v{r}, v14, v{a1}")
            A(f"v_dot2_f32_bf16 v{a2}, v{r}, v{r}, v{a2}")
    A(f"""
    s_nop 2
    v_add_f32 v12, v12, v11
    v_add_f32 v13, v13, v15
    v_mov_b32 v10, v12
    v_mov_b32 v11, v13
    s_nop 1
    v_permlane32_swap_b32 v12, v10
    v_permlane32_swap_b32 v13, v11
    s_nop 1
    v_add_f32 v12, v12, v10
    v_add_f32 v13, v13, v11
    v_lshlrev_b32 v10, 3, v3           ; t*8
    s_lshl_b32 s36, s30, 8
    v_add_u32 v11, s36, v10
    v_add_u32 v11, {RED}, v11
    ds_write_b64 v11, v[12:13]
    s_waitcnt vmcnt(0)
    """)
    for i in range(8):
        A(f"""
        s_add_u32 m0, s35, {WR + i*1024}
        s_add_u32 s36, s35, {i*1024}
        buffer_load_dwordx4 v7, s[12:15], s36 offen lds
        """)
    for e in range(4):
        A(f"v_add_f32 v{16+e}, v{16+e}, v{20+e}\nv_add_f32 v{24+e}, v{24+e}, v{28+e}")
    for e in range(4):
        A(f"v_add_f32 v{16+e}, v{16+e}, v{24+e}")
    bf16_round_pairs(A, [16, 17, 18, 19], 20)
    A("v_cvt_f32_u32 v20, v4")
    for e in range(4):
        A(f"v_add_f32 v{16+e}, v20, v{16+e}")
    bf16_round_pairs(A, [16, 17, 18, 19], 20)
    A(f"""
    v_xor_b32 v20, 1, v4
    v_lshlrev_b32 v20, 12, v20         ; h? 0 : 4096
    v_lshl_add_u32 v20, v3, 4, v20
    s_lshl_b32 s36, s30, 9
    v_add_u32 v20, s36, v20
    v_add_u32 v20, {GR}, v20
    ds_write_b128 v20, v[16:19]
    s_waitcnt lgkmcnt(0)
    s_barrier
    v_add_u32 v10, {RED}, v10
    """)
    prof_stamp(A, 3)
    for w_ in range(8):
        A(f"ds_read_b64 v[{16+2*w_}:{17+2*w_}], v10 offset:{w_*256}")
    A("s_waitcnt lgkmcnt(0)")
    for st in (4, 2, 1):
        for i in range(st):
            A(f"v_add_f32 v{16+2*i}, v{16+2*i}, v{16+2*(i+st)}\nv_add_f32 v{17+2*i}, v{17+2*i}, v{17+2*(i+st)}")
    A(f"""
    v_mul_f32 v16, {f32(1/1024)}, v16      ; mean
    v_mul_f32 v17, {f32(1/1024)}, v17      ; E[x^2]
    v_fma_f32 v17, -v16, v16, v17          ; var
    v_add_f32 v17, {f32(1e-5)}, v17
    v_rsq_f32 v12, v17                     ; a = rstd
    s_lshl_b32 s36, s30, 9
    v_mul_f32 v13, v16, v12
    v_sub_f32 v13, 0, v13
    v_lshlrev_b32 v10, 5, v4
    v_add_u32 v10, s36, v10
    v_add_u32 v10, {GR}, v10               ; GR + w*512 + h*32
    """)
    def gread(s_):
        b = 16 + 16*(s_ & 1)
        A(f"ds_read_b128 v[{b}:{b+3}], v10 offset:{s_*64}")
        A(f"ds_read_b128 v[{b+4}:{b+7}], v10 offset:{s_*64+16}")
        A(f"ds_read_b128 v[{b+8}:{b+11}], v10 offset:{4096+s_*64}")
        A(f"ds_read_b128 v[{b+12}:{b+15}], v10 offset:{4096+s_*64+16}")
    gread(0)
    A(f"""
    s_lshl_b32 s36, s31, 16
    s_lshl_b32 s37, s30, 13
    s_add_u32 s36, s36, s37            ; (tt*64 + 8w)*1024
    s_add_u32 s37, s36, 4096
    """)
    for s_ in range(8):
        if s_ < 7:
            gread(s_+1)
            A("s_waitcnt lgkmcnt(4)")
        else:
            A("s_waitcnt lgkmcnt(0)")
        b = 16 + 16*(s_ & 1)
        for d in range(4):
            r = XV + 4*s_ + d
            t0, t1 = 48 + 2*(d & 1), 49 + 2*(d & 1)
            A(f"""
            v_lshlrev_b32 v{t0}, 16, v{r}
            v_and_b32 v{t1}, 0xffff0000, v{r}
            v_fma_f32 v{t0}, v{t0}, v12, v13
            v_fma_f32 v{t1}, v{t1}, v12, v13
            v_fma_f32 v{t0}, v{t0}, v{b+2*d}, v{b+8+2*d}
            v_fma_f32 v{t1}, v{t1}, v{b+2*d+1}, v{b+8+2*d+1}
            v_cvt_pk_bf16_f32 v{r}, v{t0}, v{t1}
            """)
        A(f"buffer_store_dwordx4 v[{XV+4*s_}:{XV+4*s_+3}], v7, s[24:27], s{36 if s_ < 4 else 37} offen offset:{(s_ & 3)*1024}")
    WV = 96
    A(f"""
    v_bfe_u32 v10, v1, 2, 2            ; r
    v_lshlrev_b32 v10, 6, v10
    v_bfe_u32 v11, v1, 4, 1            ; G
    v_lshl_add_u32 v10, v11, 5, v10
    v_and_b32 v11, 3, v1
    v_lshl_add_u32 v10, v11, 3, v10
    v_lshl_add_u32 v10, v4, 9, v10     ; + h*512
    v_add_u32 v10, s35, v10
    v_add_u32 v10, {WR}, v10
    s_waitcnt vmcnt(8)
    """)
    prof_stamp(A, 4)
    for s_ in range(8):
        for e in range(2):
            A(f"ds_read_b64_tr_b16 v[{WV+4*s_+2*e}:{WV+4*s_+2*e+1}], v10 offset:{s_*1024+e*256}")
    AC = 16
    A("s_waitcnt lgkmcnt(0)\ns_cmp_eq_u32 s32, 0\ns_cbranch_scc0 K1_V")
    for s_ in range(8):
        c = "0" if s_ == 0 else f"v[{AC}:{AC+15}]"
        A(f"v_mfma_f32_32x32x16_bf16 v[{AC}:{AC+15}], v[{WV+4*s_}:{WV+4*s_+3}], v[{XV+4*s_}:{XV+4*s_+3}], {c}")
    A("s_branch K1_RED\nK1_V:")
    for s_ in range(8):
        c = "0" if s_ == 0 else f"v[{AC}:{AC+15}]"
        A(f"v_mfma_f32_32x32x16_bf16 v[{AC}:{AC+15}], v[{XV+4*s_}:{XV+4*s_+3}], v[{WV+4*s_}:{WV+4*s_+3}], {c}")
    A(f"""
    K1_RED:
    s_nop 15
    v_add_u32 v10, s35, v7             ; w*8192 + l*16
    """)
    for jq in range(4):
        A(f"ds_write_b128 v10, v[{AC+4*jq}:{AC+4*jq+3}] offset:{jq*1024}")
    A(f"""
    s_waitcnt lgkmcnt(0)
    s_barrier
    s_lshr_b32 s36, s30, 1
    s_lshl_b32 s36, s36, 10            ; jq*1024
    s_and_b32 s37, s30, 1
    s_lshl_b32 s37, s37, 3
    s_add_u32 s36, s36, s37
    v_add_u32 v10, s36, v7
    """)
    for w_ in range(8):
        A(f"ds_read_b64 v[{32+2*w_}:{33+2*w_}], v10 offset:{w_*8192}")
    A("s_waitcnt lgkmcnt(0)")
    for st in (4, 2, 1):
        for i in range(st):
            A(f"v_add_f32 v{32+2*i}, v{32+2*i}, v{32+2*(i+st)}\nv_add_f32 v{33+2*i}, v{33+2*i}, v{33+2*(i+st)}")
    A(f"""
    v_cvt_pk_bf16_f32 v32, v32, v33
    s_lshl_b32 s36, s31, 12            ; tt*4096
    s_lshl_b32 s37, s32, 11
    s_add_u32 s36, s36, s37
    s_lshr_b32 s37, s30, 2             ; jq>>1
    s_lshl_b32 s37, s37, 10
    s_add_u32 s36, s36, s37
    s_and_b32 s37, s30, 3
    s_lshl_b32 s37, s37, 2
    s_add_u32 s36, s36, s37
    buffer_store_dword v32, v7, s[44:47], s36 offen
    """)
    if genlib.PROF: A("s_waitcnt vmcnt(0)")
    prof_stamp(A, 5)
    prof_dump(A, 6)
    A("s_endpgm")
    A("K1_REST:\ns_cmp_ge_u32 s2, 192\ns_cbranch_scc1 K1_UVW")
    srd(A, 8, 48, 0, 2048)
    srd(A, 12, 50, 0, 1024 * 12288)
    srd(A, 16, 20, WS_MODR, 2 * 2048 * 4)
    srd(A, 56, 52, 0, 1024*2048)
    A(f"""
    s_sub_u32 s31, s2, 128
    s_lshr_b32 s22, s31, 1
    s_and_b32 s23, s31, 1          ; ks
    v_lshrrev_b32 v1, 3, v0        ; rg (0..63)
    v_and_b32 v2, 7, v0            ; cc
    v_mul_u32_u24 v3, 12288, v1
    v_lshl_add_u32 v3, v2, 4, v3
    v_lshlrev_b32 v4, 1, v1
    s_mul_i32 s24, s23, {512*12288}
    s_lshl_b32 s25, s22, 7
    s_add_u32 s24, s24, s25
    s_mov_b32 s25, {2048*2}
    s_cmp_ge_u32 s22, 16
    s_cselect_b32 s25, {(5120-1024)*2}, s25
    s_add_u32 s24, s24, s25
    s_lshl_b32 s26, s23, 10
    """)
    for i in range(8):
        A(f"buffer_load_ushort v{8+i}, v4, s[8:11], s26 offen offset:{i*128}")
    for i in range(8):
        A(f"buffer_load_dwordx4 v[{16+4*i}:{19+4*i}], v3, s[12:15], s24 offen nt")
        if i < 7:
            A(f"s_add_u32 s24, s24, {64*12288}")
    A(f"""
    s_lshr_b32 s27, s31, 3         ; idx8
    s_lshl_b32 s27, s27, 7
    s_lshl_b32 s28, s30, 4
    s_add_u32 s27, s27, s28
    s_lshl_b32 s27, s27, 11        ; row*2048
    s_and_b32 s28, s2, 7
    s_lshr_b32 s28, s28, 2
    s_lshl_b32 s28, s28, 10
    s_add_u32 s27, s27, s28
    s_add_u32 s28, s27, {8*2048}
    v_and_b32 v5, 63, v0
    v_lshrrev_b32 v6, 3, v5
    v_lshlrev_b32 v6, 11, v6
    v_and_b32 v5, 7, v5
    v_lshl_add_u32 v5, v5, 7, v6
    buffer_load_dword v62, v5, s[56:59], s27 offen
    buffer_load_dword v63, v5, s[56:59], s28 offen
    """)
    for j in range(8):
        A(f"v_mov_b32 v{48+j}, 0")
    A("s_waitcnt vmcnt(10)")
    silu_regs(A, list(range(8, 16)), 64)
    A("s_waitcnt vmcnt(2)")
    for i in range(8):
        for d in range(4):
            w = 16 + 4*i + d
            A(f"""
            v_lshlrev_b32 v5, 16, v{w}
            v_and_b32 v6, 0xffff0000, v{w}
            v_fmac_f32 v{48+2*d}, v5, v{8+i}
            v_fmac_f32 v{49+2*d}, v6, v{8+i}
            """)
    A(f"""
    v_lshlrev_b32 v5, 5, v0
    ds_write_b128 v5, v[48:51]
    ds_write_b128 v5, v[52:55] offset:16
    s_waitcnt lgkmcnt(0)
    s_barrier
    v_and_b32 v6, 63, v0
    v_lshrrev_b32 v7, 6, v0
    v_lshlrev_b32 v5, 11, v7           ; part*8*256
    v_lshl_add_u32 v5, v6, 2, v5
    """)
    for r in range(8):
        A(f"ds_read_b32 v{16+r}, v5 offset:{r*256}")
    A("s_waitcnt lgkmcnt(0)")
    for st in (4, 2, 1):
        for i in range(st):
            A(f"v_add_f32 v{16+i}, v{16+i}, v{16+i+st}")
    A(f"""
    v_lshlrev_b32 v5, 2, v0
    ds_write_b32 v5, v16 offset:16384
    s_waitcnt lgkmcnt(0)
    s_barrier
    v_cmp_gt_u32 vcc, 64, v0
    s_and_saveexec_b64 s[28:29], vcc
    s_cbranch_execz K1_END
    """)
    for r in range(8):
        A(f"ds_read_b32 v{16+r}, v5 offset:{16384 + r*256}")
    A("s_waitcnt lgkmcnt(0)")
    for st in (4, 2, 1):
        for i in range(st):
            A(f"v_add_f32 v{16+i}, v{16+i}, v{16+i+st}")
    A(f"""
    s_lshl_b32 s24, s23, 13            ; ks*2048*4
    s_lshl_b32 s25, s22, 8
    s_add_u32 s24, s24, s25
    buffer_store_dword v16, v5, s[16:19], s24 offen
    s_endpgm
    """)
    A("K1_UVW:\ns_cmp_ge_u32 s2, 248\ns_cbranch_scc1 K1_END")
    A(f"s_load_dwordx2 s[54:55], s[0:1], {KA['w1']}\ns_waitcnt lgkmcnt(0)")
    srd(A, 8, 54, 0, 1024*7168)
    srd(A, 16, 20, WS_MODP, 4 * 4096 * 4)
    srd(A, 24, 20, WS_UVW, 3*3584*4 + 64)
    A(f"""
    s_sub_u32 s31, s2, 192             ; blk
    v_lshrrev_b32 v5, 5, v1
    v_bfe_u32 v6, v1, 2, 2
    v_lshl_add_u32 v5, v5, 2, v6
    v_mul_u32_u24 v3, 7168, v5
    v_bfe_u32 v5, v1, 4, 1
    v_lshl_add_u32 v3, v5, 6, v3
    v_and_b32 v8, 3, v1
    v_lshl_add_u32 v3, v8, 4, v3
    s_lshl_b32 s33, s30, 7
    s_mul_i32 s33, s33, 7168
    s_lshl_b32 s34, s31, 7
    s_add_u32 s33, s33, s34            ; soffset
    s_lshl_b32 s35, s30, 14            ; w*16384
    """)
    A(f"""
    v_and_b32 v9, 31, v1
    v_lshlrev_b32 v8, 4, v9
    v_lshl_add_u32 v8, v4, 12, v8      ; t*16 + h*4096
    s_lshl_b32 s37, s30, 9
    s_add_u32 s37, s37, 8192           ; + 2048*4
    """)
    for p in range(4):
        A(f"s_add_u32 s36, s37, {p*16384}\nbuffer_load_dwordx4 v[{16+4*p}:{19+4*p}], v8, s[16:19], s36 offen")
    for i in range(16):
        A(f"""
        s_add_u32 m0, s35, {i*1024}
        s_add_u32 s36, s33, {i*8*7168}
        buffer_load_dwordx4 v3, s[8:11], s36 offen lds
        """)
    A("s_waitcnt vmcnt(16)")
    for e in range(4):
        A(f"v_add_f32 v{16+e}, v{16+e}, v{20+e}\nv_add_f32 v{24+e}, v{24+e}, v{28+e}")
    for e in range(4):
        A(f"v_add_f32 v{16+e}, v{16+e}, v{24+e}")
    bf16_round_pairs(A, [16, 17, 18, 19], 20)
    A("v_cvt_f32_u32 v20, v4")
    for e in range(4):
        A(f"v_add_f32 v{16+e}, v20, v{16+e}")
    VEC = 131072
    A(f"""
    v_cvt_pk_bf16_f32 v16, v16, v17
    v_cvt_pk_bf16_f32 v17, v18, v19
    v_xor_b32 v20, 1, v4
    v_lshlrev_b32 v20, 8, v20
    v_lshl_add_u32 v20, v9, 3, v20
    s_lshl_b32 s36, s30, 9
    v_add_u32 v20, s36, v20
    v_add_u32 v20, {VEC}, v20
    ds_write_b64 v20, v[16:17]
    v_min_u32 v21, 1, v9
    v_lshlrev_b32 v21, 8, v21
    v_lshl_add_u32 v21, v4, 4, v21
    v_add_u32 v21, s36, v21
    v_add_u32 v21, {VEC}, v21
    s_waitcnt lgkmcnt(0)
    """)
    BV = 64
    for s_ in range(8):
        A(f"ds_read_b128 v[{BV+4*s_}:{BV+4*s_+3}], v21 offset:{s_*32}")
    A(f"""
    v_bfe_u32 v10, v1, 2, 2
    v_lshlrev_b32 v10, 6, v10
    v_bfe_u32 v11, v1, 4, 1
    v_lshl_add_u32 v10, v11, 5, v10
    v_and_b32 v11, 3, v1
    v_lshl_add_u32 v10, v11, 3, v10
    v_lshl_add_u32 v10, v4, 10, v10
    v_add_u32 v10, s35, v10
    v_cmp_eq_u32 vcc, 2, v9
    v_cmp_lt_u32 s[38:39], v9, 2
    v_mov_b32 v22, 0x3f803f80
    v_mov_b32 v23, 0
    s_waitcnt lgkmcnt(0)
    v_cndmask_b32 v22, v23, v22, vcc           ; t==2 ? ones : 0
    """)
    for i in range(32):
        A(f"v_cndmask_b32 v{BV+i}, v22, v{BV+i}, s[38:39]")
    A("s_waitcnt vmcnt(0)")
    AV = 96
    for s_ in range(8):
        for ft in range(2):
            for e in range(2):
                r = AV + (s_*2+ft)*4 + 2*e
                A(f"ds_read_b64_tr_b16 v[{r}:{r+1}], v10 offset:{s_*2048 + e*512 + ft*256}")
    A("s_waitcnt lgkmcnt(0)")
    for s_ in range(8):
        for ft in range(2):
            c = 16 + 16*ft
            cc = "0" if s_ == 0 else f"v[{c}:{c+15}]"
            a_ = AV + (s_*2+ft)*4
            A(f"v_mfma_f32_32x32x16_bf16 v[{c}:{c+15}], v[{a_}:{a_+3}], v[{BV+4*s_}:{BV+4*s_+3}], {cc}")
        cc = "0" if s_ == 0 else "v[48:63]"
        A(f"v_mfma_f32_32x32x16_bf16 v[48:63], v[{BV+4*s_}:{BV+4*s_+3}], v[{BV+4*s_}:{BV+4*s_+3}], {cc}")
    RED2 = 135168
    A(f"""
    s_nop 15
    v_cmp_gt_u32 vcc, 4, v9
    s_and_saveexec_b64 s[28:29], vcc
    v_lshlrev_b32 v10, 8, v9           ; t*256
    v_lshl_add_u32 v10, v4, 4, v10     ; + h*16
    s_lshl_b32 s36, s30, 10
    v_add_u32 v10, s36, v10
    v_add_u32 v10, {RED2}, v10
    """)
    for ft in range(2):
        for jq in range(4):
            c = 16 + 16*ft + 4*jq
            A(f"ds_write_b128 v10, v[{c}:{c+3}] offset:{ft*128 + jq*32}")
    A(f"""
    v_lshlrev_b32 v11, 4, v9
    s_lshl_b32 s36, s30, 6
    v_add_u32 v11, s36, v11
    v_add_u32 v11, {RED2 + 8192}, v11
    v_cmp_eq_u32 vcc, 0, v4
    s_and_b64 exec, exec, vcc
    ds_write_b128 v11, v[48:51]
    s_mov_b64 exec, s[28:29]
    s_waitcnt lgkmcnt(0)
    s_barrier
    s_cmp_eq_u32 s31, 0
    s_cbranch_scc0 K1_NOGRAM
    s_cmp_eq_u32 s30, 7
    s_cbranch_scc0 K1_NOGRAM
    v_cmp_gt_u32 vcc, 16, v1
    s_and_saveexec_b64 s[28:29], vcc
    v_lshlrev_b32 v10, 2, v1
    v_add_u32 v11, {RED2 + 8192}, v10
    """)
    for w_ in range(8):
        A(f"ds_read_b32 v{16+w_}, v11 offset:{w_*64}")
    A("s_waitcnt lgkmcnt(0)")
    for st in (4, 2, 1):
        for i in range(st):
            A(f"v_add_f32 v{16+i}, v{16+i}, v{16+i+st}")
    A(f"""
    s_mov_b32 s36, {3*3584*4}
    buffer_store_dword v16, v10, s[24:27], s36 offen
    s_mov_b64 exec, s[28:29]
    K1_NOGRAM:
    v_cmp_gt_u32 vcc, 192, v0          ; thread = t*64 + f
    s_and_saveexec_b64 s[28:29], vcc
    s_cbranch_execz K1_END
    v_lshlrev_b32 v10, 2, v0
    v_add_u32 v11, {RED2}, v10
    """)
    for w_ in range(8):
        A(f"ds_read_b32 v{16+w_}, v11 offset:{w_*1024}")
    A("s_waitcnt lgkmcnt(0)")
    for st in (4, 2, 1):
        for i in range(st):
            A(f"v_add_f32 v{16+i}, v{16+i}, v{16+i+st}")
    A(f"""
    v_lshrrev_b32 v12, 6, v0           ; t
    v_mul_u32_u24 v12, {3584*4}, v12
    v_and_b32 v13, 63, v0
    v_lshl_add_u32 v12, v13, 2, v12
    s_lshl_b32 s36, s31, 8
    buffer_store_dword v16, v12, s[24:27], s36 offen
    K1_END:
    s_endpgm
    """)
    kernel_end(A, name, 160)
```

```python
from genlib import *
import genlib
import k_gemm
from k_gemm import ACC, AF, BF, OPT, wg_map_64, gemm64_setup
from k_front import silu_regs, bf16_round_pairs
from k_mlp1 import wg_map_224, split_hilo, GELU_C1, GELU_C2

WS_FLAGS = 0x30000
F_H, F_KV, F_MR, F_UV, F_O, F_Z, F_HH, F_M0 = 0x000, 0x100, 0x300, 0x400, 0x800, 0x1000, 0x1800, 0x2000
FLAGS_SFX = "sc0 sc1"
SC = "sc1"
TOK = "s100"
LDS_TOTAL = 160768

_uid = [0]
def uid():
    _uid[0] += 1
    return _uid[0]

def lane_setup(A):
    A("""
    v_and_b32 v1, 63, v0
    v_lshrrev_b32 v5, 6, v0
    v_lshlrev_b32 v2, 4, v1
    v_readfirstlane_b32 s30, v5
    s_nop 3
    s_and_b32 s31, s30, 3
    s_lshr_b32 s32, s30, 2
    """)

def signal(A, off_const, idx_sgpr=None, wave=0):
    u = uid()
    A(f"s_cmp_eq_u32 s30, {wave}\ns_cbranch_scc0 SIG{u}")
    if idx_sgpr is None:
        A(f"s_mov_b32 s36, {off_const}")
    else:
        A(f"s_lshl_b32 s36, {idx_sgpr}, 2\ns_add_u32 s36, s36, {off_const}")
    A(f"""
    v_mov_b32 v250, {TOK}
    v_mov_b32 v251, 0
    v_cmp_eq_u32 vcc, 0, v1
    s_and_saveexec_b64 s[54:55], vcc
    buffer_store_dword v250, v251, s[96:99], s36 offen {FLAGS_SFX}
    s_mov_b64 exec, s[54:55]
    SIG{u}:
    """)

def poll(A, specs, vregs):
    u = uid()
    A(f"s_mov_b32 s57, 0\nPOLL{u}:")
    for (soff, count), vr_ in zip(specs, vregs):
        A(f"""
        v_min_u32 v{vr_}, {count-1}, v1
        v_lshlrev_b32 v{vr_}, 2, v{vr_}
        buffer_load_dword v{vr_}, v{vr_}, s[96:99], {soff} offen {FLAGS_SFX}
        """)
    A("s_waitcnt vmcnt(0)")
    A("s_mov_b64 s[58:59], -1")
    for vr_ in vregs[:len(specs)]:
        A(f"v_cmp_eq_u32 vcc, {TOK}, v{vr_}\ns_and_b64 s[58:59], s[58:59], vcc")
    A(f"""
    s_cmp_eq_u64 s[58:59], -1
    s_cbranch_scc1 POLLD{u}
    s_add_u32 s57, s57, 1
    s_cmp_gt_u32 s57, 400000
    s_cbranch_scc1 POLLD{u}
    s_sleep 1
    s_branch POLL{u}
    POLLD{u}:
    """)

def poll_by(A, wave, specs, vregs, pre=""):
    u = uid()
    A(f"s_cmp_eq_u32 s30, {wave}\ns_cbranch_scc0 PB{u}")
    if pre: A(pre)
    poll(A, specs, vregs)
    A(f"PB{u}:")

def w_issue(slot, ldw):
    return [f"s_add_u32 s37, s33, {8*ldw}\ns_add_u32 m0, s39, {slot*16384}\ns_nop 0\nbuffer_load_dwordx4 v3, s[8:11], s33 offen lds",
            f"s_add_u32 m0, s39, {slot*16384+1024}\ns_nop 0\nbuffer_load_dwordx4 v3, s[8:11], s37 offen lds",
            f"s_add_u32 s33, s33, {64*ldw}"]
def b_issue(slot):
    g = [f"buffer_load_dwordx4 v[{BF+16*slot+4*ks}:{BF+16*slot+4*ks+3}], v2, s[12:15], s34 offen offset:{ks*1024} {SC}" for ks in range(4)]
    return g + ["s_add_u32 s34, s34, 4096"]

def g64_w_prologue(A, ldw):
    for s in range(3):
        for x in w_issue(s, ldw): A(x)
def g64_b_prologue(A):
    for s in range(3):
        for x in b_issue(s): A(x)
    for i in range(32):
        A(f"v_mov_b32 v{ACC+i}, 0")

def g64_stage(A, slot, ldw, perm, wait, issue, pre=None, hook=None):
    es = 1024 if perm else 512
    A(f"s_waitcnt vmcnt({wait})")
    if pre: pre(A)
    A("s_barrier")
    for ks in range(4):
        for ft in range(2):
            for e in range(2):
                r = AF + (ks*2+ft)*4 + 2*e
                A(f"ds_read_b64_tr_b16 v[{r}:{r+1}], v4 offset:{slot*16384 + ks*2048 + e*es + ft*256}")
    if issue:
        w = w_issue((slot+3) % 4, ldw); b = b_issue((slot+3) % 4)
        plan = [[w[0]], [w[1], w[2]], [b[0], b[1]], [b[2], b[3], b[4]]]
    for ks in range(4):
        A(f"s_waitcnt lgkmcnt({12-4*ks})")
        b_ = BF + 16*slot + 4*ks
        for ft in range(2):
            a = AF + (ks*2+ft)*4
            c = ACC + 16*ft
            A(f"v_mfma_f32_32x32x16_bf16 v[{c}:{c+15}], v[{a}:{a+3}], v[{b_}:{b_+3}], v[{c}:{c+15}]")
        if issue:
            for x in plan[ks]: A(x)
        if hook and ks == 0: hook(A)

def g64_loop(A, pfx, NS, ldw, perm, tail_hooks):
    nmain = NS//4 - 1
    first = [8, 10, 12, 12]
    for slot in range(4):
        g64_stage(A, slot, ldw, perm, first[slot], True)
    if nmain > 1:
        A(f"s_mov_b32 s41, {nmain-1}\n{pfx}_LOOP:")
        for slot in range(4):
            g64_stage(A, slot, ldw, perm, 12, True)
        A(f"s_sub_u32 s41, s41, 1\ns_cmp_lg_u32 s41, 0\ns_cbranch_scc1 {pfx}_LOOP")
    Q = [("st", NS-4)]*6 + [("st", NS-3)]*6 + [("st", NS-2)]*6
    def wt(tag):
        idx = max(i for i, t in enumerate(Q) if t == tag)
        return len(Q) - 1 - idx
    for slot in range(4):
        st = NS - 4 + slot
        w = wt(("st", st))
        pre = None
        if slot == 2 and tail_hooks.get("pre2"):
            need = tail_hooks["pre2_need"]
            w = min(w, wt(need))
            pre = tail_hooks["pre2"]
        n, fn = tail_hooks.get(slot, (0, None))
        g64_stage(A, slot, ldw, perm, w, slot == 0, pre=pre, hook=fn)
        if slot == 0:
            Q.append(("st", NS-1)); Q.extend([("h0", 0)]*n); Q.extend([("st", NS-1)]*5)
        else:
            Q.extend([(f"h{slot}", 0)]*n)
    A("s_waitcnt vmcnt(0)\ns_barrier\ns_nop 15")

def g64_exchange(A, pfx, base):
    A(f"""
    s_lshl_b32 s36, s31, 13            ; tokt*8192
    s_add_u32 s36, s36, {base}
    v_add_u32 v5, s36, v2
    s_cmp_eq_u32 s32, 0
    s_cbranch_scc0 {pfx}_X1
    """)
    for jq in range(4):
        A(f"ds_write_b128 v5, v[{32+4*jq}:{35+4*jq}] offset:{4096+jq*1024}")
    A(f"s_branch {pfx}_X2\n{pfx}_X1:")
    for jq in range(4):
        A(f"ds_write_b128 v5, v[{16+4*jq}:{19+4*jq}] offset:{jq*1024}")
    A("s_nop 1")
    for i in range(16):
        A(f"v_mov_b32 v{16+i}, v{32+i}")
    A(f"""
    {pfx}_X2:
    s_waitcnt lgkmcnt(0)
    s_barrier
    s_lshl_b32 s36, s32, 12
    v_add_u32 v5, s36, v5
    """)
    for jq in range(4):
        A(f"ds_read_b128 v[{32+4*jq}:{35+4*jq}], v5 offset:{jq*1024}")
    A("s_waitcnt lgkmcnt(0)")
    for i in range(16):
        A(f"v_add_f32 v{16+i}, v{16+i}, v{32+i}")

def load_ptrs(A, lst):
    for s_, k in lst:
        A(f"s_load_dwordx2 s[{s_}:{s_+1}], s[0:1], {KA[k]}")
    A("s_waitcnt lgkmcnt(0)")
```

```python
from genlib import *
import genlib
from mega import *
from mega_p1 import phase1
from k_gemm import OPT

X1R = 240

def phase2(A):
    SB = [65536, 98304, 0]
    FLAG = 131072
    load_ptrs(A, [(4, 'wq'), (6, 'wo'), (22, 'w1'), (50, 'w2')])
    wg_map_64(A)
    lane_setup(A)
    srd(A, 8, 4, 0, 1024*2048)
    srd(A, 12, 20, WS_H, SZ_ACT)
    srd(A, 16, 20, WS_KV, 0x40000)
    srd(A, 24, 20, WS_O, SZ_ACT)
    gemm64_setup(A, 1024, 2048, 64, perm=False)
    g64_w_prologue(A, 2048)
    A(f"""
    v_mov_b32 v5, {FLAG}
    v_mov_b32 v6, 0
    ds_write_b32 v5, v6
    s_lshl_b32 s42, s30, 12            ; w*4096
    """)
    A(f"""
    s_lshr_b32 s52, s2, 3              ; idx
    s_and_b32 s53, s2, 7               ; xcd
    v_lshrrev_b32 v5, 3, v1
    v_lshlrev_b32 v5, 11, v5
    v_and_b32 v6, 7, v1
    v_lshl_add_u32 v5, v6, 7, v5       ; (l>>3)*2048 + (l&7)*128
    s_lshl_b32 s36, s52, 5
    s_lshl_b32 s37, s30, 3
    s_add_u32 s36, s36, s37
    s_lshl_b32 s36, s36, 11
    s_lshr_b32 s37, s53, 2
    s_lshl_b32 s37, s37, 10
    s_add_u32 s36, s36, s37
    v_add_u32 v5, s36, v5
    v_lshrrev_b32 v6, 4, v1
    v_mul_u32_u24 v6, 7168, v6
    v_and_b32 v7, 15, v1
    v_min_u32 v7, 13, v7
    v_lshl_add_u32 v6, v7, 7, v6
    s_xor_b32 s37, s30, 4              ; u
    s_lshl_b32 s37, s37, 2
    s_lshl_b32 s36, s52, 5
    s_add_u32 s36, s36, s37
    s_mul_i32 s36, s36, 7168
    s_lshr_b32 s37, s53, 1
    s_mul_i32 s37, s37, 1792
    s_add_u32 s36, s36, s37
    v_add_u32 v6, s36, v6              ; W1 offset
    s_mul_i32 s36, s2, 224
    s_sub_u32 s37, s30, 4
    s_and_b32 s37, s37, 3
    s_lshl_b32 s37, s37, 6
    s_add_u32 s36, s36, s37
    v_add_u32 v7, s36, v1
    v_min_u32 v7, 57343, v7
    v_lshlrev_b32 v7, 7, v7            ; W2 offset
    s_cmp_lt_u32 s30, 4
    s_cselect_b32 s60, s6, s22
    s_cselect_b32 s61, s7, s23
    s_cselect_b32 s62, s22, s50
    s_cselect_b32 s63, s23, s51
    s_cselect_b64 vcc, -1, 0
    s_nop 1
    v_cndmask_b32 v168, v6, v5, vcc    ; A: w<4 ? Wo : W1
    v_cndmask_b32 v169, v7, v6, vcc    ; B: w<4 ? W1 : W2
    """)
    poll_by(A, 7, [("s56", 4)], [248], pre=f"s_lshl_b32 s56, s28, 4\ns_add_u32 s56, s56, {F_H}")
    A("s_barrier")
    prof_stamp(A, 2)
    g64_b_prologue(A)
    def kv_issue(lds_const, stage):
        A(f"s_add_u32 m0, s42, {lds_const}\ns_add_u32 s36, s42, {stage*32768}")
        for q in range(4):
            A(f"buffer_load_dwordx4 v2, s[16:19], s36 offen offset:{q*1024} {SC} lds")
    def h0(A):
        A(f"""
        v_lshlrev_b32 v171, 2, v1
        s_mov_b32 s56, {F_KV}
        buffer_load_dword v172, v171, s[96:99], s56 offen {FLAGS_SFX}
        buffer_load_dword v173, v171, s[96:99], s56 offen offset:256 {FLAGS_SFX}
        """)
    def pre2(A):
        u = uid()
        A(f"""
        v_cmp_eq_u32 vcc, {TOK}, v172
        s_mov_b64 s[58:59], vcc
        v_cmp_eq_u32 vcc, {TOK}, v173
        s_and_b64 s[58:59], s[58:59], vcc
        s_cmp_eq_u64 s[58:59], -1
        s_cbranch_scc1 KVOK{u}
        """)
        A(f"s_mov_b32 s56, {F_KV}\ns_mov_b32 s55, {F_KV+256}")
        poll(A, [("s56", 64), ("s55", 64)], [172, 173])
        A(f"KVOK{u}:")
    def h2(A):
        kv_issue(SB[0], 0)
        kv_issue(SB[1], 1)
    g64_loop(A, "P2G", 8, 2048, False, {0: (2, h0), "pre2": pre2, "pre2_need": ("h0", 0), 2: (8, h2)})
    prof_stamp(A, 3)
    g64_exchange(A, "P2G", 0)
    Q, C, S0, S1, P, O, Lr, SEL = 48, 56, 72, 88, 104, 112, 128, 132
    KF = [136, 144]; VF = [152, 160]
    SS = [S0, S1]
    qs = (32 ** -0.5) * LOG2E
    for i in range(16):
        A(f"v_mul_f32 v{16+i}, {f32(qs)}, v{16+i}")
    for m in range(8):
        A(f"v_cvt_pk_bf16_f32 v{Q+m}, v{16+2*m}, v{16+2*m+1}")
    A(f"""
    v_add_u32 v5, {SB[0]}, v2
    ds_read_b128 v[{KF[0]}:{KF[0]+3}], v5
    ds_read_b128 v[{KF[0]+4}:{KF[0]+7}], v5 offset:1024
    v_and_b32 v5, 3, v1
    v_bfe_u32 v6, v1, 2, 1
    v_bfe_u32 v7, v1, 4, 1
    v_xor_b32 v6, v6, v7
    v_or_b32 v5, v5, v6
    v_cmp_eq_u32 vcc, 0, v5
    v_mov_b32 v6, 0x3f803f80
    v_mov_b32 v5, 0
    s_mov_b32 s44, 0                   ; mode
    s_nop 0
    v_cndmask_b32 v{SEL}, v5, v6, vcc
    s_waitcnt lgkmcnt(0)
    v_mfma_f32_32x32x16_bf16 v[{S0}:{S0+15}], v[{KF[0]}:{KF[0]+3}], v[{Q}:{Q+3}], 0
    v_mfma_f32_32x32x16_bf16 v[{S0}:{S0+15}], v[{KF[0]+4}:{KF[0]+7}], v[{Q+4}:{Q+7}], v[{S0}:{S0+15}]
    v_mov_b32 v{SEL+1}, v{SEL}
    v_mov_b32 v{SEL+2}, v{SEL}
    v_mov_b32 v{SEL+3}, v{SEL}
    s_nop 12
    v_max3_f32 v7, v{S0}, v{S0+1}, v{S0+2}
    """)
    for i in range(3, 15, 2):
        A(f"v_max3_f32 v7, v7, v{S0+i}, v{S0+i+1}")
    A(f"""
    v_max_f32 v7, v7, v{S0+15}
    K2_SETC:
    v_mov_b32 v8, v7
    v_add_u32 v5, {SB[0]}, v2
    v_add_u32 v6, {SB[1]}, v2
    v_permlane32_swap_b32 v7, v8
    ds_read_b128 v[{KF[0]}:{KF[0]+3}], v5
    ds_read_b128 v[{KF[0]+4}:{KF[0]+7}], v5 offset:1024
    ds_read_b128 v[{KF[1]}:{KF[1]+3}], v5 offset:4096
    ds_read_b128 v[{KF[1]+4}:{KF[1]+7}], v5 offset:{4096+1024}
    ds_read_b128 v[{VF[0]}:{VF[0]+3}], v5 offset:2048
    ds_read_b128 v[{VF[0]+4}:{VF[0]+7}], v5 offset:3072
    v_max_f32 v7, v7, v8
    v_sub_f32 v7, 0, v7
    """)
    for i in range(16):
        A(f"v_mov_b32 v{C+i}, v7")
    for i in range(16):
        A(f"v_mov_b32 v{O+i}, 0")
    for i in range(4):
        A(f"v_mov_b32 v{Lr+i}, 0")
    for i in range(4):
        A(f"v_mov_b32 v{P+4+i}, 0\nv_mov_b32 v{VF[1]+4+i}, 0")
    A(f"""
    s_waitcnt lgkmcnt(0)
    v_mfma_f32_32x32x16_bf16 v[{S0}:{S0+15}], v[{KF[0]}:{KF[0]+3}], v[{Q}:{Q+3}], v[{C}:{C+15}]
    v_mfma_f32_32x32x16_bf16 v[{S0}:{S0+15}], v[{KF[0]+4}:{KF[0]+7}], v[{Q+4}:{Q+7}], v[{S0}:{S0+15}]
    s_mov_b32 s45, 0                   ; stage i
    s_add_u32 s46, s42, {2*32768}
    s_mov_b32 s47, {SB[2]}
    s_mov_b32 s56, {SB[0]}             ; cur
    s_mov_b32 s57, {SB[1]}             ; next
    s_nop 5
    """)
    prof_stamp(A, 4)
    A(f"""
    K2_LOOP:
    s_cmp_lt_u32 s45, 3
    s_cbranch_scc1 K2_W1
    s_waitcnt vmcnt(0)
    K2_W1:
    s_waitcnt vmcnt(1)
    s_barrier
    s_add_u32 m0, s47, s42
    """)
    P0, P1 = P, P + 4
    def E(S, i): return f"v_exp_f32 v{S+i}, v{S+i}"
    def Cv(S, m): return f"v_cvt_pk_bf16_f32 v{P+m}, v{S+2*m}, v{S+2*m+1}"
    NT = 8
    for u in range(NT):
        S = SS[u % 2]; Sn = SS[(u+1) % 2]
        Kn = KF[(u+1) % 2]; Kl = KF[u % 2]
        V = VF[u % 2]; Vp = VF[(u+1) % 2]
        ka = ("v5", (u+2)*4096) if u+2 < NT else ("v6", (u+2-NT)*4096)
        va = ("v5", (u+1)*4096+2048) if u+1 < NT else ("v6", 2048)
        QKa = f"v_mfma_f32_32x32x16_bf16 v[{Sn}:{Sn+15}], v[{Kn}:{Kn+3}], v[{Q}:{Q+3}], v[{C}:{C+15}]"
        QKb = f"v_mfma_f32_32x32x16_bf16 v[{Sn}:{Sn+15}], v[{Kn+4}:{Kn+7}], v[{Q+4}:{Q+7}], v[{Sn}:{Sn+15}]"
        PVa = f"v_mfma_f32_32x32x16_bf16 v[{O}:{O+15}], v[{V}:{V+3}], v[{P0}:{P0+3}], v[{O}:{O+15}]"
        La = f"v_mfma_f32_16x16x32_bf16 v[{Lr}:{Lr+3}], v[{SEL}:{SEL+3}], v[{P0}:{P0+3}], v[{Lr}:{Lr+3}]"
        PVb_prev = f"v_mfma_f32_32x32x16_bf16 v[{O}:{O+15}], v[{Vp+4}:{Vp+7}], v[{P1}:{P1+3}], v[{O}:{O+15}]"
        Lb_prev = f"v_mfma_f32_16x16x32_bf16 v[{Lr}:{Lr+3}], v[{SEL}:{SEL+3}], v[{P1}:{P1+3}], v[{Lr}:{Lr+3}]"
        rdK = [f"ds_read_b128 v[{Kl}:{Kl+3}], {ka[0]} offset:{ka[1]}", f"ds_read_b128 v[{Kl+4}:{Kl+7}], {ka[0]} offset:{ka[1]+1024}"]
        rdV = [f"ds_read_b128 v[{Vp}:{Vp+3}], {va[0]} offset:{va[1]}", f"ds_read_b128 v[{Vp+4}:{Vp+7}], {va[0]} offset:{va[1]+1024}"]
        vm = []
        if u < 4:
            vm = [f"s_cmp_lt_u32 s45, 6", f"s_cbranch_scc0 K2_ND{u}",
                  f"buffer_load_dwordx4 v2, s[16:19], s46 offen offset:{u*1024} {SC} lds", f"K2_ND{u}:"]
        if u == 5:
            vm = ["s_cmp_eq_u32 s45, 0", "s_cbranch_scc0 K2_PFA", "global_load_dword v170, v168, s[60:61]", "K2_PFA:",
                  "s_cmp_eq_u32 s45, 1", "s_cbranch_scc0 K2_PFB", "global_load_dword v170, v169, s[62:63]", "K2_PFB:"]
        seq = ["s_waitcnt lgkmcnt(0)", QKa, E(S,0), E(S,1), E(S,2),
               PVb_prev, E(S,3), E(S,4), E(S,5),
               Lb_prev, rdK[0], rdK[1], E(S,6), E(S,7), Cv(S,0), Cv(S,1),
               QKb, rdV[0], rdV[1], Cv(S,2), Cv(S,3), E(S,8), E(S,9),
               PVa] + vm + [E(S,10), E(S,11), E(S,12),
               La, E(S,13), E(S,14), E(S,15), Cv(S,4), Cv(S,5), Cv(S,6), Cv(S,7)]
        for x in seq: A(x)
    A(f"""
    v_mov_b32 v5, v6
    v_add_u32 v6, s47, v2
    s_mov_b32 s36, s56
    s_mov_b32 s56, s57
    s_mov_b32 s57, s47
    s_mov_b32 s47, s36
    s_add_u32 s46, s46, 32768
    s_add_u32 s45, s45, 1
    s_cmp_lt_u32 s45, 8
    s_cbranch_scc1 K2_LOOP
    v_mfma_f32_32x32x16_bf16 v[{O}:{O+15}], v[{VF[1]+4}:{VF[1]+7}], v[{P+4}:{P+7}], v[{O}:{O+15}]
    v_mfma_f32_16x16x32_bf16 v[{Lr}:{Lr+3}], v[{SEL}:{SEL+3}], v[{P+4}:{P+7}], v[{Lr}:{Lr+3}]
    s_waitcnt vmcnt(0) lgkmcnt(0)
    s_nop 15
    """)
    prof_stamp(A, 5)
    A(f"""
    v_mov_b32 v7, {f32(2.0**100)}
    v_cmp_nlt_f32 vcc, v{Lr}, v7
    s_mov_b64 s[48:49], vcc
    v_mov_b32 v7, 0x207
    """)
    for i in range(16):
        A(f"v_cmp_class_f32 vcc, v{O+i}, v7\ns_or_b64 s[48:49], s[48:49], vcc")
    A(f"""
    s_cmp_lg_u32 s44, 0
    s_cbranch_scc1 K2_FIN0
    s_cmp_eq_u64 s[48:49], 0
    s_cbranch_scc1 K2_NOFLAG
    v_mov_b32 v7, {FLAG}
    v_mov_b32 v8, 1
    ds_write_b32 v7, v8
    K2_NOFLAG:
    s_waitcnt lgkmcnt(0)
    s_barrier
    v_mov_b32 v7, {FLAG}
    ds_read_b32 v8, v7
    s_waitcnt lgkmcnt(0)
    v_readfirstlane_b32 s36, v8
    s_nop 3
    s_cmp_eq_u32 s36, 0
    s_cbranch_scc1 K2_FINISH
    s_mov_b32 s44, 1
    v_mov_b32 v7, 0xff800000
    s_mov_b32 s45, 0
    v_add_u32 v5, {SB[0]}, v2
    K2_MAXL:
    s_barrier
    s_lshl_b32 s36, s45, 15
    s_add_u32 s36, s36, s42
    s_add_u32 m0, s42, {SB[0]}
    s_nop 0
    """)
    for q in range(4):
        A(f"buffer_load_dwordx4 v2, s[16:19], s36 offen offset:{q*1024} {SC} lds")
    A("s_waitcnt vmcnt(0)\ns_barrier")
    for u in range(8):
        A(f"""
        ds_read_b128 v[{KF[0]}:{KF[0]+3}], v5 offset:{u*4096}
        ds_read_b128 v[{KF[0]+4}:{KF[0]+7}], v5 offset:{u*4096+1024}
        s_waitcnt lgkmcnt(0)
        v_mfma_f32_32x32x16_bf16 v[{S0}:{S0+15}], v[{KF[0]}:{KF[0]+3}], v[{Q}:{Q+3}], 0
        v_mfma_f32_32x32x16_bf16 v[{S0}:{S0+15}], v[{KF[0]+4}:{KF[0]+7}], v[{Q+4}:{Q+7}], v[{S0}:{S0+15}]
        s_nop 15
        """)
        for i in range(0, 16, 2):
            A(f"v_max3_f32 v7, v7, v{S0+i}, v{S0+i+1}")
    A(f"""
    s_add_u32 s45, s45, 1
    s_cmp_lt_u32 s45, 8
    s_cbranch_scc1 K2_MAXL
    s_barrier
    """)
    kv_issue(SB[0], 0)
    kv_issue(SB[1], 1)
    A(f"""
    s_waitcnt vmcnt(0)
    s_barrier
    s_branch K2_SETC
    K2_FIN0:
    s_barrier
    K2_FINISH:
    v_rcp_f32 v7, v{Lr}
    s_nop 0
    """)
    for i in range(16):
        A(f"v_mul_f32 v{O+i}, v{O+i}, v7")
    for m in range(8):
        A(f"v_cvt_pk_bf16_f32 v{P+m}, v{O+2*m}, v{O+2*m+1}")
    A(f"""
    s_lshl_b32 s36, s28, 2
    s_add_u32 s36, s36, s31
    s_lshl_b32 s36, s36, 6
    s_lshl_b32 s37, s29, 2
    s_add_u32 s36, s36, s37
    s_lshl_b32 s37, s32, 1
    s_add_u32 s36, s36, s37
    s_lshl_b32 s36, s36, 10
    buffer_store_dwordx4 v[{P}:{P+3}], v2, s[24:27], s36 offen {SC}
    buffer_store_dwordx4 v[{P+4}:{P+7}], v2, s[24:27], s36 offen offset:1024 {SC}
    """)


def phase3(A):
    TOP = 126464
    VEC = TOP + 32768
    load_ptrs(A, [(4, 'wo'), (6, 'x')])
    srd(A, 8, 4, 0, 1024*2048)
    srd(A, 12, 20, WS_O, SZ_ACT)
    srd(A, 16, 6, 0, 2048*2048)
    srd(A, 44, 20, 0, 0x14000)
    srd(A, 48, 20, WS_Y, SZ_ACT)
    srd(A, 24, 20, WS_ST, 0x100000)
    gemm64_setup(A, 1024, 2048, 64, perm=True)
    g64_w_prologue(A, 2048)
    A("s_waitcnt vmcnt(6)\ns_barrier")
    A(f"s_lshl_b32 s56, s28, 5\ns_add_u32 s56, s56, s29")
    signal(A, F_O, "s56", wave=0)
    poll_by(A, 7, [("s56", 16), ("s55", 64)], [248, 249], pre=f"s_lshl_b32 s56, s28, 7\ns_add_u32 s56, s56, {F_O}\ns_mov_b32 s55, {F_MR}")
    A("s_barrier")
    prof_stamp(A, 6)
    g64_b_prologue(A)
    def h1(A):
      A(f"""
      v_and_b32 v8, 31, v1               ; t
      v_lshrrev_b32 v9, 5, v1            ; h
      v_lshlrev_b32 v10, 11, v8
      v_lshl_add_u32 v10, v9, 4, v10     ; t*2048 + h*16
      s_lshl_b32 s36, s28, 2
      s_add_u32 s36, s36, s31
      s_lshl_b32 s36, s36, 16
      s_lshl_b32 s37, s29, 7
      s_add_u32 s36, s36, s37
      s_lshl_b32 s37, s32, 6
      s_add_u32 s36, s36, s37
      buffer_load_dwordx4 v[144:147], v10, s[16:19], s36 offen
      buffer_load_dwordx4 v[148:151], v10, s[16:19], s36 offen offset:32
      v_lshlrev_b32 v11, 2, v1
      s_lshl_b32 s36, s29, 8             ; j*64*4
      s_add_u32 s37, s36, 0x10000
      buffer_load_dword v152, v11, s[44:47], s37 offen {SC}
      s_add_u32 s37, s37, 8192
      buffer_load_dword v153, v11, s[44:47], s37 offen {SC}
      """)
      for p in range(4):
          A(f"s_add_u32 s37, s36, {p*16384 + 8192}\nbuffer_load_dword v{154+p}, v11, s[44:47], s37 offen")
      for p in range(4):
          A(f"s_add_u32 s37, s36, {p*16384 + 12288}\nbuffer_load_dword v{158+p}, v11, s[44:47], s37 offen")
    g64_loop(A, "P3G", 8, 2048, True, {1: (12, h1)})
    prof_stamp(A, 7)
    A(f"""
    v_add_f32 v152, v152, v153
    v_add_f32 v154, v154, v155
    v_add_f32 v156, v156, v157
    v_add_f32 v158, v158, v159
    v_add_f32 v160, v160, v161
    v_add_f32 v154, v154, v156
    v_add_f32 v158, v158, v160
    v_cvt_pk_bf16_f32 v152, v152, v154
    v_cvt_pk_bf16_f32 v158, v158, v158
    v_and_b32 v154, 0xffff0000, v152       ; sb
    v_lshlrev_b32 v152, 16, v152           ; ga
    v_lshlrev_b32 v158, 16, v158
    v_add_f32 v158, 1.0, v158
    v_cvt_pk_bf16_f32 v158, v158, v158
    v_lshlrev_b32 v158, 16, v158           ; g2
    v_lshlrev_b32 v8, 2, v1
    v_add_u32 v8, {VEC}, v8
    ds_write_b32 v8, v152
    ds_write_b32 v8, v158 offset:256
    v_lshlrev_b32 v8, 1, v1
    v_add_u32 v8, {VEC}, v8
    ds_write_b16_d16_hi v8, v154 offset:512
    ds_write_b16_d16_hi v8, v158 offset:640
    """)
    g64_exchange(A, "P3G", TOP)
    GA, G2, SBP, G2P = 152, 168, 184, 192
    A(f"""
    v_lshrrev_b32 v9, 5, v1
    v_lshlrev_b32 v10, 4, v9
    s_lshl_b32 s36, s32, 7
    s_add_u32 s36, s36, {VEC}
    v_add_u32 v10, s36, v10
    v_lshlrev_b32 v11, 3, v9
    s_lshl_b32 s36, s32, 6
    s_add_u32 s36, s36, {VEC}
    v_add_u32 v11, s36, v11
    """)
    for jq in range(4):
        A(f"ds_read_b128 v[{GA+4*jq}:{GA+4*jq+3}], v10 offset:{jq*32}")
    for jq in range(4):
        A(f"ds_read_b128 v[{G2+4*jq}:{G2+4*jq+3}], v10 offset:{256 + jq*32}")
    for jq in range(4):
        A(f"ds_read_b64 v[{SBP+2*jq}:{SBP+2*jq+1}], v11 offset:{512 + jq*16}")
        A(f"ds_read_b64 v[{G2P+2*jq}:{G2P+2*jq+1}], v11 offset:{640 + jq*16}")
    A("v_permlane32_swap_b32 v144, v146\nv_permlane32_swap_b32 v145, v147\nv_permlane32_swap_b32 v148, v150\nv_permlane32_swap_b32 v149, v151")
    A(f"""
    s_lshl_b32 s36, s28, 2
    s_add_u32 s36, s36, s31
    s_lshl_b32 s36, s36, 6
    s_lshl_b32 s37, s29, 2
    s_add_u32 s36, s36, s37
    s_lshl_b32 s37, s32, 1
    s_add_u32 s36, s36, s37
    s_lshl_b32 s36, s36, 10
    v_mov_b32 v70, 0x3f803f80
    s_waitcnt lgkmcnt(8)
    """)
    for jq in range(4):
        for d in range(2):
            x = 144 + 2*jq + d
            r = 16 + 4*jq + 2*d
            t = 72 + 2*((2*jq+d) % 4)
            A(f"""
            v_lshlrev_b32 v{t}, 16, v{x}
            v_and_b32 v{t+1}, 0xffff0000, v{x}
            v_fma_f32 v{r}, v{r}, v{GA+4*jq+2*d}, v{t}
            v_fma_f32 v{r+1}, v{r+1}, v{GA+4*jq+2*d+1}, v{t+1}
            """)
    A("s_waitcnt lgkmcnt(0)")
    Z = 48
    for m in range(8):
        A(f"v_mul_f32 v{Z+2*m}, v{16+2*m}, v{G2+2*m}\nv_mul_f32 v{Z+2*m+1}, v{16+2*m+1}, v{G2+2*m+1}")
        A(f"v_cvt_pk_bf16_f32 v{X1R+m}, v{16+2*m}, v{16+2*m+1}")
    for m in range(8):
        A(f"v_cvt_pk_bf16_f32 v{40+m}, v{Z+2*m}, v{Z+2*m+1}")
    A(f"""
    buffer_store_dwordx4 v[40:43], v2, s[48:51], s36 offen {SC}
    buffer_store_dwordx4 v[44:47], v2, s[48:51], s36 offen offset:1024 {SC}
    """)
    S = 64
    for m in range(8):
        c = (lambda k: "0" if m == 0 else f"v{S+k}")
        A(f"""
        v_dot2_f32_bf16 v{S}, v{X1R+m}, v70, {c(0)}
        v_dot2_f32_bf16 v{S+1}, v{X1R+m}, v{X1R+m}, {c(1)}
        v_dot2_f32_bf16 v{S+2}, v{40+m}, v70, {c(2)}
        v_dot2_f32_bf16 v{S+3}, v{40+m}, v{G2P+m}, {c(3)}
        v_dot2_f32_bf16 v{S+4}, v{40+m}, v{40+m}, {c(4)}
        v_dot2_f32_bf16 v{S+5}, v{40+m}, v{SBP+m}, {c(5)}
        """)
    A("s_nop 2")
    for k in range(6):
        A(f"v_mov_b32 v{72+k}, v{S+k}")
    A("s_nop 1")
    for k in range(6):
        A(f"v_permlane32_swap_b32 v{S+k}, v{72+k}")
    A("s_nop 1")
    for k in range(6):
        A(f"v_add_f32 v{S+k}, v{S+k}, v{72+k}")
    A(f"""
    v_and_b32 v8, 31, v1
    v_lshlrev_b32 v8, 5, v8
    s_lshl_b32 s37, s31, 13
    s_add_u32 s37, s37, {TOP + 4096}
    v_add_u32 v8, s37, v8
    v_mov_b32 v{S+6}, 0
    v_mov_b32 v{S+7}, 0
    s_cmp_eq_u32 s32, 1
    s_cbranch_scc0 P3_ST0
    ds_write_b128 v8, v[{S}:{S+3}]
    ds_write_b128 v8, v[{S+4}:{S+7}] offset:16
    s_waitcnt lgkmcnt(0)
    s_barrier
    s_branch P3_STE
    P3_ST0:
    s_barrier
    ds_read_b128 v[72:75], v8
    ds_read_b128 v[76:79], v8 offset:16
    s_waitcnt lgkmcnt(0)
    """)
    for k in range(6):
        A(f"v_add_f32 v{S+k}, v{S+k}, v{72+k}")
    A(f"""
    v_cmp_lt_u32 vcc, 31, v1
    s_nop 1
    v_cndmask_b32 v{S}, v{S}, v{S+4}, vcc
    v_cndmask_b32 v{S+1}, v{S+1}, v{S+5}, vcc
    v_cndmask_b32 v{S+2}, v{S+2}, v{S+6}, vcc
    v_cndmask_b32 v{S+3}, v{S+3}, v{S+7}, vcc
    s_lshl_b32 s36, s28, 2
    s_add_u32 s36, s36, s31
    s_lshl_b32 s36, s36, 3
    s_lshr_b32 s37, s29, 1
    s_add_u32 s36, s36, s37
    s_lshl_b32 s36, s36, 11
    s_and_b32 s37, s29, 1
    s_lshl_b32 s37, s37, 9
    s_add_u32 s36, s36, s37
    v_and_b32 v8, 31, v1
    v_lshlrev_b32 v8, 4, v8
    v_lshrrev_b32 v9, 5, v1
    v_lshl_add_u32 v8, v9, 10, v8
    buffer_store_dwordx4 v[{S}:{S+3}], v8, s[24:27], s36 offen {SC}
    P3_STE:
    s_lshl_b32 s70, s28, 5
    s_add_u32 s70, s70, s29
    """)


def phase4(A):
    SLOT = 28672
    ACC, AF, BF = 16, 128, 184
    AX = 4*SLOT; BX = AX + 7168; AL = BX + 4096
    load_ptrs(A, [(4, 'w1'), (6, 'b1')])
    wg_map_224(A)
    srd(A, 8, 4, 0, 1024*7168)
    srd(A, 12, 20, WS_Y, SZ_ACT)
    srd(A, 16, 6, 0, 7168)
    srd(A, 24, 20, WS_HH, SZ_HH)
    A("s_cmp_ge_u32 s30, 4\ns_cbranch_scc1 P4_LOADER")
    A("s_waitcnt vmcnt(0)\ns_barrier")
    signal(A, F_Z, "s70", wave=0)
    A(f"""
    v_lshrrev_b32 v9, 5, v1            ; h
    s_lshl_b32 s34, s28, 2
    s_add_u32 s34, s34, s30
    s_lshl_b32 s34, s34, 16
    v_bfe_u32 v6, v1, 2, 2
    v_lshlrev_b32 v4, 6, v6
    v_bfe_u32 v5, v1, 4, 1
    v_lshl_add_u32 v4, v5, 5, v4
    v_and_b32 v7, 3, v1
    v_lshl_add_u32 v4, v7, 3, v4
    v_mul_u32_u24 v5, 1792, v9
    v_add_u32 v4, v4, v5
    v_add_u32 v3, {2*SLOT}, v4
    """)
    for i in range(112):
        A(f"v_mov_b32 v{ACC+i}, 0")
    A("s_barrier")
    prof_stamp(A, 8)
    for n in range(8):
        if n == 4:
            A("s_add_u32 s34, s34, 4096")
        A(f"buffer_load_dwordx4 v[{BF+4*n}:{BF+4*n+3}], v2, s[12:15], s34 offen offset:{(n & 3)*1024} {SC}")
    A("s_add_u32 s34, s34, 4096")
    def areads(slot, ks, buf):
        va = "v4" if slot < 2 else "v3"
        base = (slot & 1)*SLOT + ks*7168
        out = []
        for ft in range(7):
            for e in range(2):
                r = AF + 28*buf + 4*ft + 2*e
                out.append(f"ds_read_b64_tr_b16 v[{r}:{r+1}], {va} offset:{base + e*3584 + ft*256}")
        return out
    for x in areads(0, 0, 0):
        A(x)
    A("s_mov_b32 s41, 4\nP4_LOOP:")
    n = 0
    for slot in range(4):
        A("s_barrier")
        for ks in range(4):
            buf = n % 2
            nslot, nks = (slot, ks+1) if ks < 3 else ((slot+1) % 4, 0)
            rd = areads(nslot, nks, 1-buf)
            b = BF + 4*(n % 8)
            A("s_waitcnt vmcnt(7) lgkmcnt(0)")
            for ft in range(7):
                a = AF + 28*buf + 4*ft
                c = ACC + 16*ft
                A(f"v_mfma_f32_32x32x16_bf16 v[{c}:{c+15}], v[{a}:{a+3}], v[{b}:{b+3}], v[{c}:{c+15}]")
                if ft < 5:
                    k = 3 if ft < 4 else 2
                    for x in rd[:k]:
                        A(x)
                    rd = rd[k:]
            A(f"buffer_load_dwordx4 v[{b}:{b+3}], v2, s[12:15], s34 offen offset:{(n & 3)*1024} {SC}")
            if n % 4 == 3:
                A("s_add_u32 s34, s34, 4096")
            n += 1
    A(f"""
    s_sub_u32 s41, s41, 1
    s_cmp_lg_u32 s41, 0
    s_cbranch_scc1 P4_LOOP
    s_waitcnt lgkmcnt(0)
    v_add_u32 v10, {AX}, v2
    """)
    for ft in range(7):
        A(f"ds_read_b128 v[{AF+4*ft}:{AF+4*ft+3}], v10 offset:{ft*1024}")
    A(f"""
    s_lshl_b32 s36, s30, 10
    v_add_u32 v11, s36, v10
    ds_read_b128 v[{AF+28}:{AF+31}], v11 offset:{BX-AX}
    v_and_b32 v11, 31, v1
    v_lshlrev_b32 v11, 2, v11
    s_lshl_b32 s36, s30, 7
    v_add_u32 v11, s36, v11
    v_add_u32 v11, {AL}, v11
    ds_read_b32 v12, v11
    s_waitcnt lgkmcnt(0)
    s_barrier
    """)
    for ft in range(7):
        c = ACC + 16*ft
        A(f"v_mfma_f32_32x32x16_bf16 v[{c}:{c+15}], v[{AF+4*ft}:{AF+4*ft+3}], v[{AF+28}:{AF+31}], v[{c}:{c+15}]")
    A("s_waitcnt vmcnt(0)\ns_nop 15")
    prof_stamp(A, 9)
    A(f"s_mov_b32 s42, {f32(GELU_C1)}\ns_mov_b32 s43, {f32(GELU_C2)}\nv_mov_b32 v8, s42")
    A(f"""
    s_lshl_b32 s36, s28, 2
    s_add_u32 s36, s36, s30
    s_mul_i32 s36, s36, 224
    s_mul_i32 s37, s29, 14
    s_add_u32 s36, s36, s37
    s_lshl_b32 s36, s36, 10
    """)
    for ft in range(7):
        c = ACC + 16*ft
        T = 160; E = 176
        for i in range(16):
            A(f"v_mul_f32 v{c+i}, v{c+i}, v12")
        for i in range(16):
            A(f"v_mul_f32 v{T+i}, v{c+i}, v{c+i}")
        for i in range(16):
            A(f"v_fma_f32 v{T+i}, v{T+i}, s43, v8")
        for i in range(16):
            A(f"v_mul_f32 v{T+i}, v{T+i}, v{c+i}")
        for i in range(16):
            A(f"v_exp_f32 v{T+i}, v{T+i}")
        for i in range(16):
            A(f"v_add_f32 v{T+i}, 1.0, v{T+i}")
        for i in range(16):
            A(f"v_rcp_f32 v{T+i}, v{T+i}")
        for i in range(16):
            A(f"v_mul_f32 v{T+i}, v{T+i}, v{c+i}")
        P = E + 8*(ft % 2)
        for m in range(8):
            A(f"v_cvt_pk_bf16_f32 v{P+m}, v{T+2*m}, v{T+2*m+1}")
        for e in range(2):
            kidx = 2*ft + e
            if kidx % 4 == 0 and kidx > 0:
                A("s_add_u32 s36, s36, 4096")
            A(f"buffer_store_dwordx4 v[{P+4*e}:{P+4*e+3}], v2, s[24:27], s36 offen offset:{(kidx & 3)*1024} {SC}")
    A(f"""
    s_lshl_b32 s70, s28, 5
    s_add_u32 s70, s70, s29
    s_branch P4_DONE
    """)
    A(f"""
    P4_LOADER:
    s_sub_u32 s31, s30, 4              ; lw
    s_mul_i32 s36, s31, 28
    v_lshrrev_b32 v5, 4, v1            ; l>>4
    v_add_u32 v5, s36, v5
    v_bfe_u32 v6, v1, 2, 2             ; r
    v_and_b32 v7, 3, v1                ; c
    """)
    for u in range(7):
        A(f"""
        v_add_u32 v8, {4*u}, v5
        v_mul_u32_u24 v9, 9363, v8
        v_lshrrev_b32 v9, 16, v9           ; q
        v_mul_u32_u24 v10, 7, v9
        v_sub_u32 v10, v8, v10             ; ft
        v_lshl_add_u32 v9, v9, 2, v6       ; row = 4q + r
        v_mul_u32_u24 v9, 7168, v9
        v_lshl_add_u32 v9, v10, 6, v9
        v_lshl_add_u32 v{16+u}, v7, 4, v9
        """)
    A(f"""
    s_mul_i32 s33, s29, 448
    s_mul_i32 s39, s31, 7168
    """)
    Q = []
    def issue_stage(st):
        for u in range(7):
            A(f"s_add_u32 m0, s39, {(st % 4)*SLOT + u*1024}\ns_nop 0\nbuffer_load_dwordx4 v{16+u}, s[8:11], s33 offen lds")
        A(f"s_add_u32 s33, s33, {64*7168}")
        Q.extend([("W", st)]*7)
    def wait_tag(tag):
        idx = max(i for i, t in enumerate(Q) if t == tag)
        return len(Q) - 1 - idx
    issue_stage(0)
    issue_stage(1)
    A("s_waitcnt vmcnt(14)\ns_barrier")
    poll_by(A, 7, [("s56", 16), ("s55", 56)], [248, 249], pre=f"s_lshl_b32 s56, s28, 7\ns_add_u32 s56, s56, {F_Z}\ns_mov_b32 s55, {F_UV}")
    A(f"s_waitcnt vmcnt(7)\ns_barrier")
    issue_stage(2)
    srd(A, 44, 20, WS_ST, 0x100000)
    srd(A, 48, 20, WS_UVW, 3*3584*4 + 64)
    ST = 32; UV = 96
    A(f"""
    s_lshl_b32 s52, s28, 2
    s_add_u32 s52, s52, s31
    s_lshl_b32 s52, s52, 14            ; tile*16384
    v_and_b32 v8, 31, v1               ; f
    s_mul_i32 s36, s29, 224
    s_lshl_b32 s37, s31, 5
    s_add_u32 s36, s36, s37            ; F0 = j*224 + lw*32
    v_add_u32 v8, s36, v8              ; F
    v_lshlrev_b32 v14, 2, v8           ; F*4
    v_lshlrev_b32 v15, 1, v8           ; F*2
    v_mov_b32 v11, 0
    s_mov_b32 s53, {3584*4}
    s_mov_b32 s54, {2*3584*4}
    s_mov_b32 s55, {3*3584*4}
    """)
    side = []
    for qp in range(16):
        pre = f"s_add_u32 s52, s52, 4096\n" if (qp and qp % 4 == 0) else ""
        side.append(pre + f"buffer_load_dwordx4 v[{ST+4*qp}:{ST+4*qp+3}], v2, s[44:47], s52 offen offset:{(qp & 3)*1024} {SC}")
    side += [f"buffer_load_dword v{UV}, v14, s[48:51], 0 offen {SC}",
             f"buffer_load_dword v{UV+1}, v14, s[48:51], s53 offen {SC}",
             f"buffer_load_dword v{UV+2}, v14, s[48:51], s54 offen {SC}",
             f"buffer_load_ushort v{UV+3}, v15, s[16:19], 0 offen",
             f"buffer_load_dword v{UV+4}, v14, s[48:51], 0 offen offset:512 {SC}",
             f"buffer_load_dword v{UV+5}, v14, s[48:51], s53 offen offset:512 {SC}",
             f"buffer_load_dword v{UV+6}, v14, s[48:51], s54 offen offset:512 {SC}",
             f"buffer_load_ushort v{UV+7}, v15, s[16:19], 0 offen offset:256",
             f"buffer_load_dwordx4 v[104:107], v11, s[48:51], s55 offen {SC}",
             f"buffer_load_dwordx4 v[108:111], v11, s[48:51], s55 offen offset:16 {SC}"]
    def liter(i, nside=0):
        A(f"s_waitcnt vmcnt({wait_tag(('W', i+1))})\ns_barrier")
        if i + 3 < 16: issue_stage(i+3)
        for k in range(nside):
            if side:
                A(side.pop(0)); Q.append(("S", 0))
    for i in range(0, 10):
        liter(i, 2 if i < 8 else 5)
    assert not side
    liter(10)
    A(f"s_waitcnt vmcnt({wait_tag(('S', 0))})")
    for q in range(1, 8):
        for e in range(4):
            A(f"v_add_f32 v{ST+e}, v{ST+e}, v{ST+8*q+e}")
        for e in range(2):
            A(f"v_add_f32 v{ST+4+e}, v{ST+4+e}, v{ST+8*q+4+e}")
    for k in range(6):
        A(f"v_mov_b32 v{112+k}, v{ST+k}")
    A("s_nop 1")
    for k in range(6):
        A(f"v_permlane32_swap_b32 v{ST+k}, v{112+k}")
    A("s_nop 1")
    for k in range(6):
        A(f"v_add_f32 v{ST+k}, v{ST+k}, v{112+k}")
    S1, S2, S3, S4, S5, S6 = [ST+k for k in range(6)]
    G2c, GS, G1c, SB2, SB1 = 104, 105, 106, 109, 110
    iD = f32(1/1024)
    A(f"""
    v_mul_f32 v112, {iD}, v{S1}            ; mu1
    v_mul_f32 v113, {iD}, v{S2}
    v_fma_f32 v113, -v112, v112, v113      ; var1
    v_add_f32 v113, {f32(1e-5)}, v113
    v_rsq_f32 v114, v113                   ; r1
    s_nop 0
    v_mul_f32 v115, v113, v114             ; 1/r1
    v_fma_f32 v116, -v112, v{G1c}, v{S3}
    v_fma_f32 v116, v116, v114, v{SB1}
    v_mul_f32 v116, {iD}, v116             ; m2
    v_mul_f32 v117, v112, v{G2c}
    v_fma_f32 v117, -2.0, v{S4}, v117
    v_fma_f32 v117, v117, v112, v{S5}
    v_mul_f32 v117, v117, v114
    v_fma_f32 v118, -v112, v{GS}, v{S6}
    v_fma_f32 v117, 2.0, v118, v117
    v_fma_f32 v117, v117, v114, v{SB2}
    v_mul_f32 v117, {iD}, v117             ; E2
    v_fma_f32 v117, -v116, v116, v117      ; var2
    v_add_f32 v117, {f32(1e-5)}, v117
    v_rsq_f32 v118, v117                   ; r2
    s_nop 0
    v_mul_f32 v119, v117, v118             ; 1/r2
    v_mul_f32 v120, v114, v118             ; alpha
    v_sub_f32 v121, 0, v112                ; c1 = -mu1
    v_mul_f32 v122, v116, v115
    v_sub_f32 v122, 0, v122                ; c3 = -m2/r1
    v_mul_f32 v123, v115, v119             ; c4 = 1/alpha
    """)
    split_hilo(A, 121, 124, 125, 8)
    split_hilo(A, 115, 126, 127, 8)
    split_hilo(A, 122, 128, 129, 8)
    split_hilo(A, 123, 130, 131, 8)
    def pk(dst, lo, hi):
        if lo is None and hi is None: A(f"v_mov_b32 v{dst}, 0")
        elif hi is None: A(f"v_lshrrev_b32 v{dst}, 16, v{lo}")
        else: A(f"v_lshrrev_b32 v{dst}, 16, v{lo}\nv_or_b32 v{dst}, v{dst}, v{hi}")
    pk(132, 124, 124); pk(133, 125, 126); pk(134, 126, 127); pk(135, 128, 128)
    pk(136, 129, 130); pk(137, 131, None); pk(138, None, None); pk(139, None, None)
    A(f"""
    v_cmp_lt_u32 vcc, 31, v1
    s_nop 1
    v_cndmask_b32 v132, v132, v136, vcc
    v_cndmask_b32 v133, v133, v137, vcc
    v_cndmask_b32 v134, v134, v138, vcc
    v_cndmask_b32 v135, v135, v139, vcc
    s_lshl_b32 s36, s31, 10
    v_add_u32 v10, s36, v2
    v_add_u32 v10, {BX}, v10
    ds_write_b128 v10, v[132:135]
    v_and_b32 v10, 31, v1
    v_lshlrev_b32 v10, 2, v10
    s_lshl_b32 s36, s31, 7
    v_add_u32 v10, s36, v10
    v_add_u32 v10, {AL}, v10
    ds_write_b32 v10, v120
    s_waitcnt lgkmcnt(0)
    """)
    liter(11)
    for tsel in range(2):
        u_, v_, w_, b_ = UV+4*tsel, UV+4*tsel+1, UV+4*tsel+2, UV+4*tsel+3
        split_hilo(A, u_, 124, 125, 8)
        split_hilo(A, v_, 126, 127, 8)
        split_hilo(A, w_, 128, 129, 8)
        A(f"v_lshlrev_b32 v130, 16, v{b_}")
        pk(132, 124, 125); pk(133, 124, 126); pk(134, 127, 126); pk(135, 128, 129)
        pk(136, 128, 130); pk(137, 130, None); pk(138, None, None); pk(139, None, None)
        A(f"""
        v_cndmask_b32 v132, v132, v136, vcc
        v_cndmask_b32 v133, v133, v137, vcc
        v_cndmask_b32 v134, v134, v138, vcc
        v_cndmask_b32 v135, v135, v139, vcc
        s_add_u32 s36, s31, {4*tsel}
        s_cmp_lt_u32 s36, 7
        s_cbranch_scc0 P4_NOAX{tsel}
        s_lshl_b32 s36, s36, 10
        v_add_u32 v10, s36, v2
        v_add_u32 v10, {AX}, v10
        ds_write_b128 v10, v[132:135]
        P4_NOAX{tsel}:
        """)
    A("s_waitcnt lgkmcnt(0)")
    for i in range(12, 15):
        liter(i)
    A("s_barrier")
    A("s_barrier")
    load_ptrs(A, [(4, 'w2')])
    wg_map_64(A)
    srd(A, 8, 4, 0, 3584*2048)
    A(f"""
    v_lshrrev_b32 v5, 5, v1
    v_bfe_u32 v6, v1, 2, 2
    v_lshl_add_u32 v5, v5, 2, v6
    v_mul_u32_u24 v3, 2048, v5
    v_bfe_u32 v5, v1, 4, 1
    v_lshl_add_u32 v3, v5, 6, v3
    v_and_b32 v7, 3, v1
    v_lshl_add_u32 v3, v7, 4, v3
    """)
    for kh in range(2):
        A(f"""
        s_lshl_b32 s36, s31, 4
        s_add_u32 s33, s36, {kh*1792}
        s_mul_i32 s33, s33, 2048
        s_lshl_b32 s36, s29, 7
        s_add_u32 s33, s33, s36
        s_lshl_b32 s39, s31, 11
        s_add_u32 s39, s39, {kh*8192}
        """)
        g64_w_prologue(A, 2048)
    A("P4_DONE:")


def phase5(A):
    load_ptrs(A, [(4, 'w2'), (6, 'b2'), (22, 'out')])
    A("s_waitcnt vmcnt(0)\ns_barrier")
    signal(A, F_HH, "s70", wave=0)
    wg_map_64(A)
    lane_setup(A)
    srd(A, 8, 4, 0, 3584*2048)
    srd(A, 12, 20, WS_HH, SZ_HH)
    srd(A, 16, 6, 0, 2048)
    srd(A, 24, 22, 0, 2048*2048)
    srd(A, 44, 20, 0, 0x14000)
    gemm64_setup(A, 3584, 2048, 224, perm=True)
    A(f"s_add_u32 s33, s33, {3*64*2048}")
    poll_by(A, 7, [("s56", 16)], [248], pre=f"s_lshl_b32 s56, s28, 7\ns_add_u32 s56, s56, {F_HH}")
    A("s_barrier")
    prof_stamp(A, 10)
    g64_b_prologue(A)
    def h1(A):
      A(f"""
      v_lshlrev_b32 v11, 2, v1
      s_lshl_b32 s36, s29, 8
      s_add_u32 s36, s36, {0x10000 + 4096}
      buffer_load_dword v152, v11, s[44:47], s36 offen {SC}
      s_add_u32 s36, s36, 8192
      buffer_load_dword v153, v11, s[44:47], s36 offen {SC}
      v_lshlrev_b32 v11, 1, v1
      s_lshl_b32 s36, s29, 7
      buffer_load_ushort v154, v11, s[16:19], s36 offen
      """)
    g64_loop(A, "P5G", 28, 2048, True, {1: (3, h1)})
    A(f"""
    v_add_f32 v152, v152, v153
    v_cvt_pk_bf16_f32 v152, v152, v152
    v_lshlrev_b32 v152, 16, v152
    v_lshlrev_b32 v154, 16, v154
    v_lshlrev_b32 v155, 2, v1
    ds_write_b32 v155, v152 offset:32768
    ds_write_b32 v155, v154 offset:33024
    """)
    g64_exchange(A, "P5G", 0)
    A(f"""
    v_lshrrev_b32 v9, 5, v1
    v_lshlrev_b32 v9, 4, v9
    s_lshl_b32 s36, s32, 7
    v_add_u32 v9, s36, v9
    """)
    for jq in range(4):
        A(f"ds_read_b128 v[{152+4*jq}:{155+4*jq}], v9 offset:{32768 + jq*32}")
        A(f"ds_read_b128 v[{168+4*jq}:{171+4*jq}], v9 offset:{33024 + jq*32}")
    A("s_waitcnt lgkmcnt(0)")
    for jq in range(4):
        for d in range(2):
            x = X1R + 2*jq + d
            r = 16 + 4*jq + 2*d
            A(f"""
            v_add_f32 v{r}, v{r}, v{168+4*jq+2*d}
            v_add_f32 v{r+1}, v{r+1}, v{168+4*jq+2*d+1}
            v_lshlrev_b32 v8, 16, v{x}
            v_and_b32 v9, 0xffff0000, v{x}
            v_fma_f32 v{r}, v{r}, v{152+4*jq+2*d}, v8
            v_fma_f32 v{r+1}, v{r+1}, v{152+4*jq+2*d+1}, v9
            """)
    for m in range(8):
        A(f"v_cvt_pk_bf16_f32 v{32+m}, v{16+2*m}, v{16+2*m+1}")
    A(f"""
    s_nop 1
    v_permlane32_swap_b32 v32, v34
    v_permlane32_swap_b32 v33, v35
    v_permlane32_swap_b32 v36, v38
    v_permlane32_swap_b32 v37, v39
    v_and_b32 v8, 31, v1
    v_lshrrev_b32 v9, 5, v1
    v_lshlrev_b32 v10, 11, v8
    v_lshl_add_u32 v10, v9, 4, v10      ; t*2048 + h*16
    s_lshl_b32 s36, s28, 2
    s_add_u32 s36, s36, s31
    s_lshl_b32 s36, s36, 16
    s_lshl_b32 s37, s29, 7
    s_add_u32 s36, s36, s37
    s_lshl_b32 s37, s32, 6
    s_add_u32 s36, s36, s37
    buffer_store_dwordx4 v[32:35], v10, s[24:27], s36 offen
    buffer_store_dwordx4 v[36:39], v10, s[24:27], s36 offen offset:32
    """)


def gen_mega(A):
    name = "mega_kernel"
    kernel_begin(A, name)
    prof_stamp(A, 0)
    A(f"""
    s_cmp_ge_u32 s2, 256
    s_cbranch_scc1 MEGA_END
    s_load_dwordx2 s[20:21], s[0:1], {KA['ws']}
    """)
    lane_setup(A)
    A("s_waitcnt lgkmcnt(0)")
    prof_init(A, 1)
    srd(A, 96, 20, WS_FLAGS, 0x2400)
    A(f"s_mov_b32 {TOK}, 1")
    phase1(A)
    prof_stamp(A, 1)
    phase2(A)
    phase3(A)
    phase4(A)
    phase5(A)
    if genlib.PROF: A("s_waitcnt vmcnt(0)")
    prof_stamp(A, 11)
    prof_dump(A, 12)
    A("MEGA_END:\ns_endpgm")
    kernel_end(A, name, 256)
```

```python
from genlib import *
import genlib
from mega import *
from k_front import silu_regs, bf16_round_pairs

def phase1(A):
    XR, WR, GR, RED = 0, 65536, 131072, 139264
    A(f"""
    s_load_dwordx2 s[4:5], s[0:1], {KA['x']}
    s_load_dwordx4 s[40:43], s[0:1], {KA['wk']}
    s_load_dwordx4 s[48:51], s[0:1], {KA['c']}      ; c, wmod
    s_load_dwordx2 s[52:53], s[0:1], {KA['wq']}
    v_lshlrev_b32 v7, 4, v1        ; l*16
    v_and_b32 v3, 31, v0           ; t
    v_bfe_u32 v4, v0, 5, 1         ; h
    s_waitcnt lgkmcnt(0)
    """)
    A("s_cmp_ge_u32 s2, 128\ns_cbranch_scc1 K1_REST")
    srd(A, 16, 20, WS_MODP, 4 * 4096 * 4)
    A("s_lshr_b32 s31, s2, 1\ns_and_b32 s32, s2, 1")
    srd(A, 8, 4, 0, 2048 * 2048)
    A("""
    s_cmp_eq_u32 s32, 0
    s_cselect_b32 s12, s40, s42
    s_cselect_b32 s13, s41, s43
    s_mov_b32 s14, 65536
    s_mov_b32 s15, 0x00020000
    """)
    srd(A, 24, 20, WS_H, SZ_ACT)
    A("s_cmp_eq_u32 s32, 0\ns_cselect_b32 s26, s26, 0")
    srd(A, 44, 20, WS_KV, 0x40000)
    A(f"""
    v_lshrrev_b32 v5, 4, v1            ; j>>4
    v_and_b32 v6, 15, v1               ; p
    v_xor_b32 v6, v6, v5
    v_lshlrev_b32 v6, 4, v6
    v_lshl_add_u32 v5, v5, 11, v6      ; v_a
    s_lshl_b32 s33, s31, 16
    s_lshl_b32 s34, s30, 8
    s_add_u32 s33, s33, s34
    s_lshl_b32 s35, s30, 13            ; w*8192
    """)
    for i in range(8):
        A(f"""
        v_xor_b32 v6, {((4*i) & 15) << 4}, v5
        s_add_u32 m0, s35, {XR + i*1024}
        s_add_u32 s36, s33, {i*8192}
        buffer_load_dwordx4 v6, s[8:11], s36 offen lds
        """)
    A(f"""
    v_lshlrev_b32 v8, 4, v3
    v_lshl_add_u32 v8, v4, 12, v8      ; t*16 + h*4096
    s_lshl_b32 s37, s30, 9             ; w*512
    """)
    for p in range(4):
        A(f"s_add_u32 s36, s37, {p*16384}\nbuffer_load_dwordx4 v[{16+4*p}:{19+4*p}], v8, s[16:19], s36 offen")
    XV = 64
    A(f"""
    v_and_b32 v9, 15, v3
    v_xor_b32 v9, v9, v4
    v_lshlrev_b32 v9, 4, v9
    v_lshl_add_u32 v9, v3, 8, v9       ; t*256 + ((h ^ (t&15))*16)
    v_add_u32 v9, s35, v9
    v_mov_b32 v12, 0
    v_mov_b32 v13, 0
    v_mov_b32 v14, 0x3f803f80
    v_mov_b32 v11, 0
    v_mov_b32 v15, 0
    s_waitcnt vmcnt(4)
    """)
    for s_ in range(8):
        A(f"v_xor_b32 v10, {32*s_}, v9")
        A(f"ds_read_b128 v[{XV+4*s_}:{XV+4*s_+3}], v10")
    for s_ in range(8):
        A(f"s_waitcnt lgkmcnt({7-s_})")
        for d in range(4):
            r = XV + 4*s_ + d
            a1, a2 = (12, 13) if d % 2 == 0 else (11, 15)
            A(f"v_dot2_f32_bf16 v{a1}, v{r}, v14, v{a1}")
            A(f"v_dot2_f32_bf16 v{a2}, v{r}, v{r}, v{a2}")
    A(f"""
    s_nop 2
    v_add_f32 v12, v12, v11
    v_add_f32 v13, v13, v15
    v_mov_b32 v10, v12
    v_mov_b32 v11, v13
    s_nop 1
    v_permlane32_swap_b32 v12, v10
    v_permlane32_swap_b32 v13, v11
    s_nop 1
    v_add_f32 v12, v12, v10
    v_add_f32 v13, v13, v11
    v_lshlrev_b32 v10, 3, v3           ; t*8
    s_lshl_b32 s36, s30, 8
    v_add_u32 v11, s36, v10
    v_add_u32 v11, {RED}, v11
    ds_write_b64 v11, v[12:13]
    s_waitcnt vmcnt(0)
    """)
    for e in range(4):
        A(f"v_add_f32 v{16+e}, v{16+e}, v{20+e}\nv_add_f32 v{24+e}, v{24+e}, v{28+e}")
    for e in range(4):
        A(f"v_add_f32 v{16+e}, v{16+e}, v{24+e}")
    bf16_round_pairs(A, [16, 17, 18, 19], 20)
    A("v_cvt_f32_u32 v20, v4")
    for e in range(4):
        A(f"v_add_f32 v{16+e}, v20, v{16+e}")
    bf16_round_pairs(A, [16, 17, 18, 19], 20)
    A(f"""
    v_xor_b32 v20, 1, v4
    v_lshlrev_b32 v20, 12, v20         ; h? 0 : 4096
    v_lshl_add_u32 v20, v3, 4, v20
    s_lshl_b32 s36, s30, 9
    v_add_u32 v20, s36, v20
    v_add_u32 v20, {GR}, v20
    ds_write_b128 v20, v[16:19]
    s_waitcnt lgkmcnt(0)
    s_barrier
    v_add_u32 v10, {RED}, v10
    """)
    for w_ in range(8):
        A(f"ds_read_b64 v[{16+2*w_}:{17+2*w_}], v10 offset:{w_*256}")
    A("s_waitcnt lgkmcnt(0)")
    for st in (4, 2, 1):
        for i in range(st):
            A(f"v_add_f32 v{16+2*i}, v{16+2*i}, v{16+2*(i+st)}\nv_add_f32 v{17+2*i}, v{17+2*i}, v{17+2*(i+st)}")
    A(f"""
    v_mul_f32 v16, {f32(1/1024)}, v16      ; mean
    v_mul_f32 v17, {f32(1/1024)}, v17      ; E[x^2]
    v_fma_f32 v17, -v16, v16, v17          ; var
    v_add_f32 v17, {f32(1e-5)}, v17
    v_rsq_f32 v12, v17                     ; a = rstd
    s_lshl_b32 s36, s30, 9
    v_mul_f32 v13, v16, v12
    v_sub_f32 v13, 0, v13
    v_lshlrev_b32 v10, 5, v4
    v_add_u32 v10, s36, v10
    v_add_u32 v10, {GR}, v10               ; GR + w*512 + h*32
    """)
    def gread(s_):
        b = 16 + 16*(s_ & 1)
        A(f"ds_read_b128 v[{b}:{b+3}], v10 offset:{s_*64}")
        A(f"ds_read_b128 v[{b+4}:{b+7}], v10 offset:{s_*64+16}")
        A(f"ds_read_b128 v[{b+8}:{b+11}], v10 offset:{4096+s_*64}")
        A(f"ds_read_b128 v[{b+12}:{b+15}], v10 offset:{4096+s_*64+16}")
    gread(0)
    A(f"""
    s_lshl_b32 s36, s31, 16
    s_lshl_b32 s37, s30, 13
    s_add_u32 s36, s36, s37            ; (tt*64 + 8w)*1024
    s_add_u32 s37, s36, 4096
    """)
    for s_ in range(8):
        if s_ < 7:
            gread(s_+1)
            A("s_waitcnt lgkmcnt(4)")
        else:
            A("s_waitcnt lgkmcnt(0)")
        A(f"""
        s_add_u32 m0, s35, {WR + s_*1024}
        s_add_u32 s38, s35, {s_*1024}
        buffer_load_dwordx4 v7, s[12:15], s38 offen lds
        """)
        b = 16 + 16*(s_ & 1)
        for d in range(4):
            r = XV + 4*s_ + d
            t0, t1 = 48 + 2*(d & 1), 49 + 2*(d & 1)
            A(f"""
            v_lshlrev_b32 v{t0}, 16, v{r}
            v_and_b32 v{t1}, 0xffff0000, v{r}
            v_fma_f32 v{t0}, v{t0}, v12, v13
            v_fma_f32 v{t1}, v{t1}, v12, v13
            v_fma_f32 v{t0}, v{t0}, v{b+2*d}, v{b+8+2*d}
            v_fma_f32 v{t1}, v{t1}, v{b+2*d+1}, v{b+8+2*d+1}
            v_cvt_pk_bf16_f32 v{r}, v{t0}, v{t1}
            """)
        A(f"buffer_store_dwordx4 v[{XV+4*s_}:{XV+4*s_+3}], v7, s[24:27], s{36 if s_ < 4 else 37} offen offset:{(s_ & 3)*1024} {SC}")
    WV = 96
    A(f"""
    v_bfe_u32 v10, v1, 2, 2            ; r
    v_lshlrev_b32 v10, 6, v10
    v_bfe_u32 v11, v1, 4, 1            ; G
    v_lshl_add_u32 v10, v11, 5, v10
    v_and_b32 v11, 3, v1
    v_lshl_add_u32 v10, v11, 3, v10
    v_lshl_add_u32 v10, v4, 9, v10     ; + h*512
    v_add_u32 v10, s35, v10
    v_add_u32 v10, {WR}, v10
    s_waitcnt vmcnt(0)
    s_barrier
    """)
    u = uid()
    A(f"s_cmp_eq_u32 s32, 0\ns_cbranch_scc0 P1NH{u}")
    signal(A, F_H, "s31", wave=0)
    A(f"P1NH{u}:")
    for s_ in range(8):
        for e in range(2):
            A(f"ds_read_b64_tr_b16 v[{WV+4*s_+2*e}:{WV+4*s_+2*e+1}], v10 offset:{s_*1024+e*256}")
    AC = 16
    A("s_waitcnt lgkmcnt(0)\ns_cmp_eq_u32 s32, 0\ns_cbranch_scc0 K1_V")
    for s_ in range(8):
        c = "0" if s_ == 0 else f"v[{AC}:{AC+15}]"
        A(f"v_mfma_f32_32x32x16_bf16 v[{AC}:{AC+15}], v[{WV+4*s_}:{WV+4*s_+3}], v[{XV+4*s_}:{XV+4*s_+3}], {c}")
    A("s_branch K1_RED\nK1_V:")
    for s_ in range(8):
        c = "0" if s_ == 0 else f"v[{AC}:{AC+15}]"
        A(f"v_mfma_f32_32x32x16_bf16 v[{AC}:{AC+15}], v[{XV+4*s_}:{XV+4*s_+3}], v[{WV+4*s_}:{WV+4*s_+3}], {c}")
    A(f"""
    K1_RED:
    s_nop 15
    v_add_u32 v10, s35, v7             ; w*8192 + l*16
    """)
    for jq in range(4):
        A(f"ds_write_b128 v10, v[{AC+4*jq}:{AC+4*jq+3}] offset:{jq*1024}")
    A(f"""
    s_waitcnt lgkmcnt(0)
    s_barrier
    s_cmp_ge_u32 s30, 2
    s_cbranch_scc1 P1_KVSKIP
    s_lshl_b32 s36, s30, 11            ; e*2048  (jq = 2e, 2e+1)
    v_add_u32 v10, s36, v7
    """)
    for w_ in range(8):
        A(f"ds_read_b128 v[{32+8*w_}:{35+8*w_}], v10 offset:{w_*8192}")
        A(f"ds_read_b128 v[{36+8*w_}:{39+8*w_}], v10 offset:{w_*8192+1024}")
    A("s_waitcnt lgkmcnt(0)")
    for st in (4, 2, 1):
        for i in range(st):
            for e in range(8):
                A(f"v_add_f32 v{32+8*i+e}, v{32+8*i+e}, v{32+8*(i+st)+e}")
    for m in range(4):
        A(f"v_cvt_pk_bf16_f32 v{32+m}, v{32+2*m}, v{33+2*m}")
    A(f"""
    s_lshl_b32 s36, s31, 12            ; tt*4096
    s_lshl_b32 s37, s32, 11
    s_add_u32 s36, s36, s37
    s_lshl_b32 s37, s30, 10
    s_add_u32 s36, s36, s37
    buffer_store_dwordx4 v[32:35], v7, s[44:47], s36 offen {SC}
    P1_KVSKIP:
    s_waitcnt vmcnt(0)
    s_barrier
    """)
    signal(A, F_KV, "s2", wave=0)
    A("s_branch P1_DONE")
    A("K1_REST:\ns_cmp_ge_u32 s2, 192\ns_cbranch_scc1 K1_UVW")
    srd(A, 8, 48, 0, 2048)
    srd(A, 12, 50, 0, 1024 * 12288)
    srd(A, 16, 20, WS_MODR, 2 * 2048 * 4)
    srd(A, 56, 52, 0, 1024*2048)
    A(f"""
    s_sub_u32 s31, s2, 128
    s_lshr_b32 s22, s31, 1
    s_and_b32 s23, s31, 1          ; ks
    v_lshrrev_b32 v1, 3, v0        ; rg (0..63)
    v_and_b32 v2, 7, v0            ; cc
    v_mul_u32_u24 v3, 12288, v1
    v_lshl_add_u32 v3, v2, 4, v3
    v_lshlrev_b32 v4, 1, v1
    s_mul_i32 s24, s23, {512*12288}
    s_lshl_b32 s25, s22, 7
    s_add_u32 s24, s24, s25
    s_mov_b32 s25, {2048*2}
    s_cmp_ge_u32 s22, 16
    s_cselect_b32 s25, {(5120-1024)*2}, s25
    s_add_u32 s24, s24, s25
    s_lshl_b32 s26, s23, 10
    """)
    for i in range(8):
        A(f"buffer_load_ushort v{8+i}, v4, s[8:11], s26 offen offset:{i*128}")
    for i in range(8):
        A(f"buffer_load_dwordx4 v[{16+4*i}:{19+4*i}], v3, s[12:15], s24 offen nt")
        if i < 7:
            A(f"s_add_u32 s24, s24, {64*12288}")
    A(f"""
    s_lshr_b32 s27, s31, 3         ; idx8
    s_lshl_b32 s27, s27, 7
    s_lshl_b32 s28, s30, 4
    s_add_u32 s27, s27, s28
    s_lshl_b32 s27, s27, 11        ; row*2048
    s_and_b32 s28, s2, 7
    s_lshr_b32 s28, s28, 2
    s_lshl_b32 s28, s28, 10
    s_add_u32 s27, s27, s28
    s_add_u32 s28, s27, {8*2048}
    v_and_b32 v5, 63, v0
    v_lshrrev_b32 v6, 3, v5
    v_lshlrev_b32 v6, 11, v6
    v_and_b32 v5, 7, v5
    v_lshl_add_u32 v5, v5, 7, v6
    buffer_load_dword v62, v5, s[56:59], s27 offen
    buffer_load_dword v63, v5, s[56:59], s28 offen
    """)
    for j in range(8):
        A(f"v_mov_b32 v{48+j}, 0")
    A("s_waitcnt vmcnt(10)")
    silu_regs(A, list(range(8, 16)), 64)
    A("s_waitcnt vmcnt(2)")
    for i in range(8):
        for d in range(4):
            w = 16 + 4*i + d
            A(f"""
            v_lshlrev_b32 v5, 16, v{w}
            v_and_b32 v6, 0xffff0000, v{w}
            v_fmac_f32 v{48+2*d}, v5, v{8+i}
            v_fmac_f32 v{49+2*d}, v6, v{8+i}
            """)
    A(f"""
    v_lshlrev_b32 v5, 5, v0
    ds_write_b128 v5, v[48:51]
    ds_write_b128 v5, v[52:55] offset:16
    s_waitcnt lgkmcnt(0)
    s_barrier
    v_and_b32 v6, 63, v0
    v_lshrrev_b32 v7, 6, v0
    v_lshlrev_b32 v5, 11, v7           ; part*8*256
    v_lshl_add_u32 v5, v6, 2, v5
    """)
    for r in range(8):
        A(f"ds_read_b32 v{16+r}, v5 offset:{r*256}")
    A("s_waitcnt lgkmcnt(0)")
    for st in (4, 2, 1):
        for i in range(st):
            A(f"v_add_f32 v{16+i}, v{16+i}, v{16+i+st}")
    A(f"""
    v_lshlrev_b32 v5, 2, v0
    ds_write_b32 v5, v16 offset:16384
    s_waitcnt lgkmcnt(0)
    s_barrier
    s_cmp_eq_u32 s30, 0
    s_cbranch_scc0 P1_RSKIP
    """)
    for r in range(8):
        A(f"ds_read_b32 v{16+r}, v5 offset:{16384 + r*256}")
    A("s_waitcnt lgkmcnt(0)")
    for st in (4, 2, 1):
        for i in range(st):
            A(f"v_add_f32 v{16+i}, v{16+i}, v{16+i+st}")
    A(f"""
    s_lshl_b32 s24, s23, 13            ; ks*2048*4
    s_lshl_b32 s25, s22, 8
    s_add_u32 s24, s24, s25
    buffer_store_dword v16, v5, s[16:19], s24 offen {SC}
    s_waitcnt vmcnt(0)
    v_and_b32 v1, 63, v0
    """)
    A("s_sub_u32 s31, s2, 128")
    signal(A, F_MR, "s31", wave=0)
    A("P1_RSKIP:\ns_waitcnt vmcnt(0)\ns_barrier\ns_branch P1_DONE")
    A("K1_UVW:\ns_cmp_ge_u32 s2, 248\ns_cbranch_scc1 P1_DONE")
    A(f"s_load_dwordx2 s[54:55], s[0:1], {KA['w1']}\ns_waitcnt lgkmcnt(0)")
    srd(A, 8, 54, 0, 1024*7168)
    srd(A, 16, 20, WS_MODP, 4 * 4096 * 4)
    srd(A, 24, 20, WS_UVW, 3*3584*4 + 64)
    A(f"""
    s_sub_u32 s31, s2, 192             ; blk
    v_lshrrev_b32 v5, 5, v1
    v_bfe_u32 v6, v1, 2, 2
    v_lshl_add_u32 v5, v5, 2, v6
    v_mul_u32_u24 v3, 7168, v5
    v_bfe_u32 v5, v1, 4, 1
    v_lshl_add_u32 v3, v5, 6, v3
    v_and_b32 v8, 3, v1
    v_lshl_add_u32 v3, v8, 4, v3
    s_lshl_b32 s33, s30, 7
    s_mul_i32 s33, s33, 7168
    s_lshl_b32 s34, s31, 7
    s_add_u32 s33, s33, s34            ; soffset
    s_lshl_b32 s35, s30, 14            ; w*16384
    """)
    A(f"""
    v_and_b32 v9, 31, v1
    v_lshlrev_b32 v8, 4, v9
    v_lshl_add_u32 v8, v4, 12, v8      ; t*16 + h*4096
    s_lshl_b32 s37, s30, 9
    s_add_u32 s37, s37, 8192           ; + 2048*4
    """)
    for p in range(4):
        A(f"s_add_u32 s36, s37, {p*16384}\nbuffer_load_dwordx4 v[{16+4*p}:{19+4*p}], v8, s[16:19], s36 offen")
    for i in range(16):
        A(f"""
        s_add_u32 m0, s35, {i*1024}
        s_add_u32 s36, s33, {i*8*7168}
        buffer_load_dwordx4 v3, s[8:11], s36 offen lds
        """)
    A("s_waitcnt vmcnt(16)")
    for e in range(4):
        A(f"v_add_f32 v{16+e}, v{16+e}, v{20+e}\nv_add_f32 v{24+e}, v{24+e}, v{28+e}")
    for e in range(4):
        A(f"v_add_f32 v{16+e}, v{16+e}, v{24+e}")
    bf16_round_pairs(A, [16, 17, 18, 19], 20)
    A("v_cvt_f32_u32 v20, v4")
    for e in range(4):
        A(f"v_add_f32 v{16+e}, v20, v{16+e}")
    VEC = 131072
    A(f"""
    v_cvt_pk_bf16_f32 v16, v16, v17
    v_cvt_pk_bf16_f32 v17, v18, v19
    v_xor_b32 v20, 1, v4
    v_lshlrev_b32 v20, 8, v20
    v_lshl_add_u32 v20, v9, 3, v20
    s_lshl_b32 s36, s30, 9
    v_add_u32 v20, s36, v20
    v_add_u32 v20, {VEC}, v20
    ds_write_b64 v20, v[16:17]
    v_min_u32 v21, 1, v9
    v_lshlrev_b32 v21, 8, v21
    v_lshl_add_u32 v21, v4, 4, v21
    v_add_u32 v21, s36, v21
    v_add_u32 v21, {VEC}, v21
    s_waitcnt lgkmcnt(0)
    """)
    BV = 64
    for s_ in range(8):
        A(f"ds_read_b128 v[{BV+4*s_}:{BV+4*s_+3}], v21 offset:{s_*32}")
    A(f"""
    v_bfe_u32 v10, v1, 2, 2
    v_lshlrev_b32 v10, 6, v10
    v_bfe_u32 v11, v1, 4, 1
    v_lshl_add_u32 v10, v11, 5, v10
    v_and_b32 v11, 3, v1
    v_lshl_add_u32 v10, v11, 3, v10
    v_lshl_add_u32 v10, v4, 10, v10
    v_add_u32 v10, s35, v10
    v_cmp_eq_u32 vcc, 2, v9
    v_cmp_lt_u32 s[38:39], v9, 2
    v_mov_b32 v22, 0x3f803f80
    v_mov_b32 v23, 0
    s_waitcnt lgkmcnt(0)
    v_cndmask_b32 v22, v23, v22, vcc           ; t==2 ? ones : 0
    """)
    for i in range(32):
        A(f"v_cndmask_b32 v{BV+i}, v22, v{BV+i}, s[38:39]")
    A("s_waitcnt vmcnt(0)")
    AV = 96
    for s_ in range(8):
        for ft in range(2):
            for e in range(2):
                r = AV + (s_*2+ft)*4 + 2*e
                A(f"ds_read_b64_tr_b16 v[{r}:{r+1}], v10 offset:{s_*2048 + e*512 + ft*256}")
    A("s_waitcnt lgkmcnt(0)")
    for s_ in range(8):
        for ft in range(2):
            c = 16 + 16*ft
            cc = "0" if s_ == 0 else f"v[{c}:{c+15}]"
            a_ = AV + (s_*2+ft)*4
            A(f"v_mfma_f32_32x32x16_bf16 v[{c}:{c+15}], v[{a_}:{a_+3}], v[{BV+4*s_}:{BV+4*s_+3}], {cc}")
        cc = "0" if s_ == 0 else "v[48:63]"
        A(f"v_mfma_f32_32x32x16_bf16 v[48:63], v[{BV+4*s_}:{BV+4*s_+3}], v[{BV+4*s_}:{BV+4*s_+3}], {cc}")
    RED2 = 135168
    A(f"""
    s_nop 15
    v_cmp_gt_u32 vcc, 4, v9
    s_and_saveexec_b64 s[28:29], vcc
    v_lshlrev_b32 v10, 8, v9           ; t*256
    v_lshl_add_u32 v10, v4, 4, v10     ; + h*16
    s_lshl_b32 s36, s30, 10
    v_add_u32 v10, s36, v10
    v_add_u32 v10, {RED2}, v10
    """)
    for ft in range(2):
        for jq in range(4):
            c = 16 + 16*ft + 4*jq
            A(f"ds_write_b128 v10, v[{c}:{c+3}] offset:{ft*128 + jq*32}")
    A(f"""
    v_lshlrev_b32 v11, 4, v9
    s_lshl_b32 s36, s30, 6
    v_add_u32 v11, s36, v11
    v_add_u32 v11, {RED2 + 8192}, v11
    v_cmp_eq_u32 vcc, 0, v4
    s_and_b64 exec, exec, vcc
    ds_write_b128 v11, v[48:51]
    s_mov_b64 exec, s[28:29]
    s_waitcnt lgkmcnt(0)
    s_barrier
    s_cmp_eq_u32 s31, 0
    s_cbranch_scc0 K1_NOGRAM
    s_cmp_eq_u32 s30, 7
    s_cbranch_scc0 K1_NOGRAM
    v_cmp_gt_u32 vcc, 16, v1
    s_and_saveexec_b64 s[28:29], vcc
    v_lshlrev_b32 v10, 2, v1
    v_add_u32 v11, {RED2 + 8192}, v10
    """)
    for w_ in range(8):
        A(f"ds_read_b32 v{16+w_}, v11 offset:{w_*64}")
    A("s_waitcnt lgkmcnt(0)")
    for st in (4, 2, 1):
        for i in range(st):
            A(f"v_add_f32 v{16+i}, v{16+i}, v{16+i+st}")
    A(f"""
    s_mov_b32 s36, {3*3584*4}
    buffer_store_dword v16, v10, s[24:27], s36 offen {SC}
    s_mov_b64 exec, s[28:29]
    K1_NOGRAM:
    s_cmp_ge_u32 s30, 3
    s_cbranch_scc1 P1_USKIP
    v_lshlrev_b32 v10, 2, v0
    v_add_u32 v11, {RED2}, v10
    """)
    for w_ in range(8):
        A(f"ds_read_b32 v{16+w_}, v11 offset:{w_*1024}")
    A("s_waitcnt lgkmcnt(0)")
    for st in (4, 2, 1):
        for i in range(st):
            A(f"v_add_f32 v{16+i}, v{16+i}, v{16+i+st}")
    A(f"""
    v_lshrrev_b32 v12, 6, v0           ; t
    v_mul_u32_u24 v12, {3584*4}, v12
    v_and_b32 v13, 63, v0
    v_lshl_add_u32 v12, v13, 2, v12
    s_lshl_b32 s36, s31, 8
    buffer_store_dword v16, v12, s[24:27], s36 offen {SC}
    P1_USKIP:
    s_waitcnt vmcnt(0) lgkmcnt(0)
    s_barrier
    """)
    signal(A, F_UV, "s31", wave=0)
    A("P1_DONE:")
```

```python
import sys
sys.path.insert(0, "work")
from genlib import *
import k_front, k_gemm, k_mlp1, k_attn

HEADER = open("adaLN_cond__grouped_kv_mqa__mixer_channel_mlp__prompt.s.ref").read().split("; Override launch")[0]

def build(launches, gens):
    A = Asm()
    txt = HEADER
    for (k, g, b, l) in launches:
        txt += f"; @launch kernel={k} grid=({g},1,1) block=({b},1,1) lds={l}\n"
    txt += '.amdgcn_target "amdgcn-amd-amdhsa--gfx950"\n'
    for g in gens:
        g(A)
    return txt + A.text()

def v1():
    launches = [("k0_mod_kernel", 256, 256, 9216), ("k1_lnkv_kernel", 256, 512, 144384), ("k2_attn_kernel", 256, 512, 131136),
                ("k3_wo_kernel", 256, 512, 65536), ("k5_mlp1_kernel", 256, 512, 126464),
                ("k6_mlp2_kernel", 256, 512, 65536)]
    gens = [k_front.gen_k0, k_front.gen_k1, k_attn.gen_k2, k_gemm.gen_k3, k_mlp1.gen_k5, k_gemm.gen_k6]
    return build(launches, gens)

def vmega():
    import mega_main
    launches = [("k0_mod_kernel", 256, 256, 9216), ("mega_kernel", 256, 512, 160768)]
    return build(launches, [k_front.gen_k0, mega_main.gen_mega])

if __name__ == "__main__":
    import genlib, os
    genlib.PROF = bool(os.environ.get("PROF"))
    for kv in os.environ.get("OPT", "").split(","):
        if kv:
            k, v = kv.split("="); k_gemm.OPT[k] = int(v)
    out = sys.argv[1] if len(sys.argv) > 1 else "adaLN_cond__grouped_kv_mqa__mixer_channel_mlp__prompt.s"
    open(out, "w").write(vmega() if os.environ.get("MEGA") else v1())
    print("written", out)
```

```python
class Asm:
    def __init__(self):
        self.L = []
    def __call__(self, txt):
        for line in txt.strip("\n").split("\n"):
            line = line.strip()
            if not line:
                continue
            if line.endswith(":") and not line.startswith(";"):
                self.L.append(line)
            else:
                self.L.append("    " + line)
    def text(self):
        return "\n".join(self.L) + "\n"

def vr(a, n=1):
    return f"v{a}" if n == 1 else f"v[{a}:{a+n-1}]"
def sr(a, n=1):
    return f"s{a}" if n == 1 else f"s[{a}:{a+n-1}]"

def kernel_begin(A, name):
    A.L.append(".text")
    A.L.append(f".globl {name}")
    A.L.append(".p2align 8")
    A.L.append(f".type {name},@function")
    A.L.append(f"{name}:")

def kernel_end(A, name, vgprs, sgprs=102):
    acc = (vgprs + 3) // 4 * 4
    A.L.append(".section .rodata,\"a\"")
    A.L.append(".p2align 6")
    A.L.append(f".amdhsa_kernel {name}")
    A.L.append(f"  .amdhsa_next_free_vgpr {vgprs}")
    A.L.append(f"  .amdhsa_next_free_sgpr {sgprs}")
    A.L.append(f"  .amdhsa_accum_offset {acc}")
    A.L.append("  .amdhsa_group_segment_fixed_size 0")
    A.L.append("  .amdhsa_kernarg_size 120")
    A.L.append("  .amdhsa_user_sgpr_count 2")
    A.L.append("  .amdhsa_user_sgpr_kernarg_segment_ptr 1")
    A.L.append("  .amdhsa_system_sgpr_workgroup_id_x 1")
    A.L.append(".end_amdhsa_kernel")

def srd(A, s, base_pair, off, nbytes):
    if off == 0:
        A(f"s_mov_b32 s{s}, s{base_pair}\ns_mov_b32 s{s+1}, s{base_pair+1}")
    else:
        A(f"s_add_u32 s{s}, s{base_pair}, {off:#x}\ns_addc_u32 s{s+1}, s{base_pair+1}, 0")
    A(f"s_mov_b32 s{s+2}, {nbytes:#x}\ns_mov_b32 s{s+3}, 0x00020000")

KA = dict(x=0, wq=8, wk=16, wv=24, wo=32, bx=40, w1=48, b1=56, w2=64, b2=72, c=80, wmod=88, out=96, dbg=104, ws=112)
WS_MODP = 0x0
WS_MODR = 0x10000
WS_MODF = 0x18000
WS_UVW  = 0x40000 - 0x18000 + 0x0
UVW_P = 3*3584*4
WS_ST   = 0x2200000
WS_GRAM = 0x28000 + 2*43008
WS_KV   = 0x40000
WS_H    = 0x100000
WS_O    = 0x500000
WS_X1   = 0x900000
WS_Y    = 0xD00000
WS_HH   = 0x1100000
SZ_ACT  = 0x400000
SZ_HH   = 64 * 224 * 1024
LOG2E = 1.4426950408889634
import struct
def f32(x):
    return "0x%08x" % struct.unpack("<I", struct.pack("<f", x))[0]

PROF = False
WS_PROF = 0x2000000
def prof_init(A, kidx):
    if not PROF: return
    A(f"""
    s_lshl_b32 s66, s2, 7
    s_add_u32 s66, s66, {WS_PROF + kidx*512*128:#x}
    s_add_u32 s64, s20, s66
    s_addc_u32 s65, s21, 0
    """)
def prof_stamp(A, slot, early=False):
    if not PROF: return
    A(f"s_memrealtime s[{68}:{69}]\ns_memtime s[{72+2*slot}:{73+2*slot}]\ns_waitcnt lgkmcnt(0)\ns_mov_b32 s{73+2*slot}, s68")
def prof_dump(A, nslots):
    if not PROF: return
    A(f"""
    v_cmp_eq_u32 vcc, 0, v0
    s_and_saveexec_b64 s[68:69], vcc
    s_cbranch_execz PROF_SKIP_{len(A.L)}
    """)
    lab = A.L[-1].split()[-1]
    for i in range(nslots):
        A(f"v_mov_b32 v4, s{72+2*i}\nv_mov_b32 v5, s{73+2*i}\nv_mov_b32 v6, {8*i}\nglobal_store_dwordx2 v6, v[4:5], s[64:65]")
    A(f"{lab}:\ns_mov_b64 exec, s[68:69]")

def mprof(A, slot):
    if not PROF: return
    A(f"s_memtime s[90:91]\ns_memrealtime s[92:93]\ns_waitcnt lgkmcnt(0)\nv_writelane_b32 v252, s90, {slot}\nv_writelane_b32 v253, s92, {slot}")
def mprof_dump(A):
    if not PROF: return
    A(f"""
    s_cmp_eq_u32 s30, 0
    s_cbranch_scc0 MPD_SKIP
    s_lshl_b32 s90, s2, 7
    s_add_u32 s90, s90, {WS_PROF + 512*128:#x}
    s_add_u32 s90, s20, s90
    s_addc_u32 s91, s21, 0
    v_and_b32 v4, 63, v0
    v_lshlrev_b32 v4, 3, v4
    v_cmp_gt_u32 vcc, 16, v0
    s_and_saveexec_b64 s[92:93], vcc
    v_mov_b32 v6, v252
    v_mov_b32 v7, v253
    global_store_dwordx2 v4, v[6:7], s[90:91]
    s_mov_b64 exec, s[92:93]
    MPD_SKIP:
    """)
PTR = dict(x=64, wq=66, wk=68, wv=70, wo=72, w1=76, b1=78, w2=80, b2=82, c=84, wmod=86, out=88, dbg=94)
```

```python
from genlib import *
import genlib
import k_gemm
from k_gemm import ACC, AF, BF, OPT, wg_map_64, gemm64_setup
from k_front import silu_regs, bf16_round_pairs
from k_mlp1 import wg_map_224, split_hilo, GELU_C1, GELU_C2

WS_FLAGS = 0x2400000
FS = 128
F_H, F_KV, F_MR, F_M0, F_O, F_Z, F_HH, F_ST = 0x0, 0x2000, 0x6000, 0xA000, 0x12000, 0x1A000, 0x22000, 0x2A000
F_X = 0x32000
FLAGS_SIZE = 0x3A000
WS_XB = 0x2800000
FLAGS_SFX = "sc1"
SC = "sc1"
TOK = "s100"
LDS_TOTAL = 163840

_uid = [0]
def uid():
    _uid[0] += 1
    return _uid[0]

def lane_setup(A):
    A("""
    v_and_b32 v1, 63, v0
    v_lshrrev_b32 v5, 6, v0
    v_lshlrev_b32 v2, 4, v1
    v_readfirstlane_b32 s30, v5
    s_nop 3
    s_and_b32 s31, s30, 3
    s_lshr_b32 s32, s30, 2
    """)

def signal(A, off_const, idx_sgpr=None, wave=0):
    u = uid()
    A(f"s_cmp_eq_u32 s30, {wave}\ns_cbranch_scc0 SIG{u}")
    if idx_sgpr is None:
        A(f"s_mov_b32 s36, {off_const}")
    else:
        A(f"s_lshl_b32 s36, {idx_sgpr}, 7\ns_add_u32 s36, s36, {off_const}")
    A(f"""
    v_mov_b32 v250, {TOK}
    v_mov_b32 v251, 0
    v_cmp_eq_u32 vcc, 0, v1
    s_and_saveexec_b64 s[54:55], vcc
    buffer_store_dword v250, v251, s[96:99], s36 offen {FLAGS_SFX}
    s_mov_b64 exec, s[54:55]
    SIG{u}:
    """)

def poll(A, specs, vregs):
    u = uid()
    A(f"s_mov_b32 s57, 0\nPOLL{u}:")
    for (soff, count), vr_ in zip(specs, vregs):
        A(f"""
        v_min_u32 v{vr_}, {count-1}, v1
        v_lshlrev_b32 v{vr_}, 7, v{vr_}
        buffer_load_dword v{vr_}, v{vr_}, s[96:99], {soff} offen {FLAGS_SFX}
        """)
    A("s_waitcnt vmcnt(0)")
    A("s_mov_b64 s[58:59], -1")
    for vr_ in vregs[:len(specs)]:
        A(f"v_cmp_eq_u32 vcc, {TOK}, v{vr_}\ns_and_b64 s[58:59], s[58:59], vcc")
    A(f"""
    s_cmp_eq_u64 s[58:59], -1
    s_cbranch_scc1 POLLD{u}
    s_add_u32 s57, s57, 1
    s_cmp_gt_u32 s57, 400000
    s_cbranch_scc1 POLLD{u}
    s_sleep 1
    s_branch POLL{u}
    POLLD{u}:
    """)

def poll_by(A, wave, specs, vregs, pre=""):
    u = uid()
    A(f"s_cmp_eq_u32 s30, {wave}\ns_cbranch_scc0 PB{u}")
    if pre: A(pre)
    poll(A, specs, vregs)
    A(f"PB{u}:")

def w_issue(slot, ldw):
    return [f"s_add_u32 s37, s33, {8*ldw}\ns_add_u32 m0, s39, {slot*16384}\ns_nop 0\nbuffer_load_dwordx4 v3, s[8:11], s33 offen lds",
            f"s_add_u32 m0, s39, {slot*16384+1024}\ns_nop 0\nbuffer_load_dwordx4 v3, s[8:11], s37 offen lds",
            f"s_add_u32 s33, s33, {64*ldw}"]
def b_issue(slot):
    g = [f"buffer_load_dwordx4 v[{BF+16*slot+4*ks}:{BF+16*slot+4*ks+3}], v2, s[12:15], s34 offen offset:{ks*1024} {SC}" for ks in range(4)]
    return g + ["s_add_u32 s34, s34, 4096"]

def g64_w_prologue(A, ldw):
    for s in range(3):
        for x in w_issue(s, ldw): A(x)
def g64_b_prologue(A):
    for s in range(3):
        for x in b_issue(s): A(x)
    for i in range(32):
        A(f"v_mov_b32 v{ACC+i}, 0")

def g64_stage(A, slot, ldw, perm, wait, issue, pre=None, hook=None):
    es = 1024 if perm else 512
    A(f"s_waitcnt vmcnt({wait})")
    if pre: pre(A)
    A("s_barrier")
    for ks in range(4):
        for ft in range(2):
            for e in range(2):
                r = AF + (ks*2+ft)*4 + 2*e
                A(f"ds_read_b64_tr_b16 v[{r}:{r+1}], v4 offset:{slot*16384 + ks*2048 + e*es + ft*256}")
    if issue:
        w = w_issue((slot+3) % 4, ldw); b = b_issue((slot+3) % 4)
        plan = [[w[0]], [w[1], w[2]], [b[0], b[1]], [b[2], b[3], b[4]]]
    for ks in range(4):
        A(f"s_waitcnt lgkmcnt({12-4*ks})")
        b_ = BF + 16*slot + 4*ks
        for ft in range(2):
            a = AF + (ks*2+ft)*4
            c = ACC + 16*ft
            A(f"v_mfma_f32_32x32x16_bf16 v[{c}:{c+15}], v[{a}:{a+3}], v[{b_}:{b_+3}], v[{c}:{c+15}]")
        if issue:
            for x in plan[ks]: A(x)
        if hook and ks == 0: hook(A)

def g64_loop(A, pfx, NS, ldw, perm, tail_hooks):
    nmain = NS//4 - 1
    first = [8, 10, 12, 12]
    for slot in range(4):
        g64_stage(A, slot, ldw, perm, first[slot], True)
    if nmain > 1:
        A(f"s_mov_b32 s41, {nmain-1}\n{pfx}_LOOP:")
        for slot in range(4):
            g64_stage(A, slot, ldw, perm, 12, True)
        A(f"s_sub_u32 s41, s41, 1\ns_cmp_lg_u32 s41, 0\ns_cbranch_scc1 {pfx}_LOOP")
    Q = [("st", NS-4)]*6 + [("st", NS-3)]*6 + [("st", NS-2)]*6
    def wt(tag):
        idx = max(i for i, t in enumerate(Q) if t == tag)
        return len(Q) - 1 - idx
    for slot in range(4):
        st = NS - 4 + slot
        w = wt(("st", st))
        pre = None
        if slot == 2 and tail_hooks.get("pre2"):
            need = tail_hooks["pre2_need"]
            w = min(w, wt(need))
            pre = tail_hooks["pre2"]
        n, fn = tail_hooks.get(slot, (0, None))
        g64_stage(A, slot, ldw, perm, w, slot == 0, pre=pre, hook=fn)
        if slot == 0:
            Q.append(("st", NS-1)); Q.extend([("h0", 0)]*n); Q.extend([("st", NS-1)]*5)
        else:
            Q.extend([(f"h{slot}", 0)]*n)
    A("s_waitcnt vmcnt(0)\ns_barrier\ns_nop 15")

def g64_exchange(A, pfx, base):
    A(f"""
    s_lshl_b32 s36, s31, 13            ; tokt*8192
    s_add_u32 s36, s36, {base}
    v_add_u32 v5, s36, v2
    s_cmp_eq_u32 s32, 0
    s_cbranch_scc0 {pfx}_X1
    """)
    for jq in range(4):
        A(f"ds_write_b128 v5, v[{32+4*jq}:{35+4*jq}] offset:{4096+jq*1024}")
    A(f"s_branch {pfx}_X2\n{pfx}_X1:")
    for jq in range(4):
        A(f"ds_write_b128 v5, v[{16+4*jq}:{19+4*jq}] offset:{jq*1024}")
    A("s_nop 1")
    for i in range(16):
        A(f"v_mov_b32 v{16+i}, v{32+i}")
    A(f"""
    {pfx}_X2:
    s_waitcnt lgkmcnt(0)
    s_barrier
    s_lshl_b32 s36, s32, 12
    v_add_u32 v5, s36, v5
    """)
    for jq in range(4):
        A(f"ds_read_b128 v[{32+4*jq}:{35+4*jq}], v5 offset:{jq*1024}")
    A("s_waitcnt lgkmcnt(0)")
    for i in range(16):
        A(f"v_add_f32 v{16+i}, v{16+i}, v{32+i}")

def load_ptrs(A, lst):
    raise RuntimeError("use PTR")


C_KV, C_MR, C_M0B, C_UV = 32, 40, 8, 16
def dbg_srd(A, s_):
    A(f"s_mov_b32 s{s_}, s{PTR['dbg']}\ns_mov_b32 s{s_+1}, s{PTR['dbg']+1}\ns_mov_b32 s{s_+2}, 256\ns_mov_b32 s{s_+3}, 0x00020000")

def cnt_signal(A, idx, wave=0):
    u = uid()
    A(f"s_cmp_eq_u32 s30, {wave}\ns_cbranch_scc0 CSIG{u}")
    dbg_srd(A, 4)
    A(f"""
    v_mov_b32 v250, 1
    v_mov_b32 v251, {idx*4}
    v_cmp_eq_u32 vcc, 0, v1
    s_and_saveexec_b64 s[54:55], vcc
    buffer_atomic_add v250, v251, s[4:7], 0 offen sc1
    s_mov_b64 exec, s[54:55]
    CSIG{u}:
    """)

def cnt_load(A, idx, vreg):
    A(f"v_mov_b32 v{vreg}, {idx*4}\nbuffer_load_dword v{vreg}, v{vreg}, s[4:7], 0 offen sc1")

def cnt_check_or_poll(A, checks):
    u = uid()
    A("s_mov_b32 s57, 0")
    A(f"CCK{u}:")
    A("s_mov_b32 s58, 1")
    for idx, vr_, tgt in checks:
        A(f"v_readfirstlane_b32 s59, v{vr_}\ns_nop 3\ns_cmp_ge_u32 s59, {tgt}\ns_cselect_b32 s58, s58, 0")
    A(f"""
    s_cmp_eq_u32 s58, 1
    s_cbranch_scc1 CCD{u}
    s_add_u32 s57, s57, 1
    s_cmp_gt_u32 s57, 400000
    s_cbranch_scc1 CCD{u}
    s_sleep 2
    """)
    for idx, vr_, tgt in checks:
        cnt_load(A, idx, vr_)
    A(f"s_waitcnt vmcnt(0)\ns_branch CCK{u}\nCCD{u}:")
```

```python
from genlib import *
import genlib
from mega import *
from mega_p1 import phase01
from k_gemm import OPT

X1R = 240


UV_W, UV_VEC, UV_RED = 65536, 98304, 102400

def uvw_issue(A):
    srd(A, 40, PTR['w1'], 0, 1024*7168)
    srd(A, 44, 20, 0, 0x18000)
    A(f"""
    s_lshr_b32 s60, s2, 1              ; ft
    s_and_b32 s61, s2, 1               ; kh
    s_lshl_b32 s36, s61, 9
    s_lshl_b32 s37, s30, 6
    s_add_u32 s36, s36, s37            ; k0 = 512kh + 64w
    s_mul_i32 s37, s36, 7168
    s_lshl_b32 s38, s60, 6
    s_add_u32 s37, s37, s38            ; W1 soffset
    s_cmp_lt_u32 s2, 224
    s_cselect_b32 s37, s37, 0x7f000000
    v_lshrrev_b32 v8, 2, v1
    v_mul_u32_u24 v8, 7168, v8
    v_and_b32 v9, 3, v1
    v_lshl_add_u32 v8, v9, 4, v8
    s_lshl_b32 s38, s30, 12
    s_add_u32 s38, s38, {UV_W}
    """)
    for i in range(4):
        A(f"s_add_u32 m0, s38, {i*1024}\ns_nop 0\nbuffer_load_dwordx4 v8, s[40:43], s37 offen lds\ns_add_u32 s37, s37, {16*7168}")
    A(f"""
    v_and_b32 v9, 15, v1
    v_lshlrev_b32 v9, 4, v9
    v_bfe_u32 v10, v1, 4, 1
    v_lshl_add_u32 v9, v10, 12, v9
    s_lshl_b32 s36, s36, 2
    s_add_u32 s36, s36, {2048*4}
    """)
    for p in range(4):
        A(f"s_add_u32 s37, s36, {p*16384}\nbuffer_load_dwordx4 v[{176+4*p}:{179+4*p}], v9, s[44:47], s37 offen {SC}")

def uvw_compute(A):
    srd(A, 40, 20, WS_UVW, 2*UVW_P + 128)
    A(f"""
    v_add_f32 v176, v176, v180
    v_add_f32 v177, v177, v181
    v_add_f32 v178, v178, v182
    v_add_f32 v179, v179, v183
    v_add_f32 v184, v184, v188
    v_add_f32 v185, v185, v189
    v_add_f32 v186, v186, v190
    v_add_f32 v187, v187, v191
    v_add_f32 v176, v176, v184
    v_add_f32 v177, v177, v185
    v_add_f32 v178, v178, v186
    v_add_f32 v179, v179, v187
    """)
    bf16_round_pairs(A, [176, 177, 178, 179], 180)
    A(f"""
    v_bfe_u32 v10, v1, 4, 1
    v_cvt_f32_u32 v180, v10
    v_add_f32 v176, v180, v176
    v_add_f32 v177, v180, v177
    v_add_f32 v178, v180, v178
    v_add_f32 v179, v180, v179
    v_cvt_pk_bf16_f32 v176, v176, v177
    v_cvt_pk_bf16_f32 v177, v178, v179
    v_xor_b32 v10, 1, v10
    v_lshlrev_b32 v10, 7, v10
    v_and_b32 v9, 15, v1
    v_lshl_add_u32 v10, v9, 3, v10
    s_lshl_b32 s36, s30, 8
    s_add_u32 s36, s36, {UV_VEC}
    v_add_u32 v10, s36, v10
    ds_write_b64 v10, v[176:177]
    v_and_b32 v9, 31, v1               ; t
    v_lshrrev_b32 v11, 5, v1           ; h
    v_min_u32 v10, 1, v9
    v_lshlrev_b32 v10, 7, v10
    v_lshl_add_u32 v10, v11, 4, v10
    v_add_u32 v10, s36, v10
    v_bfe_u32 v8, v1, 2, 2
    v_lshlrev_b32 v8, 6, v8
    v_bfe_u32 v12, v1, 4, 1
    v_lshl_add_u32 v8, v12, 5, v8
    v_and_b32 v12, 3, v1
    v_lshl_add_u32 v8, v12, 3, v8
    v_lshl_add_u32 v8, v11, 9, v8
    s_lshl_b32 s37, s30, 12
    s_add_u32 s37, s37, {UV_W}
    v_add_u32 v8, s37, v8
    v_cmp_eq_u32 vcc, 2, v9
    v_cmp_lt_u32 s[62:63], v9, 2
    v_mov_b32 v12, 0x3f803f80
    v_mov_b32 v13, 0
    s_waitcnt lgkmcnt(0)
    """)
    BV, AV = 176, 192
    for s_ in range(4):
        A(f"ds_read_b128 v[{BV+4*s_}:{BV+4*s_+3}], v10 offset:{s_*32}")
    for s_ in range(4):
        for e in range(2):
            A(f"ds_read_b64_tr_b16 v[{AV+4*s_+2*e}:{AV+4*s_+2*e+1}], v8 offset:{s_*1024 + e*256}")
    A("v_cndmask_b32 v12, v13, v12, vcc\ns_waitcnt lgkmcnt(0)")
    for i in range(16):
        A(f"v_cndmask_b32 v{BV+i}, v12, v{BV+i}, s[62:63]")
    A("s_nop 1")
    for s_ in range(4):
        cc = "0" if s_ == 0 else "v[208:223]"
        A(f"v_mfma_f32_32x32x16_bf16 v[208:223], v[{AV+4*s_}:{AV+4*s_+3}], v[{BV+4*s_}:{BV+4*s_+3}], {cc}")
        cc = "0" if s_ == 0 else "v[224:239]"
        A(f"v_mfma_f32_32x32x16_bf16 v[224:239], v[{BV+4*s_}:{BV+4*s_+3}], v[{BV+4*s_}:{BV+4*s_+3}], {cc}")
    A(f"""
    s_nop 15
    v_cmp_gt_u32 vcc, 4, v9
    s_and_saveexec_b64 s[54:55], vcc
    v_lshlrev_b32 v10, 7, v9           ; t*128
    v_lshl_add_u32 v10, v11, 4, v10    ; + h*16
    s_lshl_b32 s36, s30, 9
    s_add_u32 s36, s36, {UV_RED}
    v_add_u32 v10, s36, v10
    """)
    for jq in range(4):
        A(f"ds_write_b128 v10, v[{208+4*jq}:{211+4*jq}] offset:{jq*32}")
    A(f"""
    v_lshlrev_b32 v10, 4, v9
    s_lshl_b32 s36, s30, 6
    s_add_u32 s36, s36, {UV_RED + 4096}
    v_add_u32 v10, s36, v10
    v_cmp_eq_u32 vcc, 0, v11
    s_and_b64 exec, exec, vcc
    ds_write_b128 v10, v[224:227]
    s_mov_b64 exec, s[54:55]
    s_waitcnt lgkmcnt(0)
    s_barrier
    s_cmp_eq_u32 s30, 1
    s_cbranch_scc0 UV_NG
    s_cmp_eq_u32 s60, 0
    s_cbranch_scc0 UV_END
    v_lshlrev_b32 v10, 2, v1
    v_add_u32 v8, {UV_RED + 4096}, v10
    """)
    for w_ in range(8):
        A(f"ds_read_b32 v{176+w_}, v8 offset:{w_*64}")
    A("s_waitcnt lgkmcnt(0)")
    for st in (4, 2, 1):
        for i in range(st):
            A(f"v_add_f32 v{176+i}, v{176+i}, v{176+i+st}")
    A(f"""
    s_lshl_b32 s36, s61, 6
    s_add_u32 s36, s36, {2*UVW_P}
    v_cmp_gt_u32 vcc, 16, v1
    s_and_saveexec_b64 s[54:55], vcc
    buffer_store_dword v176, v10, s[40:43], s36 offen {SC}
    s_mov_b64 exec, s[54:55]
    s_branch UV_END
    UV_NG:
    s_cmp_lt_u32 s30, 4
    s_cbranch_scc0 UV_END
    s_cmp_lt_u32 s2, 224
    s_cbranch_scc0 UV_END
    s_cmp_eq_u32 s30, 0
    s_cselect_b32 s37, 0, s30
    s_sub_u32 s38, s37, 1
    s_cselect_b32 s37, 0, s38          ; t = (w==0) ? 0 : w-1
    v_and_b32 v9, 31, v1
    v_lshlrev_b32 v10, 2, v9
    s_lshl_b32 s36, s37, 7
    s_add_u32 s36, s36, {UV_RED}
    v_add_u32 v8, s36, v10
    """)
    for w_ in range(8):
        A(f"ds_read_b32 v{176+w_}, v8 offset:{w_*512}")
    A("s_waitcnt lgkmcnt(0)")
    for st in (4, 2, 1):
        for i in range(st):
            A(f"v_add_f32 v{176+i}, v{176+i}, v{176+i+st}")
    A(f"""
    s_mul_i32 s36, s61, {UVW_P}
    s_mul_i32 s38, s37, {3584*4}
    s_add_u32 s36, s36, s38
    s_lshl_b32 s38, s60, 7
    s_add_u32 s36, s36, s38
    v_cmp_gt_u32 vcc, 32, v1
    s_and_saveexec_b64 s[54:55], vcc
    buffer_store_dword v176, v10, s[40:43], s36 offen {SC}
    s_mov_b64 exec, s[54:55]
    UV_END:
    """)


def phase2(A):
    SB = [65536, 98304, 0]
    FLAG = 131072
    wg_map_64(A)
    lane_setup(A)
    srd(A, 8, PTR['wq'], 0, 1024*2048)
    srd(A, 12, 20, WS_H, SZ_ACT)
    srd(A, 16, 20, WS_KV, 0x40000)
    srd(A, 24, 20, WS_O, SZ_ACT)
    gemm64_setup(A, 1024, 2048, 64, perm=False)
    g64_w_prologue(A, 2048)
    A(f"""
    v_mov_b32 v5, {FLAG}
    v_mov_b32 v6, 0
    ds_write_b32 v5, v6
    s_lshl_b32 s42, s30, 12            ; w*4096
    """)
    A(f"""
    s_lshr_b32 s52, s2, 3              ; idx
    s_and_b32 s53, s2, 7               ; xcd
    v_lshrrev_b32 v5, 3, v1
    v_lshlrev_b32 v5, 11, v5
    v_and_b32 v6, 7, v1
    v_lshl_add_u32 v5, v6, 7, v5       ; (l>>3)*2048 + (l&7)*128
    s_lshl_b32 s36, s52, 5
    s_lshl_b32 s37, s30, 3
    s_add_u32 s36, s36, s37
    s_lshl_b32 s36, s36, 11
    s_lshr_b32 s37, s53, 2
    s_lshl_b32 s37, s37, 10
    s_add_u32 s36, s36, s37
    v_add_u32 v5, s36, v5
    v_lshrrev_b32 v6, 4, v1
    v_mul_u32_u24 v6, 7168, v6
    v_and_b32 v7, 15, v1
    v_min_u32 v7, 13, v7
    v_lshl_add_u32 v6, v7, 7, v6
    s_xor_b32 s37, s30, 4              ; u
    s_lshl_b32 s37, s37, 2
    s_lshl_b32 s36, s52, 5
    s_add_u32 s36, s36, s37
    s_mul_i32 s36, s36, 7168
    s_lshr_b32 s37, s53, 1
    s_mul_i32 s37, s37, 1792
    s_add_u32 s36, s36, s37
    v_add_u32 v6, s36, v6              ; W1 offset
    s_mul_i32 s36, s2, 224
    s_sub_u32 s37, s30, 4
    s_and_b32 s37, s37, 3
    s_lshl_b32 s37, s37, 6
    s_add_u32 s36, s36, s37
    v_add_u32 v7, s36, v1
    v_min_u32 v7, 57343, v7
    v_lshlrev_b32 v7, 7, v7            ; W2 offset
    s_cmp_lt_u32 s30, 4
    s_cselect_b32 s60, s{PTR['wo']}, s{PTR['w1']}
    s_cselect_b32 s61, s{PTR['wo']+1}, s{PTR['w1']+1}
    s_cselect_b32 s62, s{PTR['w1']}, s{PTR['w2']}
    s_cselect_b32 s63, s{PTR['w1']+1}, s{PTR['w2']+1}
    s_cselect_b64 vcc, -1, 0
    s_nop 1
    v_cndmask_b32 v168, v6, v5, vcc    ; A: w<4 ? Wo : W1
    v_cndmask_b32 v169, v7, v6, vcc    ; B: w<4 ? W1 : W2
    """)
    poll_by(A, 7, [("s56", 4)], [248], pre=f"s_lshl_b32 s56, s28, 9\ns_add_u32 s56, s56, {F_H}")
    dbg_srd(A, 4)
    A("s_barrier")
    mprof(A, 2)
    g64_b_prologue(A)
    def kv_issue(lds_const, stage):
        A(f"s_add_u32 m0, s42, {lds_const}\ns_add_u32 s36, s42, {stage*32768}")
        for q in range(4):
            A(f"buffer_load_dwordx4 v2, s[16:19], s36 offen offset:{q*1024} {SC} lds")
    def h0(A):
        cnt_load(A, C_KV, 172)
        cnt_load(A, C_M0B, 173)
    def pre2(A):
        cnt_check_or_poll(A, [(C_KV, 172, 128), (C_M0B, 173, 128)])
    def h2(A):
        kv_issue(SB[0], 0)
        kv_issue(SB[1], 1)
    g64_loop(A, "P2G", 8, 2048, False, {0: (2, h0), "pre2": pre2, "pre2_need": ("h0", 0), 2: (8, h2)})
    mprof(A, 3)
    g64_exchange(A, "P2G", 0)
    Q, C, S0, S1, P, O, Lr, SEL = 48, 56, 72, 88, 104, 112, 128, 132
    KF = [136, 144]; VF = [152, 160]
    SS = [S0, S1]
    qs = (32 ** -0.5) * LOG2E
    for i in range(16):
        A(f"v_mul_f32 v{16+i}, {f32(qs)}, v{16+i}")
    for m in range(8):
        A(f"v_cvt_pk_bf16_f32 v{Q+m}, v{16+2*m}, v{16+2*m+1}")
    A(f"""
    v_add_u32 v5, {SB[0]}, v2
    ds_read_b128 v[{KF[0]}:{KF[0]+3}], v5
    ds_read_b128 v[{KF[0]+4}:{KF[0]+7}], v5 offset:1024
    v_and_b32 v5, 3, v1
    v_bfe_u32 v6, v1, 2, 1
    v_bfe_u32 v7, v1, 4, 1
    v_xor_b32 v6, v6, v7
    v_or_b32 v5, v5, v6
    v_cmp_eq_u32 vcc, 0, v5
    v_mov_b32 v6, 0x3f803f80
    v_mov_b32 v5, 0
    s_mov_b32 s44, 0                   ; mode
    s_nop 0
    v_cndmask_b32 v{SEL}, v5, v6, vcc
    s_waitcnt lgkmcnt(0)
    v_mfma_f32_32x32x16_bf16 v[{S0}:{S0+15}], v[{KF[0]}:{KF[0]+3}], v[{Q}:{Q+3}], 0
    v_mfma_f32_32x32x16_bf16 v[{S0}:{S0+15}], v[{KF[0]+4}:{KF[0]+7}], v[{Q+4}:{Q+7}], v[{S0}:{S0+15}]
    v_mov_b32 v{SEL+1}, v{SEL}
    v_mov_b32 v{SEL+2}, v{SEL}
    v_mov_b32 v{SEL+3}, v{SEL}
    s_nop 12
    v_max3_f32 v7, v{S0}, v{S0+1}, v{S0+2}
    """)
    for i in range(3, 15, 2):
        A(f"v_max3_f32 v7, v7, v{S0+i}, v{S0+i+1}")
    A(f"""
    v_max_f32 v7, v7, v{S0+15}
    K2_SETC:
    v_mov_b32 v8, v7
    v_add_u32 v5, {SB[0]}, v2
    v_add_u32 v6, {SB[1]}, v2
    v_permlane32_swap_b32 v7, v8
    ds_read_b128 v[{KF[0]}:{KF[0]+3}], v5
    ds_read_b128 v[{KF[0]+4}:{KF[0]+7}], v5 offset:1024
    ds_read_b128 v[{KF[1]}:{KF[1]+3}], v5 offset:4096
    ds_read_b128 v[{KF[1]+4}:{KF[1]+7}], v5 offset:{4096+1024}
    ds_read_b128 v[{VF[0]}:{VF[0]+3}], v5 offset:2048
    ds_read_b128 v[{VF[0]+4}:{VF[0]+7}], v5 offset:3072
    v_max_f32 v7, v7, v8
    v_sub_f32 v7, 0, v7
    """)
    for i in range(16):
        A(f"v_mov_b32 v{C+i}, v7")
    for i in range(16):
        A(f"v_mov_b32 v{O+i}, 0")
    for i in range(4):
        A(f"v_mov_b32 v{Lr+i}, 0")
    for i in range(4):
        A(f"v_mov_b32 v{P+4+i}, 0\nv_mov_b32 v{VF[1]+4+i}, 0")
    A(f"""
    s_waitcnt lgkmcnt(0)
    v_mfma_f32_32x32x16_bf16 v[{S0}:{S0+15}], v[{KF[0]}:{KF[0]+3}], v[{Q}:{Q+3}], v[{C}:{C+15}]
    v_mfma_f32_32x32x16_bf16 v[{S0}:{S0+15}], v[{KF[0]+4}:{KF[0]+7}], v[{Q+4}:{Q+7}], v[{S0}:{S0+15}]
    s_mov_b32 s45, 0                   ; stage i
    s_add_u32 s46, s42, {2*32768}
    s_mov_b32 s47, {SB[2]}
    s_mov_b32 s56, {SB[0]}             ; cur
    s_mov_b32 s57, {SB[1]}             ; next
    s_nop 5
    """)
    mprof(A, 4)
    A(f"""
    K2_LOOP:
    s_cmp_lt_u32 s45, 3
    s_cbranch_scc1 K2_W1
    s_waitcnt vmcnt(0)
    K2_W1:
    s_waitcnt vmcnt(1)
    s_barrier
    s_add_u32 m0, s47, s42
    """)
    P0, P1 = P, P + 4
    def E(S, i): return f"v_exp_f32 v{S+i}, v{S+i}"
    def Cv(S, m): return f"v_cvt_pk_bf16_f32 v{P+m}, v{S+2*m}, v{S+2*m+1}"
    NT = 8
    for u in range(NT):
        S = SS[u % 2]; Sn = SS[(u+1) % 2]
        Kn = KF[(u+1) % 2]; Kl = KF[u % 2]
        V = VF[u % 2]; Vp = VF[(u+1) % 2]
        ka = ("v5", (u+2)*4096) if u+2 < NT else ("v6", (u+2-NT)*4096)
        va = ("v5", (u+1)*4096+2048) if u+1 < NT else ("v6", 2048)
        QKa = f"v_mfma_f32_32x32x16_bf16 v[{Sn}:{Sn+15}], v[{Kn}:{Kn+3}], v[{Q}:{Q+3}], v[{C}:{C+15}]"
        QKb = f"v_mfma_f32_32x32x16_bf16 v[{Sn}:{Sn+15}], v[{Kn+4}:{Kn+7}], v[{Q+4}:{Q+7}], v[{Sn}:{Sn+15}]"
        PVa = f"v_mfma_f32_32x32x16_bf16 v[{O}:{O+15}], v[{V}:{V+3}], v[{P0}:{P0+3}], v[{O}:{O+15}]"
        La = f"v_mfma_f32_16x16x32_bf16 v[{Lr}:{Lr+3}], v[{SEL}:{SEL+3}], v[{P0}:{P0+3}], v[{Lr}:{Lr+3}]"
        PVb_prev = f"v_mfma_f32_32x32x16_bf16 v[{O}:{O+15}], v[{Vp+4}:{Vp+7}], v[{P1}:{P1+3}], v[{O}:{O+15}]"
        Lb_prev = f"v_mfma_f32_16x16x32_bf16 v[{Lr}:{Lr+3}], v[{SEL}:{SEL+3}], v[{P1}:{P1+3}], v[{Lr}:{Lr+3}]"
        rdK = [f"ds_read_b128 v[{Kl}:{Kl+3}], {ka[0]} offset:{ka[1]}", f"ds_read_b128 v[{Kl+4}:{Kl+7}], {ka[0]} offset:{ka[1]+1024}"]
        rdV = [f"ds_read_b128 v[{Vp}:{Vp+3}], {va[0]} offset:{va[1]}", f"ds_read_b128 v[{Vp+4}:{Vp+7}], {va[0]} offset:{va[1]+1024}"]
        vm = []
        if u < 4:
            vm = [f"s_cmp_lt_u32 s45, 6", f"s_cbranch_scc0 K2_ND{u}",
                  f"buffer_load_dwordx4 v2, s[16:19], s46 offen offset:{u*1024} {SC} lds", f"K2_ND{u}:"]
        if u == 5:
            vm = ["s_cmp_eq_u32 s45, 0", "s_cbranch_scc0 K2_PFA", "global_load_dword v170, v168, s[60:61]", "K2_PFA:",
                  "s_cmp_eq_u32 s45, 1", "s_cbranch_scc0 K2_PFB", "global_load_dword v170, v169, s[62:63]", "K2_PFB:"]
        seq = ["s_waitcnt lgkmcnt(0)", QKa, E(S,0), E(S,1), E(S,2),
               PVb_prev, E(S,3), E(S,4), E(S,5),
               Lb_prev, rdK[0], rdK[1], E(S,6), E(S,7), Cv(S,0), Cv(S,1),
               QKb, rdV[0], rdV[1], Cv(S,2), Cv(S,3), E(S,8), E(S,9),
               PVa] + vm + [E(S,10), E(S,11), E(S,12),
               La, E(S,13), E(S,14), E(S,15), Cv(S,4), Cv(S,5), Cv(S,6), Cv(S,7)]
        for x in seq: A(x)
    A(f"""
    v_mov_b32 v5, v6
    v_add_u32 v6, s47, v2
    s_mov_b32 s36, s56
    s_mov_b32 s56, s57
    s_mov_b32 s57, s47
    s_mov_b32 s47, s36
    s_add_u32 s46, s46, 32768
    s_add_u32 s45, s45, 1
    s_cmp_lt_u32 s45, 8
    s_cbranch_scc1 K2_LOOP
    v_mfma_f32_32x32x16_bf16 v[{O}:{O+15}], v[{VF[1]+4}:{VF[1]+7}], v[{P+4}:{P+7}], v[{O}:{O+15}]
    v_mfma_f32_16x16x32_bf16 v[{Lr}:{Lr+3}], v[{SEL}:{SEL+3}], v[{P+4}:{P+7}], v[{Lr}:{Lr+3}]
    s_waitcnt vmcnt(0) lgkmcnt(0)
    s_nop 15
    """)
    mprof(A, 5)
    A(f"""
    v_mov_b32 v7, {f32(2.0**100)}
    v_cmp_nlt_f32 vcc, v{Lr}, v7
    s_mov_b64 s[48:49], vcc
    v_mov_b32 v7, 0x207
    """)
    for i in range(16):
        A(f"v_cmp_class_f32 vcc, v{O+i}, v7\ns_or_b64 s[48:49], s[48:49], vcc")
    A(f"""
    s_cmp_lg_u32 s44, 0
    s_cbranch_scc1 K2_FIN0
    s_cmp_eq_u64 s[48:49], 0
    s_cbranch_scc1 K2_NOFLAG
    v_mov_b32 v7, {FLAG}
    v_mov_b32 v8, 1
    ds_write_b32 v7, v8
    K2_NOFLAG:
    s_waitcnt lgkmcnt(0)
    s_barrier
    v_mov_b32 v7, {FLAG}
    ds_read_b32 v8, v7
    s_waitcnt lgkmcnt(0)
    v_readfirstlane_b32 s36, v8
    s_nop 3
    s_cmp_eq_u32 s36, 0
    s_cbranch_scc1 K2_FINISH
    s_mov_b32 s44, 1
    v_mov_b32 v7, 0xff800000
    s_mov_b32 s45, 0
    v_add_u32 v5, {SB[0]}, v2
    K2_MAXL:
    s_barrier
    s_lshl_b32 s36, s45, 15
    s_add_u32 s36, s36, s42
    s_add_u32 m0, s42, {SB[0]}
    s_nop 0
    """)
    for q in range(4):
        A(f"buffer_load_dwordx4 v2, s[16:19], s36 offen offset:{q*1024} {SC} lds")
    A("s_waitcnt vmcnt(0)\ns_barrier")
    for u in range(8):
        A(f"""
        ds_read_b128 v[{KF[0]}:{KF[0]+3}], v5 offset:{u*4096}
        ds_read_b128 v[{KF[0]+4}:{KF[0]+7}], v5 offset:{u*4096+1024}
        s_waitcnt lgkmcnt(0)
        v_mfma_f32_32x32x16_bf16 v[{S0}:{S0+15}], v[{KF[0]}:{KF[0]+3}], v[{Q}:{Q+3}], 0
        v_mfma_f32_32x32x16_bf16 v[{S0}:{S0+15}], v[{KF[0]+4}:{KF[0]+7}], v[{Q+4}:{Q+7}], v[{S0}:{S0+15}]
        s_nop 15
        """)
        for i in range(0, 16, 2):
            A(f"v_max3_f32 v7, v7, v{S0+i}, v{S0+i+1}")
    A(f"""
    s_add_u32 s45, s45, 1
    s_cmp_lt_u32 s45, 8
    s_cbranch_scc1 K2_MAXL
    s_barrier
    """)
    kv_issue(SB[0], 0)
    kv_issue(SB[1], 1)
    A(f"""
    s_waitcnt vmcnt(0)
    s_barrier
    s_branch K2_SETC
    K2_FIN0:
    s_barrier
    K2_FINISH:
    """)
    uvw_issue(A)
    A(f"""
    v_rcp_f32 v7, v{Lr}
    s_nop 0
    """)
    for i in range(16):
        A(f"v_mul_f32 v{O+i}, v{O+i}, v7")
    for m in range(8):
        A(f"v_cvt_pk_bf16_f32 v{P+m}, v{O+2*m}, v{O+2*m+1}")
    A(f"""
    s_lshl_b32 s36, s28, 2
    s_add_u32 s36, s36, s31
    s_lshl_b32 s36, s36, 6
    s_lshl_b32 s37, s29, 2
    s_add_u32 s36, s36, s37
    s_lshl_b32 s37, s32, 1
    s_add_u32 s36, s36, s37
    s_lshl_b32 s36, s36, 10
    buffer_store_dwordx4 v[{P}:{P+3}], v2, s[24:27], s36 offen {SC}
    buffer_store_dwordx4 v[{P+4}:{P+7}], v2, s[24:27], s36 offen offset:1024 {SC}
    """)


def phase3(A):
    TOP = 126464
    VEC = TOP + 32768
    srd(A, 8, PTR['wo'], 0, 1024*2048)
    srd(A, 12, 20, WS_O, SZ_ACT)
    srd(A, 16, PTR['x'], 0, 2048*2048)
    srd(A, 44, 20, 0, 0x18000)
    srd(A, 48, 20, WS_Y, SZ_ACT)
    srd(A, 24, 20, WS_ST, 0x100000)
    gemm64_setup(A, 1024, 2048, 64, perm=True)
    g64_w_prologue(A, 2048)
    A("s_waitcnt vmcnt(6)\ns_barrier")
    A(f"s_lshl_b32 s56, s28, 4\ns_add_u32 s56, s56, s29")
    signal(A, F_O, "s56", wave=7)
    uvw_compute(A)
    u7 = uid()
    A(f"s_cmp_eq_u32 s30, 7\ns_cbranch_scc0 P3W{u7}")
    dbg_srd(A, 4)
    cnt_load(A, C_MR, 249)
    A(f"s_lshl_b32 s56, s28, 11\ns_add_u32 s56, s56, {F_O}")
    poll(A, [("s56", 16)], [248])
    cnt_check_or_poll(A, [(C_MR, 249, 128)])
    A(f"P3W{u7}:")
    A("s_waitcnt vmcnt(0)\ns_barrier")
    A("s_cmp_lt_u32 s2, 224\ns_cbranch_scc0 UV_NOSIG")
    cnt_signal(A, C_UV, wave=0)
    A("UV_NOSIG:")
    mprof(A, 6)
    g64_b_prologue(A)
    def h1(A):
      A(f"""
      v_and_b32 v8, 31, v1               ; t
      v_lshrrev_b32 v9, 5, v1            ; h
      v_lshlrev_b32 v10, 11, v8
      v_lshl_add_u32 v10, v9, 4, v10     ; t*2048 + h*16
      s_lshl_b32 s36, s28, 2
      s_add_u32 s36, s36, s31
      s_lshl_b32 s36, s36, 16
      s_lshl_b32 s37, s29, 7
      s_add_u32 s36, s36, s37
      s_lshl_b32 s37, s32, 6
      s_add_u32 s36, s36, s37
      buffer_load_dwordx4 v[144:147], v10, s[16:19], s36 offen
      buffer_load_dwordx4 v[148:151], v10, s[16:19], s36 offen offset:32
      v_lshlrev_b32 v11, 2, v1
      s_lshl_b32 s36, s29, 8             ; j*64*4
      """)
      for p, r in enumerate((152, 153, 162, 163)):
          A(f"s_add_u32 s37, s36, {0x10000 + p*8192}\nbuffer_load_dword v{r}, v11, s[44:47], s37 offen {SC}")
      for p in range(4):
          A(f"s_add_u32 s37, s36, {p*16384 + 8192}\nbuffer_load_dword v{154+p}, v11, s[44:47], s37 offen {SC}")
      for p in range(4):
          A(f"s_add_u32 s37, s36, {p*16384 + 12288}\nbuffer_load_dword v{158+p}, v11, s[44:47], s37 offen {SC}")
    g64_loop(A, "P3G", 8, 2048, True, {1: (14, h1)})
    mprof(A, 7)
    A(f"""
    v_add_f32 v152, v152, v153
    v_add_f32 v162, v162, v163
    v_add_f32 v152, v152, v162
    v_add_f32 v154, v154, v155
    v_add_f32 v156, v156, v157
    v_add_f32 v158, v158, v159
    v_add_f32 v160, v160, v161
    v_add_f32 v154, v154, v156
    v_add_f32 v158, v158, v160
    v_cvt_pk_bf16_f32 v152, v152, v154
    v_cvt_pk_bf16_f32 v158, v158, v158
    v_and_b32 v154, 0xffff0000, v152       ; sb
    v_lshlrev_b32 v152, 16, v152           ; ga
    v_lshlrev_b32 v158, 16, v158
    v_add_f32 v158, 1.0, v158
    v_cvt_pk_bf16_f32 v158, v158, v158
    v_lshlrev_b32 v158, 16, v158           ; g2
    v_lshlrev_b32 v8, 2, v1
    v_add_u32 v8, {VEC}, v8
    ds_write_b32 v8, v152
    ds_write_b32 v8, v158 offset:256
    v_lshlrev_b32 v8, 1, v1
    v_add_u32 v8, {VEC}, v8
    ds_write_b16_d16_hi v8, v154 offset:512
    ds_write_b16_d16_hi v8, v158 offset:640
    """)
    g64_exchange(A, "P3G", TOP)
    GA, G2, SBP, G2P = 152, 168, 184, 192
    A(f"""
    v_lshrrev_b32 v9, 5, v1
    v_lshlrev_b32 v10, 4, v9
    s_lshl_b32 s36, s32, 7
    s_add_u32 s36, s36, {VEC}
    v_add_u32 v10, s36, v10
    v_lshlrev_b32 v11, 3, v9
    s_lshl_b32 s36, s32, 6
    s_add_u32 s36, s36, {VEC}
    v_add_u32 v11, s36, v11
    """)
    for jq in range(4):
        A(f"ds_read_b128 v[{GA+4*jq}:{GA+4*jq+3}], v10 offset:{jq*32}")
    for jq in range(4):
        A(f"ds_read_b128 v[{G2+4*jq}:{G2+4*jq+3}], v10 offset:{256 + jq*32}")
    for jq in range(4):
        A(f"ds_read_b64 v[{SBP+2*jq}:{SBP+2*jq+1}], v11 offset:{512 + jq*16}")
        A(f"ds_read_b64 v[{G2P+2*jq}:{G2P+2*jq+1}], v11 offset:{640 + jq*16}")
    A("v_permlane32_swap_b32 v144, v146\nv_permlane32_swap_b32 v145, v147\nv_permlane32_swap_b32 v148, v150\nv_permlane32_swap_b32 v149, v151")
    A(f"""
    s_lshl_b32 s36, s28, 2
    s_add_u32 s36, s36, s31
    s_lshl_b32 s36, s36, 6
    s_lshl_b32 s37, s29, 2
    s_add_u32 s36, s36, s37
    s_lshl_b32 s37, s32, 1
    s_add_u32 s36, s36, s37
    s_lshl_b32 s36, s36, 10
    v_mov_b32 v70, 0x3f803f80
    s_waitcnt lgkmcnt(8)
    """)
    for jq in range(4):
        for d in range(2):
            x = 144 + 2*jq + d
            r = 16 + 4*jq + 2*d
            t = 72 + 2*((2*jq+d) % 4)
            A(f"""
            v_lshlrev_b32 v{t}, 16, v{x}
            v_and_b32 v{t+1}, 0xffff0000, v{x}
            v_fma_f32 v{r}, v{r}, v{GA+4*jq+2*d}, v{t}
            v_fma_f32 v{r+1}, v{r+1}, v{GA+4*jq+2*d+1}, v{t+1}
            """)
    A("s_waitcnt lgkmcnt(0)")
    Z = 48
    for m in range(8):
        A(f"v_mul_f32 v{Z+2*m}, v{16+2*m}, v{G2+2*m}\nv_mul_f32 v{Z+2*m+1}, v{16+2*m+1}, v{G2+2*m+1}")
        A(f"v_cvt_pk_bf16_f32 v{X1R+m}, v{16+2*m}, v{16+2*m+1}")
    for m in range(8):
        A(f"v_cvt_pk_bf16_f32 v{40+m}, v{Z+2*m}, v{Z+2*m+1}")
    A(f"""
    buffer_store_dwordx4 v[40:43], v2, s[48:51], s36 offen {SC}
    buffer_store_dwordx4 v[44:47], v2, s[48:51], s36 offen offset:1024 {SC}
    """)
    S = 64
    for m in range(8):
        c = (lambda k: "0" if m == 0 else f"v{S+k}")
        A(f"""
        v_dot2_f32_bf16 v{S}, v{X1R+m}, v70, {c(0)}
        v_dot2_f32_bf16 v{S+1}, v{X1R+m}, v{X1R+m}, {c(1)}
        v_dot2_f32_bf16 v{S+2}, v{40+m}, v70, {c(2)}
        v_dot2_f32_bf16 v{S+3}, v{40+m}, v{G2P+m}, {c(3)}
        v_dot2_f32_bf16 v{S+4}, v{40+m}, v{40+m}, {c(4)}
        v_dot2_f32_bf16 v{S+5}, v{40+m}, v{SBP+m}, {c(5)}
        """)
    A("s_nop 2")
    for k in range(6):
        A(f"v_mov_b32 v{72+k}, v{S+k}")
    A("s_nop 1")
    for k in range(6):
        A(f"v_permlane32_swap_b32 v{S+k}, v{72+k}")
    A("s_nop 1")
    for k in range(6):
        A(f"v_add_f32 v{S+k}, v{S+k}, v{72+k}")
    A(f"""
    v_and_b32 v8, 31, v1
    v_lshlrev_b32 v8, 5, v8
    s_lshl_b32 s37, s31, 13
    s_add_u32 s37, s37, {TOP + 4096}
    v_add_u32 v8, s37, v8
    v_mov_b32 v{S+6}, 0
    v_mov_b32 v{S+7}, 0
    s_cmp_eq_u32 s32, 1
    s_cbranch_scc0 P3_ST0
    ds_write_b128 v8, v[{S}:{S+3}]
    ds_write_b128 v8, v[{S+4}:{S+7}] offset:16
    s_waitcnt lgkmcnt(0)
    s_barrier
    s_branch P3_STE
    P3_ST0:
    s_barrier
    ds_read_b128 v[72:75], v8
    ds_read_b128 v[76:79], v8 offset:16
    s_waitcnt lgkmcnt(0)
    """)
    for k in range(6):
        A(f"v_add_f32 v{S+k}, v{S+k}, v{72+k}")
    A(f"""
    v_cmp_lt_u32 vcc, 31, v1
    s_nop 1
    v_cndmask_b32 v{S}, v{S}, v{S+4}, vcc
    v_cndmask_b32 v{S+1}, v{S+1}, v{S+5}, vcc
    v_cndmask_b32 v{S+2}, v{S+2}, v{S+6}, vcc
    v_cndmask_b32 v{S+3}, v{S+3}, v{S+7}, vcc
    s_lshl_b32 s36, s28, 2
    s_add_u32 s36, s36, s31
    s_lshl_b32 s36, s36, 3
    s_lshr_b32 s37, s29, 1
    s_add_u32 s36, s36, s37
    s_lshl_b32 s36, s36, 11
    s_and_b32 s37, s29, 1
    s_lshl_b32 s37, s37, 9
    s_add_u32 s36, s36, s37
    v_and_b32 v8, 31, v1
    v_lshlrev_b32 v8, 4, v8
    v_lshrrev_b32 v9, 5, v1
    v_lshl_add_u32 v8, v9, 10, v8
    buffer_store_dwordx4 v[{S}:{S+3}], v8, s[24:27], s36 offen {SC}
    P3_STE:
    s_lshl_b32 s101, s28, 4
    s_add_u32 s101, s101, s29
    """)


def phase4(A):
    SLOT = 28672
    ACC, AF, BF = 16, 128, 184
    AX = 4*SLOT; BX = AX + 7168; AL = BX + 4096
    wg_map_224(A)
    srd(A, 8, PTR['w1'], 0, 1024*7168)
    srd(A, 12, 20, WS_Y, SZ_ACT)
    srd(A, 16, PTR['b1'], 0, 7168)
    srd(A, 24, 20, WS_HH, SZ_HH)
    A("s_cmp_ge_u32 s30, 4\ns_cbranch_scc1 P4_LOADER")
    A("s_waitcnt vmcnt(0)\ns_barrier")
    signal(A, F_Z, "s101", wave=0)
    A(f"""
    v_lshrrev_b32 v9, 5, v1            ; h
    s_lshl_b32 s34, s28, 2
    s_add_u32 s34, s34, s30
    s_lshl_b32 s34, s34, 16
    v_bfe_u32 v6, v1, 2, 2
    v_lshlrev_b32 v4, 6, v6
    v_bfe_u32 v5, v1, 4, 1
    v_lshl_add_u32 v4, v5, 5, v4
    v_and_b32 v7, 3, v1
    v_lshl_add_u32 v4, v7, 3, v4
    v_mul_u32_u24 v5, 1792, v9
    v_add_u32 v4, v4, v5
    v_add_u32 v3, {2*SLOT}, v4
    """)
    for i in range(112):
        A(f"v_mov_b32 v{ACC+i}, 0")
    A("s_barrier")
    mprof(A, 8)
    for n in range(8):
        if n == 4:
            A("s_add_u32 s34, s34, 4096")
        A(f"buffer_load_dwordx4 v[{BF+4*n}:{BF+4*n+3}], v2, s[12:15], s34 offen offset:{(n & 3)*1024} {SC}")
    A("s_add_u32 s34, s34, 4096")
    def areads(slot, ks, buf):
        va = "v4" if slot < 2 else "v3"
        base = (slot & 1)*SLOT + ks*7168
        out = []
        for ft in range(7):
            for e in range(2):
                r = AF + 28*buf + 4*ft + 2*e
                out.append(f"ds_read_b64_tr_b16 v[{r}:{r+1}], {va} offset:{base + e*3584 + ft*256}")
        return out
    for x in areads(0, 0, 0):
        A(x)
    A("s_mov_b32 s41, 4\nP4_LOOP:")
    n = 0
    for slot in range(4):
        A("s_barrier")
        for ks in range(4):
            buf = n % 2
            nslot, nks = (slot, ks+1) if ks < 3 else ((slot+1) % 4, 0)
            rd = areads(nslot, nks, 1-buf)
            b = BF + 4*(n % 8)
            A("s_waitcnt vmcnt(7) lgkmcnt(0)")
            for ft in range(7):
                a = AF + 28*buf + 4*ft
                c = ACC + 16*ft
                A(f"v_mfma_f32_32x32x16_bf16 v[{c}:{c+15}], v[{a}:{a+3}], v[{b}:{b+3}], v[{c}:{c+15}]")
                if ft < 5:
                    k = 3 if ft < 4 else 2
                    for x in rd[:k]:
                        A(x)
                    rd = rd[k:]
            A(f"buffer_load_dwordx4 v[{b}:{b+3}], v2, s[12:15], s34 offen offset:{(n & 3)*1024} {SC}")
            if n % 4 == 3:
                A("s_add_u32 s34, s34, 4096")
            n += 1
    A(f"""
    s_sub_u32 s41, s41, 1
    s_cmp_lg_u32 s41, 0
    s_cbranch_scc1 P4_LOOP
    s_waitcnt lgkmcnt(0)
    v_add_u32 v10, {AX}, v2
    """)
    for ft in range(7):
        A(f"ds_read_b128 v[{AF+4*ft}:{AF+4*ft+3}], v10 offset:{ft*1024}")
    A(f"""
    s_lshl_b32 s36, s30, 10
    v_add_u32 v11, s36, v10
    ds_read_b128 v[{AF+28}:{AF+31}], v11 offset:{BX-AX}
    v_and_b32 v11, 31, v1
    v_lshlrev_b32 v11, 2, v11
    s_lshl_b32 s36, s30, 7
    v_add_u32 v11, s36, v11
    v_add_u32 v11, {AL}, v11
    ds_read_b32 v12, v11
    s_waitcnt lgkmcnt(0)
    s_barrier
    """)
    for ft in range(7):
        c = ACC + 16*ft
        A(f"v_mfma_f32_32x32x16_bf16 v[{c}:{c+15}], v[{AF+4*ft}:{AF+4*ft+3}], v[{AF+28}:{AF+31}], v[{c}:{c+15}]")
    A("s_waitcnt vmcnt(0)\ns_nop 15")
    mprof(A, 9)
    A(f"s_mov_b32 s42, {f32(GELU_C1)}\ns_mov_b32 s43, {f32(GELU_C2)}\nv_mov_b32 v8, s42")
    A(f"""
    s_lshl_b32 s36, s28, 2
    s_add_u32 s36, s36, s30
    s_mul_i32 s36, s36, 224
    s_mul_i32 s37, s29, 14
    s_add_u32 s36, s36, s37
    s_lshl_b32 s36, s36, 10
    """)
    for ft in range(7):
        c = ACC + 16*ft
        T = 160; E = 176
        for i in range(16):
            A(f"v_mul_f32 v{c+i}, v{c+i}, v12")
        for i in range(16):
            A(f"v_mul_f32 v{T+i}, v{c+i}, v{c+i}")
        for i in range(16):
            A(f"v_fma_f32 v{T+i}, v{T+i}, s43, v8")
        for i in range(16):
            A(f"v_mul_f32 v{T+i}, v{T+i}, v{c+i}")
        for i in range(16):
            A(f"v_exp_f32 v{T+i}, v{T+i}")
        for i in range(16):
            A(f"v_add_f32 v{T+i}, 1.0, v{T+i}")
        for i in range(16):
            A(f"v_rcp_f32 v{T+i}, v{T+i}")
        for i in range(16):
            A(f"v_mul_f32 v{T+i}, v{T+i}, v{c+i}")
        P = E + 8*(ft % 2)
        for m in range(8):
            A(f"v_cvt_pk_bf16_f32 v{P+m}, v{T+2*m}, v{T+2*m+1}")
        for e in range(2):
            kidx = 2*ft + e
            if kidx % 4 == 0 and kidx > 0:
                A("s_add_u32 s36, s36, 4096")
            A(f"buffer_store_dwordx4 v[{P+4*e}:{P+4*e+3}], v2, s[24:27], s36 offen offset:{(kidx & 3)*1024} {SC}")
    A(f"""
    s_lshl_b32 s101, s28, 4
    s_add_u32 s101, s101, s29
    s_branch P4_DONE
    """)
    A(f"""
    P4_LOADER:
    s_sub_u32 s31, s30, 4              ; lw
    s_mul_i32 s36, s31, 28
    v_lshrrev_b32 v5, 4, v1            ; l>>4
    v_add_u32 v5, s36, v5
    v_bfe_u32 v6, v1, 2, 2             ; r
    v_and_b32 v7, 3, v1                ; c
    """)
    for u in range(7):
        A(f"""
        v_add_u32 v8, {4*u}, v5
        v_mul_u32_u24 v9, 9363, v8
        v_lshrrev_b32 v9, 16, v9           ; q
        v_mul_u32_u24 v10, 7, v9
        v_sub_u32 v10, v8, v10             ; ft
        v_lshl_add_u32 v9, v9, 2, v6       ; row = 4q + r
        v_mul_u32_u24 v9, 7168, v9
        v_lshl_add_u32 v9, v10, 6, v9
        v_lshl_add_u32 v{16+u}, v7, 4, v9
        """)
    A(f"""
    s_mul_i32 s33, s29, 448
    s_mul_i32 s39, s31, 7168
    """)
    Q = []
    def issue_stage(st):
        for u in range(7):
            A(f"s_add_u32 m0, s39, {(st % 4)*SLOT + u*1024}\ns_nop 0\nbuffer_load_dwordx4 v{16+u}, s[8:11], s33 offen lds")
        A(f"s_add_u32 s33, s33, {64*7168}")
        Q.extend([("W", st)]*7)
    def wait_tag(tag):
        idx = max(i for i, t in enumerate(Q) if t == tag)
        return len(Q) - 1 - idx
    issue_stage(0)
    issue_stage(1)
    A("s_waitcnt vmcnt(14)\ns_barrier")
    poll_by(A, 7, [("s56", 16)], [248], pre=f"s_lshl_b32 s56, s28, 11\ns_add_u32 s56, s56, {F_Z}")
    A(f"s_waitcnt vmcnt(7)\ns_barrier")
    issue_stage(2)
    srd(A, 44, 20, WS_ST, 0x100000)
    srd(A, 48, 20, WS_UVW, 2*UVW_P + 128)
    ST = 32; UV = 140
    A(f"""
    s_lshl_b32 s52, s28, 2
    s_add_u32 s52, s52, s31
    s_lshl_b32 s52, s52, 14            ; tile*16384
    v_and_b32 v8, 31, v1               ; f
    s_mul_i32 s36, s29, 224
    s_lshl_b32 s37, s31, 5
    s_add_u32 s36, s36, s37            ; F0 = j*224 + lw*32
    v_add_u32 v8, s36, v8              ; F
    v_lshlrev_b32 v14, 2, v8           ; F*4
    v_lshlrev_b32 v15, 1, v8           ; F*2
    v_mov_b32 v11, 0
    """)
    side = []
    for qp in range(16):
        pre = f"s_add_u32 s52, s52, 4096\n" if (qp and qp % 4 == 0) else ""
        side.append(pre + f"buffer_load_dwordx4 v[{ST+4*qp}:{ST+4*qp+3}], v2, s[44:47], s52 offen offset:{(qp & 3)*1024} {SC}")
    small = []
    for tsel in range(2):
        for p in range(2):
            for m in range(3):
                small.append(f"s_mov_b32 s53, {p*UVW_P + m*3584*4}\nbuffer_load_dword v{UV+8*tsel+4*p+m}, v14, s[48:51], s53 offen offset:{512*tsel} {SC}")
        small.append(f"buffer_load_ushort v{UV+8*tsel+3}, v15, s[16:19], 0 offen offset:{256*tsel}")
    for p in range(2):
        small.append(f"s_mov_b32 s53, {2*UVW_P + p*64}\nbuffer_load_dwordx4 v[{104+8*p}:{107+8*p}], v11, s[48:51], s53 offen {SC}")
        small.append(f"s_mov_b32 s53, {2*UVW_P + p*64}\nbuffer_load_dwordx4 v[{108+8*p}:{111+8*p}], v11, s[48:51], s53 offen offset:16 {SC}")
    def liter(i, nside=0):
        A(f"s_waitcnt vmcnt({wait_tag(('W', i+1))})\ns_barrier")
        if i + 3 < 16: issue_stage(i+3)
        for k in range(nside):
            if side:
                A(side.pop(0)); Q.append(("S", 0))
    for i in range(0, 6):
        liter(i, 2)
    liter(6, 2)
    dbg_srd(A, 4)
    cnt_load(A, C_UV, 248)
    Q.append(("F", 0))
    liter(7, 2)
    assert not side
    liter(8)
    A(f"s_waitcnt vmcnt({wait_tag(('F', 0))})")
    cnt_check_or_poll(A, [(C_UV, 248, 224)])
    h = len(small)//2
    for x in small[:h]:
        A(x); Q.append(("S", 0))
    liter(9)
    for x in small[h:]:
        A(x); Q.append(("S", 0))
    liter(10)
    A(f"s_waitcnt vmcnt({wait_tag(('S', 0))})")
    for k in range(8):
        A(f"v_add_f32 v{104+k}, v{104+k}, v{112+k}")
    for tsel in range(2):
        for m in range(3):
            A(f"v_add_f32 v{UV+8*tsel+m}, v{UV+8*tsel+m}, v{UV+8*tsel+4+m}")
    for q in range(1, 8):
        for e in range(4):
            A(f"v_add_f32 v{ST+e}, v{ST+e}, v{ST+8*q+e}")
        for e in range(2):
            A(f"v_add_f32 v{ST+4+e}, v{ST+4+e}, v{ST+8*q+4+e}")
    for k in range(6):
        A(f"v_mov_b32 v{112+k}, v{ST+k}")
    A("s_nop 1")
    for k in range(6):
        A(f"v_permlane32_swap_b32 v{ST+k}, v{112+k}")
    A("s_nop 1")
    for k in range(6):
        A(f"v_add_f32 v{ST+k}, v{ST+k}, v{112+k}")
    S1, S2, S3, S4, S5, S6 = [ST+k for k in range(6)]
    G2c, GS, G1c, SB2, SB1 = 104, 105, 106, 109, 110
    iD = f32(1/1024)
    A(f"""
    v_mul_f32 v112, {iD}, v{S1}            ; mu1
    v_mul_f32 v113, {iD}, v{S2}
    v_fma_f32 v113, -v112, v112, v113      ; var1
    v_add_f32 v113, {f32(1e-5)}, v113
    v_rsq_f32 v114, v113                   ; r1
    s_nop 0
    v_mul_f32 v115, v113, v114             ; 1/r1
    v_fma_f32 v116, -v112, v{G1c}, v{S3}
    v_fma_f32 v116, v116, v114, v{SB1}
    v_mul_f32 v116, {iD}, v116             ; m2
    v_mul_f32 v117, v112, v{G2c}
    v_fma_f32 v117, -2.0, v{S4}, v117
    v_fma_f32 v117, v117, v112, v{S5}
    v_mul_f32 v117, v117, v114
    v_fma_f32 v118, -v112, v{GS}, v{S6}
    v_fma_f32 v117, 2.0, v118, v117
    v_fma_f32 v117, v117, v114, v{SB2}
    v_mul_f32 v117, {iD}, v117             ; E2
    v_fma_f32 v117, -v116, v116, v117      ; var2
    v_add_f32 v117, {f32(1e-5)}, v117
    v_rsq_f32 v118, v117                   ; r2
    s_nop 0
    v_mul_f32 v119, v117, v118             ; 1/r2
    v_mul_f32 v120, v114, v118             ; alpha
    v_sub_f32 v121, 0, v112                ; c1 = -mu1
    v_mul_f32 v122, v116, v115
    v_sub_f32 v122, 0, v122                ; c3 = -m2/r1
    v_mul_f32 v123, v115, v119             ; c4 = 1/alpha
    """)
    split_hilo(A, 121, 124, 125, 8)
    split_hilo(A, 115, 126, 127, 8)
    split_hilo(A, 122, 128, 129, 8)
    split_hilo(A, 123, 130, 131, 8)
    def pk(dst, lo, hi):
        if lo is None and hi is None: A(f"v_mov_b32 v{dst}, 0")
        elif hi is None: A(f"v_lshrrev_b32 v{dst}, 16, v{lo}")
        else: A(f"v_lshrrev_b32 v{dst}, 16, v{lo}\nv_or_b32 v{dst}, v{dst}, v{hi}")
    pk(132, 124, 124); pk(133, 125, 126); pk(134, 126, 127); pk(135, 128, 128)
    pk(136, 129, 130); pk(137, 131, None); pk(138, None, None); pk(139, None, None)
    A(f"""
    v_cmp_lt_u32 vcc, 31, v1
    s_nop 1
    v_cndmask_b32 v132, v132, v136, vcc
    v_cndmask_b32 v133, v133, v137, vcc
    v_cndmask_b32 v134, v134, v138, vcc
    v_cndmask_b32 v135, v135, v139, vcc
    s_lshl_b32 s36, s31, 10
    v_add_u32 v10, s36, v2
    v_add_u32 v10, {BX}, v10
    ds_write_b128 v10, v[132:135]
    v_and_b32 v10, 31, v1
    v_lshlrev_b32 v10, 2, v10
    s_lshl_b32 s36, s31, 7
    v_add_u32 v10, s36, v10
    v_add_u32 v10, {AL}, v10
    ds_write_b32 v10, v120
    s_waitcnt lgkmcnt(0)
    """)
    liter(11)
    for tsel in range(2):
        u_, v_, w_, b_ = UV+8*tsel, UV+8*tsel+1, UV+8*tsel+2, UV+8*tsel+3
        split_hilo(A, u_, 124, 125, 8)
        split_hilo(A, v_, 126, 127, 8)
        split_hilo(A, w_, 128, 129, 8)
        A(f"v_lshlrev_b32 v130, 16, v{b_}")
        pk(132, 124, 125); pk(133, 124, 126); pk(134, 127, 126); pk(135, 128, 129)
        pk(136, 128, 130); pk(137, 130, None); pk(138, None, None); pk(139, None, None)
        A(f"""
        v_cndmask_b32 v132, v132, v136, vcc
        v_cndmask_b32 v133, v133, v137, vcc
        v_cndmask_b32 v134, v134, v138, vcc
        v_cndmask_b32 v135, v135, v139, vcc
        s_add_u32 s36, s31, {4*tsel}
        s_cmp_lt_u32 s36, 7
        s_cbranch_scc0 P4_NOAX{tsel}
        s_lshl_b32 s36, s36, 10
        v_add_u32 v10, s36, v2
        v_add_u32 v10, {AX}, v10
        ds_write_b128 v10, v[132:135]
        P4_NOAX{tsel}:
        """)
    A("s_waitcnt lgkmcnt(0)")
    for i in range(12, 15):
        liter(i)
    A("s_barrier")
    A("s_barrier")
    wg_map_64(A)
    srd(A, 8, PTR['w2'], 0, 3584*2048)
    A(f"""
    v_lshrrev_b32 v5, 5, v1
    v_bfe_u32 v6, v1, 2, 2
    v_lshl_add_u32 v5, v5, 2, v6
    v_mul_u32_u24 v3, 2048, v5
    v_bfe_u32 v5, v1, 4, 1
    v_lshl_add_u32 v3, v5, 6, v3
    v_and_b32 v7, 3, v1
    v_lshl_add_u32 v3, v7, 4, v3
    """)
    for kh in range(2):
        A(f"""
        s_lshl_b32 s36, s31, 4
        s_add_u32 s33, s36, {kh*1792}
        s_mul_i32 s33, s33, 2048
        s_lshl_b32 s36, s29, 7
        s_add_u32 s33, s33, s36
        s_lshl_b32 s39, s31, 11
        s_add_u32 s39, s39, {kh*8192}
        """)
        g64_w_prologue(A, 2048)
    A("P4_DONE:")


def phase5(A):
    A("s_waitcnt vmcnt(0)\ns_barrier")
    signal(A, F_HH, "s101", wave=0)
    wg_map_64(A)
    lane_setup(A)
    srd(A, 8, PTR['w2'], 0, 3584*2048)
    srd(A, 12, 20, WS_HH, SZ_HH)
    srd(A, 16, PTR['b2'], 0, 2048)
    srd(A, 24, PTR['out'], 0, 2048*2048)
    srd(A, 44, 20, 0, 0x18000)
    gemm64_setup(A, 3584, 2048, 224, perm=True)
    A(f"s_add_u32 s33, s33, {3*64*2048}")
    poll_by(A, 7, [("s56", 16)], [248], pre=f"s_lshl_b32 s56, s28, 11\ns_add_u32 s56, s56, {F_HH}")
    A("s_barrier")
    mprof(A, 10)
    g64_b_prologue(A)
    def h1(A):
      A(f"""
      v_lshlrev_b32 v11, 2, v1
      s_lshl_b32 s36, s29, 8
      s_add_u32 s36, s36, {0x10000 + 4096}
      buffer_load_dword v152, v11, s[44:47], s36 offen {SC}
      s_add_u32 s36, s36, 8192
      buffer_load_dword v153, v11, s[44:47], s36 offen {SC}
      s_add_u32 s36, s36, 8192
      buffer_load_dword v155, v11, s[44:47], s36 offen {SC}
      s_add_u32 s36, s36, 8192
      buffer_load_dword v156, v11, s[44:47], s36 offen {SC}
      v_lshlrev_b32 v11, 1, v1
      s_lshl_b32 s36, s29, 7
      buffer_load_ushort v154, v11, s[16:19], s36 offen
      """)
    g64_loop(A, "P5G", 28, 2048, True, {1: (5, h1)})
    A(f"""
    v_add_f32 v152, v152, v153
    v_add_f32 v155, v155, v156
    v_add_f32 v152, v152, v155
    v_cvt_pk_bf16_f32 v152, v152, v152
    v_lshlrev_b32 v152, 16, v152
    v_lshlrev_b32 v154, 16, v154
    v_lshlrev_b32 v155, 2, v1
    ds_write_b32 v155, v152 offset:32768
    ds_write_b32 v155, v154 offset:33024
    """)
    g64_exchange(A, "P5G", 0)
    A(f"""
    v_lshrrev_b32 v9, 5, v1
    v_lshlrev_b32 v9, 4, v9
    s_lshl_b32 s36, s32, 7
    v_add_u32 v9, s36, v9
    """)
    for jq in range(4):
        A(f"ds_read_b128 v[{152+4*jq}:{155+4*jq}], v9 offset:{32768 + jq*32}")
        A(f"ds_read_b128 v[{168+4*jq}:{171+4*jq}], v9 offset:{33024 + jq*32}")
    A("s_waitcnt lgkmcnt(0)")
    for jq in range(4):
        for d in range(2):
            x = X1R + 2*jq + d
            r = 16 + 4*jq + 2*d
            A(f"""
            v_add_f32 v{r}, v{r}, v{168+4*jq+2*d}
            v_add_f32 v{r+1}, v{r+1}, v{168+4*jq+2*d+1}
            v_lshlrev_b32 v8, 16, v{x}
            v_and_b32 v9, 0xffff0000, v{x}
            v_fma_f32 v{r}, v{r}, v{152+4*jq+2*d}, v8
            v_fma_f32 v{r+1}, v{r+1}, v{152+4*jq+2*d+1}, v9
            """)
    for m in range(8):
        A(f"v_cvt_pk_bf16_f32 v{32+m}, v{16+2*m}, v{16+2*m+1}")
    A(f"""
    s_nop 1
    v_permlane32_swap_b32 v32, v34
    v_permlane32_swap_b32 v33, v35
    v_permlane32_swap_b32 v36, v38
    v_permlane32_swap_b32 v37, v39
    v_and_b32 v8, 31, v1
    v_lshrrev_b32 v9, 5, v1
    v_lshlrev_b32 v10, 11, v8
    v_lshl_add_u32 v10, v9, 4, v10      ; t*2048 + h*16
    s_lshl_b32 s36, s28, 2
    s_add_u32 s36, s36, s31
    s_lshl_b32 s36, s36, 16
    s_lshl_b32 s37, s29, 7
    s_add_u32 s36, s36, s37
    s_lshl_b32 s37, s32, 6
    s_add_u32 s36, s36, s37
    buffer_store_dwordx4 v[32:35], v10, s[24:27], s36 offen
    buffer_store_dwordx4 v[36:39], v10, s[24:27], s36 offen offset:32
    """)


def gen_mega(A, name="mega_kernel"):
    kernel_begin(A, name)
    A(f"""
    s_cmp_ge_u32 s2, 256
    s_cbranch_scc1 MEGA_END
    s_load_dwordx16 s[64:79], s[0:1], 0
    s_load_dwordx8 s[80:87], s[0:1], 64       ; w2 b2 c wmod
    s_load_dwordx2 s[88:89], s[0:1], 96       ; out
    s_load_dwordx2 s[94:95], s[0:1], 104      ; dbg
    s_load_dwordx2 s[20:21], s[0:1], 112      ; ws
    s_memrealtime s[90:91]
    """)
    lane_setup(A)
    A("s_waitcnt lgkmcnt(0)")
    A("s_or_b32 s100, s90, 1")
    mprof(A, 0)
    srd(A, 96, 20, WS_FLAGS, FLAGS_SIZE)
    phase01(A)
    mprof(A, 1)
    phase2(A)
    phase3(A)
    phase4(A)
    phase5(A)
    if genlib.PROF: A("s_waitcnt vmcnt(0)")
    mprof(A, 11)
    mprof_dump(A)
    A("MEGA_END:\ns_endpgm")
    kernel_end(A, name, 256)
```

```python
from genlib import *
import genlib
from mega import *
from k_front import silu_regs, bf16_round_pairs

def token_wait(A, tag):
    A(f"""
    s_mov_b32 s57, 0
    TOKW{tag}:
    s_waitcnt vmcnt(0)
    v_readfirstlane_b32 s100, v250
    s_add_u32 s57, s57, 1
    s_cmp_gt_u32 s57, 400000
    s_cbranch_scc1 TOKD{tag}
    s_cmp_eq_u32 s100, 0
    s_cbranch_scc0 TOKD{tag}
    s_sleep 1
    buffer_load_dword v250, v251, s[8:11], 0 offen sc0 sc1
    s_branch TOKW{tag}
    TOKD{tag}:
    """)

def modjob_fma(A, wbase, sbase):
    for i in range(4):
        for d in range(4):
            w = wbase + 4*i + d
            A(f"""
            v_lshlrev_b32 v5, 16, v{w}
            v_and_b32 v6, 0xffff0000, v{w}
            v_fmac_f32 v{48+2*d}, v5, v{sbase+i}
            v_fmac_f32 v{49+2*d}, v6, v{sbase+i}
            """)

def modjob_reduce_store(A, SCR, tag, store_soff_lines, flag_idx, srd_s=24, fbase=None):
    A(f"""
    v_lshlrev_b32 v5, 5, v0
    v_add_u32 v5, {SCR}, v5
    ds_write_b128 v5, v[48:51]
    ds_write_b128 v5, v[52:55] offset:16
    s_waitcnt lgkmcnt(0)
    s_barrier
    v_and_b32 v6, 63, v0
    v_lshrrev_b32 v7, 6, v0
    v_lshlrev_b32 v5, 11, v7           ; part*8*256
    v_lshl_add_u32 v5, v6, 2, v5
    v_add_u32 v5, {SCR}, v5
    """)
    for r in range(8):
        A(f"ds_read_b32 v{56+r}, v5 offset:{r*256}")
    A("s_waitcnt lgkmcnt(0)")
    for st in (4, 2, 1):
        for i in range(st):
            A(f"v_add_f32 v{56+i}, v{56+i}, v{56+i+st}")
    A(f"""
    v_lshlrev_b32 v5, 2, v0
    v_add_u32 v6, {SCR}, v5
    ds_write_b32 v6, v56 offset:16384
    s_waitcnt lgkmcnt(0)
    s_barrier
    s_cmp_eq_u32 s30, 0
    s_cbranch_scc0 MJ_SKIP{tag}
    """)
    for r in range(8):
        A(f"ds_read_b32 v{56+r}, v6 offset:{16384 + r*256}")
    A("s_waitcnt lgkmcnt(0)")
    for st in (4, 2, 1):
        for i in range(st):
            A(f"v_add_f32 v{56+i}, v{56+i}, v{56+i+st}")
    A(store_soff_lines)
    A(f"buffer_store_dword v56, v5, s[{srd_s}:{srd_s+3}], s33 offen {SC}\ns_waitcnt vmcnt(0)")
    if fbase is None: signal(A, F_M0, flag_idx, wave=0)
    else: cnt_signal(A, fbase, wave=0)
    A(f"MJ_SKIP{tag}:")

def phase01(A):
    XR, WR, GR, RED = 0, 65536, 131072, 139264
    A(f"""
    s_mov_b32 s8, s{PTR['dbg']}
    s_mov_b32 s9, s{PTR['dbg']+1}
    s_mov_b32 s10, 256
    s_mov_b32 s11, 0x00020000
    v_mov_b32 v251, 0
    s_cmp_eq_u32 s2, 0
    s_cbranch_scc0 P0_NOTOK
    s_cmp_eq_u32 s30, 0
    s_cbranch_scc0 P0_NOTOK
    v_mov_b32 v250, s100
    v_cmp_eq_u32 vcc, 0, v1
    s_and_saveexec_b64 s[54:55], vcc
    buffer_store_dword v250, v251, s[8:11], 0 offen sc0 sc1
    s_mov_b64 exec, s[54:55]
    P0_NOTOK:
    s_cmp_ge_u32 s2, 128
    s_cbranch_scc1 P0_MOD
    """)
    A(f"""
    v_lshlrev_b32 v7, 4, v1        ; l*16
    v_and_b32 v3, 31, v0           ; t
    v_bfe_u32 v4, v0, 5, 1         ; h
    s_lshr_b32 s36, s2, 3          ; q
    s_and_b32 s32, s36, 1          ; typ
    s_lshr_b32 s36, s36, 1
    s_lshl_b32 s36, s36, 3
    s_and_b32 s31, s2, 7
    s_add_u32 s31, s31, s36
    """)
    srd(A, 40, PTR['x'], 0, 2048 * 2048)
    A(f"""
    v_lshrrev_b32 v5, 4, v1            ; j>>4
    v_and_b32 v6, 15, v1               ; p
    v_xor_b32 v6, v6, v5
    v_lshlrev_b32 v6, 4, v6
    v_lshl_add_u32 v5, v5, 11, v6      ; v_a
    s_lshl_b32 s33, s31, 16
    s_lshl_b32 s34, s30, 8
    s_add_u32 s33, s33, s34
    s_lshl_b32 s35, s30, 13            ; w*8192
    """)
    for i in range(8):
        A(f"""
        v_xor_b32 v6, {((4*i) & 15) << 4}, v5
        s_add_u32 m0, s35, {XR + i*1024}
        s_add_u32 s36, s33, {i*8192}
        buffer_load_dwordx4 v6, s[40:43], s36 offen lds
        """)
    A("buffer_load_dword v250, v251, s[8:11], 0 offen sc0 sc1")
    A(f"""
    s_cmp_eq_u32 s32, 0
    s_cselect_b32 s12, s{PTR['wk']}, s{PTR['wv']}
    s_cselect_b32 s13, s{PTR['wk']+1}, s{PTR['wv']+1}
    s_mov_b32 s14, 65536
    s_mov_b32 s15, 0x00020000
    """)
    srd(A, 16, 20, WS_MODP, 4 * 4096 * 4)
    srd(A, 24, 20, WS_H, SZ_ACT)
    A("s_cmp_eq_u32 s32, 0\ns_cselect_b32 s26, s26, 0")
    srd(A, 44, 20, WS_KV, 0x40000)
    XV = 64
    A(f"""
    v_and_b32 v9, 15, v3
    v_xor_b32 v9, v9, v4
    v_lshlrev_b32 v9, 4, v9
    v_lshl_add_u32 v9, v3, 8, v9       ; t*256 + ((h ^ (t&15))*16)
    v_add_u32 v9, s35, v9
    v_mov_b32 v12, 0
    v_mov_b32 v13, 0
    v_mov_b32 v14, 0x3f803f80
    v_mov_b32 v11, 0
    v_mov_b32 v15, 0
    """)
    token_wait(A, "LN")
    mprof(A, 12)
    for i in range(8):
        A(f"s_add_u32 m0, s35, {WR + i*1024}\ns_add_u32 s38, s35, {i*1024}\nbuffer_load_dwordx4 v7, s[12:15], s38 offen lds")
    for s_ in range(8):
        A(f"v_xor_b32 v10, {32*s_}, v9")
        A(f"ds_read_b128 v[{XV+4*s_}:{XV+4*s_+3}], v10")
    for s_ in range(8):
        A(f"s_waitcnt lgkmcnt({7-s_})")
        for d in range(4):
            r = XV + 4*s_ + d
            a1, a2 = (12, 13) if d % 2 == 0 else (11, 15)
            A(f"v_dot2_f32_bf16 v{a1}, v{r}, v14, v{a1}")
            A(f"v_dot2_f32_bf16 v{a2}, v{r}, v{r}, v{a2}")
    A(f"""
    s_nop 2
    v_add_f32 v12, v12, v11
    v_add_f32 v13, v13, v15
    v_mov_b32 v10, v12
    v_mov_b32 v11, v13
    s_nop 1
    v_permlane32_swap_b32 v12, v10
    v_permlane32_swap_b32 v13, v11
    s_nop 1
    v_add_f32 v12, v12, v10
    v_add_f32 v13, v13, v11
    v_lshlrev_b32 v10, 3, v3           ; t*8
    s_lshl_b32 s36, s30, 8
    v_add_u32 v11, s36, v10
    v_add_u32 v11, {RED}, v11
    ds_write_b64 v11, v[12:13]
    s_waitcnt lgkmcnt(0)
    s_barrier
    v_add_u32 v10, {RED}, v10
    """)
    for w_ in range(8):
        A(f"ds_read_b64 v[{16+2*w_}:{17+2*w_}], v10 offset:{w_*256}")
    A("s_waitcnt lgkmcnt(0)")
    for st in (4, 2, 1):
        for i in range(st):
            A(f"v_add_f32 v{16+2*i}, v{16+2*i}, v{16+2*(i+st)}\nv_add_f32 v{17+2*i}, v{17+2*i}, v{17+2*(i+st)}")
    A(f"""
    v_mul_f32 v16, {f32(1/1024)}, v16      ; mean
    v_mul_f32 v17, {f32(1/1024)}, v17      ; E[x^2]
    v_fma_f32 v17, -v16, v16, v17          ; var
    v_add_f32 v17, {f32(1e-5)}, v17
    v_rsq_f32 v12, v17                     ; a = rstd
    s_nop 0
    v_mul_f32 v13, v16, v12
    v_sub_f32 v13, 0, v13
    """)
    XN = 128
    for s_ in range(8):
        for d in range(4):
            r = XV + 4*s_ + d
            o = XN + 8*s_ + 2*d
            A(f"""
            v_lshlrev_b32 v{o}, 16, v{r}
            v_and_b32 v{o+1}, 0xffff0000, v{r}
            v_fma_f32 v{o}, v{o}, v12, v13
            v_fma_f32 v{o+1}, v{o+1}, v12, v13
            """)
    mprof(A, 13)
    poll_by(A, 7, [("s56", 64), ("s55", 64)], [248, 249], pre=f"s_mov_b32 s56, {F_M0}\ns_mov_b32 s55, {F_M0+64*FS}")
    A("s_barrier")
    mprof(A, 14)
    A(f"""
    v_lshlrev_b32 v8, 4, v3
    v_lshl_add_u32 v8, v4, 12, v8      ; t*16 + h*4096
    s_lshl_b32 s37, s30, 9             ; w*512
    """)
    for p in range(4):
        A(f"s_add_u32 s36, s37, {p*16384}\nbuffer_load_dwordx4 v[{16+4*p}:{19+4*p}], v8, s[16:19], s36 offen {SC}")
    A(f"""
    v_xor_b32 v21+0, 1, v4
    """.replace("v21+0", "v32"))
    A(f"""
    v_lshlrev_b32 v32, 12, v32         ; h? 0 : 4096
    v_lshl_add_u32 v32, v3, 4, v32
    s_lshl_b32 s36, s30, 9
    v_add_u32 v32, s36, v32
    v_add_u32 v32, {GR}, v32
    v_lshlrev_b32 v10, 5, v4
    v_add_u32 v10, s36, v10
    v_add_u32 v10, {GR}, v10               ; GR + w*512 + h*32
    v_cvt_f32_u32 v33, v4
    s_lshl_b32 s36, s31, 16
    s_lshl_b32 s37, s30, 13
    s_add_u32 s36, s36, s37            ; (tt*64 + 8w)*1024
    s_add_u32 s37, s36, 4096
    s_waitcnt vmcnt(0)
    """)
    for e in range(4):
        A(f"v_add_f32 v{16+e}, v{16+e}, v{20+e}\nv_add_f32 v{24+e}, v{24+e}, v{28+e}")
    for e in range(4):
        A(f"v_add_f32 v{16+e}, v{16+e}, v{24+e}")
    bf16_round_pairs(A, [16, 17, 18, 19], 20)
    for e in range(4):
        A(f"v_add_f32 v{16+e}, v33, v{16+e}")
    bf16_round_pairs(A, [16, 17, 18, 19], 20)
    A("ds_write_b128 v32, v[16:19]")
    def gread(s_):
        b = 16 + 16*(s_ & 1)
        A(f"ds_read_b128 v[{b}:{b+3}], v10 offset:{s_*64}")
        A(f"ds_read_b128 v[{b+4}:{b+7}], v10 offset:{s_*64+16}")
        A(f"ds_read_b128 v[{b+8}:{b+11}], v10 offset:{4096+s_*64}")
        A(f"ds_read_b128 v[{b+12}:{b+15}], v10 offset:{4096+s_*64+16}")
    A("s_waitcnt lgkmcnt(0)")
    gread(0)
    for s_ in range(8):
        if s_ < 7:
            gread(s_+1)
            A("s_waitcnt lgkmcnt(4)")
        else:
            A("s_waitcnt lgkmcnt(0)")
        b = 16 + 16*(s_ & 1)
        for d in range(4):
            o = XN + 8*s_ + 2*d
            A(f"""
            v_fma_f32 v{o}, v{o}, v{b+2*d}, v{b+8+2*d}
            v_fma_f32 v{o+1}, v{o+1}, v{b+2*d+1}, v{b+8+2*d+1}
            """)
        for d in range(4):
            o = XN + 8*s_ + 2*d
            A(f"v_cvt_pk_bf16_f32 v{XV+4*s_+d}, v{o}, v{o+1}")
        A(f"buffer_store_dwordx4 v[{XV+4*s_}:{XV+4*s_+3}], v7, s[24:27], s{36 if s_ < 4 else 37} offen offset:{(s_ & 3)*1024} {SC}")
    WV = 96
    A(f"""
    v_bfe_u32 v10, v1, 2, 2            ; r
    v_lshlrev_b32 v10, 6, v10
    v_bfe_u32 v11, v1, 4, 1            ; G
    v_lshl_add_u32 v10, v11, 5, v10
    v_and_b32 v11, 3, v1
    v_lshl_add_u32 v10, v11, 3, v10
    v_lshl_add_u32 v10, v4, 9, v10     ; + h*512
    v_add_u32 v10, s35, v10
    v_add_u32 v10, {WR}, v10
    """)
    for s_ in range(8):
        for e in range(2):
            A(f"ds_read_b64_tr_b16 v[{WV+4*s_+2*e}:{WV+4*s_+2*e+1}], v10 offset:{s_*1024+e*256}")
    AC = 16
    A("s_waitcnt lgkmcnt(0)\ns_cmp_eq_u32 s32, 0\ns_cbranch_scc0 K1_V")
    for s_ in range(8):
        c = "0" if s_ == 0 else f"v[{AC}:{AC+15}]"
        A(f"v_mfma_f32_32x32x16_bf16 v[{AC}:{AC+15}], v[{WV+4*s_}:{WV+4*s_+3}], v[{XV+4*s_}:{XV+4*s_+3}], {c}")
    A("s_branch K1_RED\nK1_V:")
    for s_ in range(8):
        c = "0" if s_ == 0 else f"v[{AC}:{AC+15}]"
        A(f"v_mfma_f32_32x32x16_bf16 v[{AC}:{AC+15}], v[{XV+4*s_}:{XV+4*s_+3}], v[{WV+4*s_}:{WV+4*s_+3}], {c}")
    A(f"""
    K1_RED:
    s_nop 15
    v_add_u32 v10, s35, v7             ; w*8192 + l*16
    """)
    for jq in range(4):
        A(f"ds_write_b128 v10, v[{AC+4*jq}:{AC+4*jq+3}] offset:{jq*1024}")
    A(f"""
    s_waitcnt vmcnt(0) lgkmcnt(0)
    s_barrier
    """)
    mprof(A, 15)
    u = uid()
    A(f"s_cmp_eq_u32 s32, 0\ns_cbranch_scc0 P1NH{u}")
    signal(A, F_H, "s31", wave=7)
    A(f"P1NH{u}:")
    A(f"""
    s_cmp_ge_u32 s30, 2
    s_cbranch_scc1 P1_KVSKIP
    s_lshl_b32 s36, s30, 11            ; e*2048  (jq = 2e, 2e+1)
    v_add_u32 v10, s36, v7
    """)
    for w_ in range(8):
        A(f"ds_read_b128 v[{32+8*w_}:{35+8*w_}], v10 offset:{w_*8192}")
        A(f"ds_read_b128 v[{36+8*w_}:{39+8*w_}], v10 offset:{w_*8192+1024}")
    A("s_waitcnt lgkmcnt(0)")
    for st in (4, 2, 1):
        for i in range(st):
            for e in range(8):
                A(f"v_add_f32 v{32+8*i+e}, v{32+8*i+e}, v{32+8*(i+st)+e}")
    for m in range(4):
        A(f"v_cvt_pk_bf16_f32 v{32+m}, v{32+2*m}, v{33+2*m}")
    A(f"""
    s_lshl_b32 s36, s31, 12            ; tt*4096
    s_lshl_b32 s37, s32, 11
    s_add_u32 s36, s36, s37
    s_lshl_b32 s37, s30, 10
    s_add_u32 s36, s36, s37
    buffer_store_dwordx4 v[32:35], v7, s[44:47], s36 offen {SC}
    P1_KVSKIP:
    s_waitcnt vmcnt(0)
    s_barrier
    """)
    cnt_signal(A, C_KV, wave=0)
    A("s_branch P1_DONE")
    SCR = 65536
    A("P0_MOD:")
    srd(A, 12, PTR['wmod'], 0, 1024 * 12288)
    srd(A, 16, PTR['c'], 0, 2048)
    srd(A, 24, 20, WS_MODP, 4 * 4096 * 4)
    A(f"""
    s_sub_u32 s31, s2, 128         ; b'
    s_lshr_b32 s22, s31, 2         ; cb (0..31)
    s_and_b32 s23, s31, 3          ; ks
    v_lshrrev_b32 v8, 3, v0        ; rg (0..63)
    v_and_b32 v9, 7, v0            ; cc
    v_mul_u32_u24 v3, 12288, v8
    v_lshl_add_u32 v3, v9, 4, v3   ; w voffset
    v_lshlrev_b32 v4, 1, v8        ; c voffset
    s_mul_i32 s33, s23, {256*12288}
    s_lshl_b32 s34, s22, 7
    s_add_u32 s33, s33, s34
    s_add_u32 s35, s33, {3072*2}
    s_lshl_b32 s34, s23, 9         ; c soffset
    """)
    for i in range(4):
        A(f"buffer_load_ushort v{12+i}, v4, s[16:19], s34 offen offset:{i*128}")
    for i in range(4):
        A(f"buffer_load_dwordx4 v[{16+4*i}:{19+4*i}], v3, s[12:15], s33 offen nt")
        if i < 3: A(f"s_add_u32 s33, s33, {64*12288}")
    A("buffer_load_dword v250, v251, s[8:11], 0 offen sc0 sc1")
    for j in range(8):
        A(f"v_mov_b32 v{48+j}, 0")
    A("s_waitcnt vmcnt(5)")
    silu_regs(A, [12, 13, 14, 15], 56)
    A("s_waitcnt vmcnt(1)")
    modjob_fma(A, 16, 12)
    token_wait(A, "M")
    def jobB_loads():
        A("s_mov_b32 s36, s35")
        for i in range(4):
            A(f"buffer_load_dwordx4 v[{32+4*i}:{35+4*i}], v3, s[12:15], s36 offen nt")
            if i < 3: A(f"s_add_u32 s36, s36, {64*12288}")
    A("s_cmp_eq_u32 s30, 0\ns_cbranch_scc1 MJB_LATE")
    jobB_loads()
    A("MJB_LATE:")
    modjob_reduce_store(A, SCR, "A", "s_lshl_b32 s33, s23, 14\ns_lshl_b32 s34, s22, 8\ns_add_u32 s33, s33, s34", "s31")
    mprof(A, 12)
    A("s_cmp_eq_u32 s30, 0\ns_cbranch_scc0 MJB_EARLY")
    jobB_loads()
    A("MJB_EARLY:")
    A(f"""
    s_mul_i32 s36, s23, {256*12288}
    s_lshl_b32 s37, s22, 7
    s_add_u32 s36, s36, s37
    s_mov_b32 s37, {2048*2}
    s_cmp_ge_u32 s22, 16
    s_cselect_b32 s37, {4096*2}, s37
    s_add_u32 s36, s36, s37
    """)
    for i in range(4):
        A(f"buffer_load_dwordx4 v[{64+4*i}:{67+4*i}], v3, s[12:15], s36 offen nt")
        if i < 3: A(f"s_add_u32 s36, s36, {64*12288}")
    for j in range(8):
        A(f"v_mov_b32 v{48+j}, 0")
    A("s_waitcnt vmcnt(4)")
    modjob_fma(A, 32, 12)
    A("s_barrier")
    A("s_add_u32 s38, s31, 128")
    modjob_reduce_store(A, SCR, "B", f"s_lshl_b32 s33, s23, 14\ns_lshl_b32 s34, s22, 8\ns_add_u32 s33, s33, s34\ns_add_u32 s33, s33, {2048*4}", "s38", fbase=C_M0B)
    mprof(A, 13)
    srd(A, 56, PTR['wq'], 0, 1024*2048)
    srd(A, 44, 20, WS_MODR, 4 * 2048 * 4)
    A(f"""
    s_lshr_b32 s36, s31, 3         ; idx16
    s_lshl_b32 s36, s36, 6
    s_lshl_b32 s37, s30, 3
    s_add_u32 s36, s36, s37
    s_lshl_b32 s36, s36, 11        ; row*2048
    s_and_b32 s37, s2, 7
    s_lshr_b32 s37, s37, 2
    s_lshl_b32 s37, s37, 10
    s_add_u32 s36, s36, s37
    v_and_b32 v5, 63, v0
    v_lshrrev_b32 v6, 3, v5
    v_lshlrev_b32 v6, 11, v6
    v_and_b32 v5, 7, v5
    v_lshl_add_u32 v5, v5, 7, v6
    buffer_load_dword v100, v5, s[56:59], s36 offen
    """)
    for j in range(8):
        A(f"v_mov_b32 v{48+j}, 0")
    A("s_waitcnt vmcnt(1)")
    modjob_fma(A, 64, 12)
    A("s_barrier")
    modjob_reduce_store(A, SCR, "C", f"s_lshl_b32 s33, s23, 13\ns_lshl_b32 s34, s22, 8\ns_add_u32 s33, s33, s34", "s31", srd_s=44, fbase=C_MR)
    A("s_waitcnt vmcnt(0)\ns_barrier")
    A("P1_DONE:")
```

```python
import sys
sys.path.insert(0, "work")
from genlib import *
import k_front, k_gemm, k_mlp1, k_attn

HEADER = open("adaLN_cond__grouped_kv_mqa__mixer_channel_mlp__prompt.s.ref").read().split("; Override launch")[0]

def build(launches, gens):
    A = Asm()
    txt = HEADER
    for (k, g, b, l) in launches:
        txt += f"; @launch kernel={k} grid=({g},1,1) block=({b},1,1) lds={l}\n"
    txt += '.amdgcn_target "amdgcn-amd-amdhsa--gfx950"\n'
    for g in gens:
        g(A)
    return txt + A.text()

def v1():
    launches = [("k0_mod_kernel", 256, 256, 9216), ("k1_lnkv_kernel", 256, 512, 144384), ("k2_attn_kernel", 256, 512, 131136),
                ("k3_wo_kernel", 256, 512, 65536), ("k5_mlp1_kernel", 256, 512, 126464),
                ("k6_mlp2_kernel", 256, 512, 65536)]
    gens = [k_front.gen_k0, k_front.gen_k1, k_attn.gen_k2, k_gemm.gen_k3, k_mlp1.gen_k5, k_gemm.gen_k6]
    return build(launches, gens)

def vmega():
    import mega_main
    name = "adaLN_cond__grouped_kv_mqa__mixer_channel_mlp__prompt_kernel"
    A = Asm()
    mega_main.gen_mega(A, name)
    return HEADER + "; Override launch geometry: single persistent kernel\n; @launch grid=(256,1,1) block=(512,1,1) lds=163840\n" + '.amdgcn_target "amdgcn-amd-amdhsa--gfx950"\n' + A.text()

if __name__ == "__main__":
    import genlib, os
    genlib.PROF = bool(os.environ.get("PROF"))
    genlib.PROFSET = os.environ.get("PROFSET", "front")
    for kv in os.environ.get("OPT", "").split(","):
        if kv:
            k, v = kv.split("="); k_gemm.OPT[k] = int(v)
    out = sys.argv[1] if len(sys.argv) > 1 else "adaLN_cond__grouped_kv_mqa__mixer_channel_mlp__prompt.s"
    open(out, "w").write(vmega() if os.environ.get("MEGA") else v1())
    print("written", out)
```

```python
from genlib import *
import genlib
from mega import *
from mega_p1 import phase01
from k_gemm import OPT

X1R = 240


UV_W, UV_VEC, UV_RED = 65536, 98304, 102400

def uvw_issue(A):
    srd(A, 40, PTR['w1'], 0, 1024*7168)
    srd(A, 44, 20, 0, 0x18000)
    A(f"""
    s_lshr_b32 s60, s2, 1              ; ft
    s_and_b32 s61, s2, 1               ; kh
    s_lshl_b32 s36, s61, 9
    s_lshl_b32 s37, s30, 6
    s_add_u32 s36, s36, s37            ; k0 = 512kh + 64w
    s_mul_i32 s37, s36, 7168
    s_lshl_b32 s38, s60, 6
    s_add_u32 s37, s37, s38            ; W1 soffset
    s_cmp_lt_u32 s2, 224
    s_cselect_b32 s37, s37, 0x7f000000
    v_lshrrev_b32 v8, 2, v1
    v_mul_u32_u24 v8, 7168, v8
    v_and_b32 v9, 3, v1
    v_lshl_add_u32 v8, v9, 4, v8
    s_lshl_b32 s38, s30, 12
    s_add_u32 s38, s38, {UV_W}
    """)
    for i in range(4):
        A(f"s_add_u32 m0, s38, {i*1024}\ns_nop 0\nbuffer_load_dwordx4 v8, s[40:43], s37 offen lds\ns_add_u32 s37, s37, {16*7168}")
    A(f"""
    v_and_b32 v9, 15, v1
    v_lshlrev_b32 v9, 4, v9
    v_bfe_u32 v10, v1, 4, 1
    v_lshl_add_u32 v9, v10, 12, v9
    s_lshl_b32 s36, s36, 2
    s_add_u32 s36, s36, {2048*4}
    """)
    for p in range(4):
        A(f"s_add_u32 s37, s36, {p*16384}\nbuffer_load_dwordx4 v[{176+4*p}:{179+4*p}], v9, s[44:47], s37 offen {SC}")

def uvw_compute(A):
    srd(A, 40, 20, WS_UVW, 2*UVW_P + 128)
    A(f"""
    v_add_f32 v176, v176, v180
    v_add_f32 v177, v177, v181
    v_add_f32 v178, v178, v182
    v_add_f32 v179, v179, v183
    v_add_f32 v184, v184, v188
    v_add_f32 v185, v185, v189
    v_add_f32 v186, v186, v190
    v_add_f32 v187, v187, v191
    v_add_f32 v176, v176, v184
    v_add_f32 v177, v177, v185
    v_add_f32 v178, v178, v186
    v_add_f32 v179, v179, v187
    """)
    bf16_round_pairs(A, [176, 177, 178, 179], 180)
    A(f"""
    v_bfe_u32 v10, v1, 4, 1
    v_cvt_f32_u32 v180, v10
    v_add_f32 v176, v180, v176
    v_add_f32 v177, v180, v177
    v_add_f32 v178, v180, v178
    v_add_f32 v179, v180, v179
    v_cvt_pk_bf16_f32 v176, v176, v177
    v_cvt_pk_bf16_f32 v177, v178, v179
    v_xor_b32 v10, 1, v10
    v_lshlrev_b32 v10, 7, v10
    v_and_b32 v9, 15, v1
    v_lshl_add_u32 v10, v9, 3, v10
    s_lshl_b32 s36, s30, 8
    s_add_u32 s36, s36, {UV_VEC}
    v_add_u32 v10, s36, v10
    ds_write_b64 v10, v[176:177]
    v_and_b32 v9, 31, v1               ; t
    v_lshrrev_b32 v11, 5, v1           ; h
    v_min_u32 v10, 1, v9
    v_lshlrev_b32 v10, 7, v10
    v_lshl_add_u32 v10, v11, 4, v10
    v_add_u32 v10, s36, v10
    v_bfe_u32 v8, v1, 2, 2
    v_lshlrev_b32 v8, 6, v8
    v_bfe_u32 v12, v1, 4, 1
    v_lshl_add_u32 v8, v12, 5, v8
    v_and_b32 v12, 3, v1
    v_lshl_add_u32 v8, v12, 3, v8
    v_lshl_add_u32 v8, v11, 9, v8
    s_lshl_b32 s37, s30, 12
    s_add_u32 s37, s37, {UV_W}
    v_add_u32 v8, s37, v8
    v_cmp_eq_u32 vcc, 2, v9
    v_cmp_lt_u32 s[62:63], v9, 2
    v_mov_b32 v12, 0x3f803f80
    v_mov_b32 v13, 0
    s_waitcnt lgkmcnt(0)
    """)
    BV, AV = 176, 192
    for s_ in range(4):
        A(f"ds_read_b128 v[{BV+4*s_}:{BV+4*s_+3}], v10 offset:{s_*32}")
    for s_ in range(4):
        for e in range(2):
            A(f"ds_read_b64_tr_b16 v[{AV+4*s_+2*e}:{AV+4*s_+2*e+1}], v8 offset:{s_*1024 + e*256}")
    A("v_cndmask_b32 v12, v13, v12, vcc\ns_waitcnt lgkmcnt(0)")
    for i in range(16):
        A(f"v_cndmask_b32 v{BV+i}, v12, v{BV+i}, s[62:63]")
    A("s_nop 1")
    for s_ in range(4):
        cc = "0" if s_ == 0 else "v[208:223]"
        A(f"v_mfma_f32_32x32x16_bf16 v[208:223], v[{AV+4*s_}:{AV+4*s_+3}], v[{BV+4*s_}:{BV+4*s_+3}], {cc}")
        cc = "0" if s_ == 0 else "v[224:239]"
        A(f"v_mfma_f32_32x32x16_bf16 v[224:239], v[{BV+4*s_}:{BV+4*s_+3}], v[{BV+4*s_}:{BV+4*s_+3}], {cc}")
    A(f"""
    s_nop 15
    v_cmp_gt_u32 vcc, 4, v9
    s_and_saveexec_b64 s[54:55], vcc
    v_lshlrev_b32 v10, 7, v9           ; t*128
    v_lshl_add_u32 v10, v11, 4, v10    ; + h*16
    s_lshl_b32 s36, s30, 9
    s_add_u32 s36, s36, {UV_RED}
    v_add_u32 v10, s36, v10
    """)
    for jq in range(4):
        A(f"ds_write_b128 v10, v[{208+4*jq}:{211+4*jq}] offset:{jq*32}")
    A(f"""
    v_lshlrev_b32 v10, 4, v9
    s_lshl_b32 s36, s30, 6
    s_add_u32 s36, s36, {UV_RED + 4096}
    v_add_u32 v10, s36, v10
    v_cmp_eq_u32 vcc, 0, v11
    s_and_b64 exec, exec, vcc
    ds_write_b128 v10, v[224:227]
    s_mov_b64 exec, s[54:55]
    s_waitcnt lgkmcnt(0)
    s_barrier
    s_cmp_eq_u32 s30, 1
    s_cbranch_scc0 UV_NG
    s_cmp_eq_u32 s60, 0
    s_cbranch_scc0 UV_END
    v_lshlrev_b32 v10, 2, v1
    v_add_u32 v8, {UV_RED + 4096}, v10
    """)
    for w_ in range(8):
        A(f"ds_read_b32 v{176+w_}, v8 offset:{w_*64}")
    A("s_waitcnt lgkmcnt(0)")
    for st in (4, 2, 1):
        for i in range(st):
            A(f"v_add_f32 v{176+i}, v{176+i}, v{176+i+st}")
    A(f"""
    s_lshl_b32 s36, s61, 6
    s_add_u32 s36, s36, {2*UVW_P}
    v_cmp_gt_u32 vcc, 16, v1
    s_and_saveexec_b64 s[54:55], vcc
    buffer_store_dword v176, v10, s[40:43], s36 offen {SC}
    s_mov_b64 exec, s[54:55]
    s_branch UV_END
    UV_NG:
    s_cmp_lt_u32 s30, 4
    s_cbranch_scc0 UV_END
    s_cmp_lt_u32 s2, 224
    s_cbranch_scc0 UV_END
    s_cmp_eq_u32 s30, 0
    s_cselect_b32 s37, 0, s30
    s_sub_u32 s38, s37, 1
    s_cselect_b32 s37, 0, s38          ; t = (w==0) ? 0 : w-1
    v_and_b32 v9, 31, v1
    v_lshlrev_b32 v10, 2, v9
    s_lshl_b32 s36, s37, 7
    s_add_u32 s36, s36, {UV_RED}
    v_add_u32 v8, s36, v10
    """)
    for w_ in range(8):
        A(f"ds_read_b32 v{176+w_}, v8 offset:{w_*512}")
    A("s_waitcnt lgkmcnt(0)")
    for st in (4, 2, 1):
        for i in range(st):
            A(f"v_add_f32 v{176+i}, v{176+i}, v{176+i+st}")
    A(f"""
    s_mul_i32 s36, s61, {UVW_P}
    s_mul_i32 s38, s37, {3584*4}
    s_add_u32 s36, s36, s38
    s_lshl_b32 s38, s60, 7
    s_add_u32 s36, s36, s38
    v_cmp_gt_u32 vcc, 32, v1
    s_and_saveexec_b64 s[54:55], vcc
    buffer_store_dword v176, v10, s[40:43], s36 offen {SC}
    s_mov_b64 exec, s[54:55]
    UV_END:
    """)


def phase2(A):
    SB = [65536, 98304, 0]
    FLAG = 131072
    wg_map_64(A)
    lane_setup(A)
    srd(A, 8, PTR['wq'], 0, 1024*2048)
    srd(A, 12, 20, WS_H, SZ_ACT)
    srd(A, 16, 20, WS_KV, 0x40000)
    srd(A, 24, 20, WS_O, SZ_ACT)
    gemm64_setup(A, 1024, 2048, 64, perm=False)
    g64_w_prologue(A, 2048)
    A(f"""
    v_mov_b32 v5, {FLAG}
    v_mov_b32 v6, 0
    ds_write_b32 v5, v6
    s_lshl_b32 s42, s30, 12            ; w*4096
    """)
    A(f"""
    s_lshr_b32 s52, s2, 3              ; idx
    s_and_b32 s53, s2, 7               ; xcd
    v_lshrrev_b32 v5, 3, v1
    v_lshlrev_b32 v5, 11, v5
    v_and_b32 v6, 7, v1
    v_lshl_add_u32 v5, v6, 7, v5       ; (l>>3)*2048 + (l&7)*128
    s_lshl_b32 s36, s52, 5
    s_lshl_b32 s37, s30, 3
    s_add_u32 s36, s36, s37
    s_lshl_b32 s36, s36, 11
    s_lshr_b32 s37, s53, 2
    s_lshl_b32 s37, s37, 10
    s_add_u32 s36, s36, s37
    v_add_u32 v5, s36, v5
    v_lshrrev_b32 v6, 4, v1
    v_mul_u32_u24 v6, 7168, v6
    v_and_b32 v7, 15, v1
    v_min_u32 v7, 13, v7
    v_lshl_add_u32 v6, v7, 7, v6
    s_xor_b32 s37, s30, 4              ; u
    s_lshl_b32 s37, s37, 2
    s_lshl_b32 s36, s52, 5
    s_add_u32 s36, s36, s37
    s_mul_i32 s36, s36, 7168
    s_lshr_b32 s37, s53, 1
    s_mul_i32 s37, s37, 1792
    s_add_u32 s36, s36, s37
    v_add_u32 v6, s36, v6              ; W1 offset
    s_mul_i32 s36, s2, 224
    s_sub_u32 s37, s30, 4
    s_and_b32 s37, s37, 3
    s_lshl_b32 s37, s37, 6
    s_add_u32 s36, s36, s37
    v_add_u32 v7, s36, v1
    v_min_u32 v7, 57343, v7
    v_lshlrev_b32 v7, 7, v7            ; W2 offset
    s_cmp_lt_u32 s30, 4
    s_cselect_b32 s60, s{PTR['wo']}, s{PTR['w1']}
    s_cselect_b32 s61, s{PTR['wo']+1}, s{PTR['w1']+1}
    s_cselect_b32 s62, s{PTR['w1']}, s{PTR['w2']}
    s_cselect_b32 s63, s{PTR['w1']+1}, s{PTR['w2']+1}
    s_cselect_b64 vcc, -1, 0
    s_nop 1
    v_cndmask_b32 v168, v6, v5, vcc    ; A: w<4 ? Wo : W1
    v_cndmask_b32 v169, v7, v6, vcc    ; B: w<4 ? W1 : W2
    """)
    poll_by(A, 7, [("s56", 4)], [248], pre=f"s_lshl_b32 s56, s28, 9\ns_add_u32 s56, s56, {F_H}")
    dbg_srd(A, 4)
    A("s_barrier")
    mprof(A, 2)
    g64_b_prologue(A)
    def kv_issue(lds_const, stage):
        A(f"s_add_u32 m0, s42, {lds_const}\ns_add_u32 s36, s42, {stage*32768}")
        for q in range(4):
            A(f"buffer_load_dwordx4 v2, s[16:19], s36 offen offset:{q*1024} {SC} lds")
    def h0(A):
        cnt_load(A, C_KV, 172)
        cnt_load(A, C_M0B, 173)
    def pre2(A):
        cnt_check_or_poll(A, [(C_KV, 172, 128), (C_M0B, 173, 128)])
    def h2(A):
        kv_issue(SB[0], 0)
        kv_issue(SB[1], 1)
    g64_loop(A, "P2G", 8, 2048, False, {0: (2, h0), "pre2": pre2, "pre2_need": ("h0", 0), 2: (8, h2)})
    mprof(A, 3)
    g64_exchange(A, "P2G", 0)
    Q, C, S0, S1, P, O, Lr, SEL = 48, 56, 72, 88, 104, 112, 128, 132
    KF = [136, 144]; VF = [152, 160]
    SS = [S0, S1]
    qs = (32 ** -0.5) * LOG2E
    for i in range(16):
        A(f"v_mul_f32 v{16+i}, {f32(qs)}, v{16+i}")
    for m in range(8):
        A(f"v_cvt_pk_bf16_f32 v{Q+m}, v{16+2*m}, v{16+2*m+1}")
    A(f"""
    v_add_u32 v5, {SB[0]}, v2
    ds_read_b128 v[{KF[0]}:{KF[0]+3}], v5
    ds_read_b128 v[{KF[0]+4}:{KF[0]+7}], v5 offset:1024
    v_and_b32 v5, 3, v1
    v_bfe_u32 v6, v1, 2, 1
    v_bfe_u32 v7, v1, 4, 1
    v_xor_b32 v6, v6, v7
    v_or_b32 v5, v5, v6
    v_cmp_eq_u32 vcc, 0, v5
    v_mov_b32 v6, 0x3f803f80
    v_mov_b32 v5, 0
    s_mov_b32 s44, 0                   ; mode
    s_nop 0
    v_cndmask_b32 v{SEL}, v5, v6, vcc
    s_waitcnt lgkmcnt(0)
    v_mfma_f32_32x32x16_bf16 v[{S0}:{S0+15}], v[{KF[0]}:{KF[0]+3}], v[{Q}:{Q+3}], 0
    v_mfma_f32_32x32x16_bf16 v[{S0}:{S0+15}], v[{KF[0]+4}:{KF[0]+7}], v[{Q+4}:{Q+7}], v[{S0}:{S0+15}]
    v_mov_b32 v{SEL+1}, v{SEL}
    v_mov_b32 v{SEL+2}, v{SEL}
    v_mov_b32 v{SEL+3}, v{SEL}
    s_nop 12
    v_max3_f32 v7, v{S0}, v{S0+1}, v{S0+2}
    """)
    for i in range(3, 15, 2):
        A(f"v_max3_f32 v7, v7, v{S0+i}, v{S0+i+1}")
    A(f"""
    v_max_f32 v7, v7, v{S0+15}
    K2_SETC:
    v_mov_b32 v8, v7
    v_add_u32 v5, {SB[0]}, v2
    v_add_u32 v6, {SB[1]}, v2
    v_permlane32_swap_b32 v7, v8
    ds_read_b128 v[{KF[0]}:{KF[0]+3}], v5
    ds_read_b128 v[{KF[0]+4}:{KF[0]+7}], v5 offset:1024
    ds_read_b128 v[{KF[1]}:{KF[1]+3}], v5 offset:4096
    ds_read_b128 v[{KF[1]+4}:{KF[1]+7}], v5 offset:{4096+1024}
    ds_read_b128 v[{VF[0]}:{VF[0]+3}], v5 offset:2048
    ds_read_b128 v[{VF[0]+4}:{VF[0]+7}], v5 offset:3072
    v_max_f32 v7, v7, v8
    v_sub_f32 v7, 0, v7
    """)
    for i in range(16):
        A(f"v_mov_b32 v{C+i}, v7")
    for i in range(16):
        A(f"v_mov_b32 v{O+i}, 0")
    for i in range(4):
        A(f"v_mov_b32 v{Lr+i}, 0")
    for i in range(4):
        A(f"v_mov_b32 v{P+4+i}, 0\nv_mov_b32 v{VF[1]+4+i}, 0")
    A(f"""
    s_waitcnt lgkmcnt(0)
    v_mfma_f32_32x32x16_bf16 v[{S0}:{S0+15}], v[{KF[0]}:{KF[0]+3}], v[{Q}:{Q+3}], v[{C}:{C+15}]
    v_mfma_f32_32x32x16_bf16 v[{S0}:{S0+15}], v[{KF[0]+4}:{KF[0]+7}], v[{Q+4}:{Q+7}], v[{S0}:{S0+15}]
    s_mov_b32 s45, 0                   ; stage i
    s_add_u32 s46, s42, {2*32768}
    s_mov_b32 s47, {SB[2]}
    s_mov_b32 s56, {SB[0]}             ; cur
    s_mov_b32 s57, {SB[1]}             ; next
    s_nop 5
    """)
    mprof(A, 4)
    A(f"""
    K2_LOOP:
    s_cmp_lt_u32 s45, 3
    s_cbranch_scc1 K2_W1
    s_waitcnt vmcnt(0)
    K2_W1:
    s_waitcnt vmcnt(1)
    s_barrier
    s_add_u32 m0, s47, s42
    """)
    P0, P1 = P, P + 4
    def E(S, i): return f"v_exp_f32 v{S+i}, v{S+i}"
    def Cv(S, m): return f"v_cvt_pk_bf16_f32 v{P+m}, v{S+2*m}, v{S+2*m+1}"
    NT = 8
    for u in range(NT):
        S = SS[u % 2]; Sn = SS[(u+1) % 2]
        Kn = KF[(u+1) % 2]; Kl = KF[u % 2]
        V = VF[u % 2]; Vp = VF[(u+1) % 2]
        ka = ("v5", (u+2)*4096) if u+2 < NT else ("v6", (u+2-NT)*4096)
        va = ("v5", (u+1)*4096+2048) if u+1 < NT else ("v6", 2048)
        QKa = f"v_mfma_f32_32x32x16_bf16 v[{Sn}:{Sn+15}], v[{Kn}:{Kn+3}], v[{Q}:{Q+3}], v[{C}:{C+15}]"
        QKb = f"v_mfma_f32_32x32x16_bf16 v[{Sn}:{Sn+15}], v[{Kn+4}:{Kn+7}], v[{Q+4}:{Q+7}], v[{Sn}:{Sn+15}]"
        PVa = f"v_mfma_f32_32x32x16_bf16 v[{O}:{O+15}], v[{V}:{V+3}], v[{P0}:{P0+3}], v[{O}:{O+15}]"
        La = f"v_mfma_f32_16x16x32_bf16 v[{Lr}:{Lr+3}], v[{SEL}:{SEL+3}], v[{P0}:{P0+3}], v[{Lr}:{Lr+3}]"
        PVb_prev = f"v_mfma_f32_32x32x16_bf16 v[{O}:{O+15}], v[{Vp+4}:{Vp+7}], v[{P1}:{P1+3}], v[{O}:{O+15}]"
        Lb_prev = f"v_mfma_f32_16x16x32_bf16 v[{Lr}:{Lr+3}], v[{SEL}:{SEL+3}], v[{P1}:{P1+3}], v[{Lr}:{Lr+3}]"
        rdK = [f"ds_read_b128 v[{Kl}:{Kl+3}], {ka[0]} offset:{ka[1]}", f"ds_read_b128 v[{Kl+4}:{Kl+7}], {ka[0]} offset:{ka[1]+1024}"]
        rdV = [f"ds_read_b128 v[{Vp}:{Vp+3}], {va[0]} offset:{va[1]}", f"ds_read_b128 v[{Vp+4}:{Vp+7}], {va[0]} offset:{va[1]+1024}"]
        vm = []
        if u < 4:
            vm = [f"s_cmp_lt_u32 s45, 6", f"s_cbranch_scc0 K2_ND{u}",
                  f"buffer_load_dwordx4 v2, s[16:19], s46 offen offset:{u*1024} {SC} lds", f"K2_ND{u}:"]
        if u == 5:
            vm = ["s_cmp_eq_u32 s45, 0", "s_cbranch_scc0 K2_PFA", "global_load_dword v170, v168, s[60:61]", "K2_PFA:",
                  "s_cmp_eq_u32 s45, 1", "s_cbranch_scc0 K2_PFB", "global_load_dword v170, v169, s[62:63]", "K2_PFB:"]
        seq = ["s_waitcnt lgkmcnt(0)", QKa, E(S,0), E(S,1), E(S,2),
               PVb_prev, E(S,3), E(S,4), E(S,5),
               Lb_prev, rdK[0], rdK[1], E(S,6), E(S,7), Cv(S,0), Cv(S,1),
               QKb, rdV[0], rdV[1], Cv(S,2), Cv(S,3), E(S,8), E(S,9),
               PVa] + vm + [E(S,10), E(S,11), E(S,12),
               La, E(S,13), E(S,14), E(S,15), Cv(S,4), Cv(S,5), Cv(S,6), Cv(S,7)]
        for x in seq: A(x)
    A(f"""
    v_mov_b32 v5, v6
    v_add_u32 v6, s47, v2
    s_mov_b32 s36, s56
    s_mov_b32 s56, s57
    s_mov_b32 s57, s47
    s_mov_b32 s47, s36
    s_add_u32 s46, s46, 32768
    s_add_u32 s45, s45, 1
    s_cmp_lt_u32 s45, 8
    s_cbranch_scc1 K2_LOOP
    v_mfma_f32_32x32x16_bf16 v[{O}:{O+15}], v[{VF[1]+4}:{VF[1]+7}], v[{P+4}:{P+7}], v[{O}:{O+15}]
    v_mfma_f32_16x16x32_bf16 v[{Lr}:{Lr+3}], v[{SEL}:{SEL+3}], v[{P+4}:{P+7}], v[{Lr}:{Lr+3}]
    s_waitcnt vmcnt(0) lgkmcnt(0)
    s_nop 15
    """)
    mprof(A, 5)
    A(f"""
    v_mov_b32 v7, {f32(2.0**100)}
    v_cmp_nlt_f32 vcc, v{Lr}, v7
    s_mov_b64 s[48:49], vcc
    v_mov_b32 v7, 0x207
    """)
    for i in range(16):
        A(f"v_cmp_class_f32 vcc, v{O+i}, v7\ns_or_b64 s[48:49], s[48:49], vcc")
    A(f"""
    s_cmp_lg_u32 s44, 0
    s_cbranch_scc1 K2_FIN0
    s_cmp_eq_u64 s[48:49], 0
    s_cbranch_scc1 K2_NOFLAG
    v_mov_b32 v7, {FLAG}
    v_mov_b32 v8, 1
    ds_write_b32 v7, v8
    K2_NOFLAG:
    s_waitcnt lgkmcnt(0)
    s_barrier
    v_mov_b32 v7, {FLAG}
    ds_read_b32 v8, v7
    s_waitcnt lgkmcnt(0)
    v_readfirstlane_b32 s36, v8
    s_nop 3
    s_cmp_eq_u32 s36, 0
    s_cbranch_scc1 K2_FINISH
    s_mov_b32 s44, 1
    v_mov_b32 v7, 0xff800000
    s_mov_b32 s45, 0
    v_add_u32 v5, {SB[0]}, v2
    K2_MAXL:
    s_barrier
    s_lshl_b32 s36, s45, 15
    s_add_u32 s36, s36, s42
    s_add_u32 m0, s42, {SB[0]}
    s_nop 0
    """)
    for q in range(4):
        A(f"buffer_load_dwordx4 v2, s[16:19], s36 offen offset:{q*1024} {SC} lds")
    A("s_waitcnt vmcnt(0)\ns_barrier")
    for u in range(8):
        A(f"""
        ds_read_b128 v[{KF[0]}:{KF[0]+3}], v5 offset:{u*4096}
        ds_read_b128 v[{KF[0]+4}:{KF[0]+7}], v5 offset:{u*4096+1024}
        s_waitcnt lgkmcnt(0)
        v_mfma_f32_32x32x16_bf16 v[{S0}:{S0+15}], v[{KF[0]}:{KF[0]+3}], v[{Q}:{Q+3}], 0
        v_mfma_f32_32x32x16_bf16 v[{S0}:{S0+15}], v[{KF[0]+4}:{KF[0]+7}], v[{Q+4}:{Q+7}], v[{S0}:{S0+15}]
        s_nop 15
        """)
        for i in range(0, 16, 2):
            A(f"v_max3_f32 v7, v7, v{S0+i}, v{S0+i+1}")
    A(f"""
    s_add_u32 s45, s45, 1
    s_cmp_lt_u32 s45, 8
    s_cbranch_scc1 K2_MAXL
    s_barrier
    """)
    kv_issue(SB[0], 0)
    kv_issue(SB[1], 1)
    A(f"""
    s_waitcnt vmcnt(0)
    s_barrier
    s_branch K2_SETC
    K2_FIN0:
    s_barrier
    K2_FINISH:
    """)
    uvw_issue(A)
    A(f"""
    v_rcp_f32 v7, v{Lr}
    s_nop 0
    """)
    for i in range(16):
        A(f"v_mul_f32 v{O+i}, v{O+i}, v7")
    for m in range(8):
        A(f"v_cvt_pk_bf16_f32 v{P+m}, v{O+2*m}, v{O+2*m+1}")
    A(f"""
    s_lshl_b32 s36, s28, 2
    s_add_u32 s36, s36, s31
    s_lshl_b32 s36, s36, 6
    s_lshl_b32 s37, s29, 2
    s_add_u32 s36, s36, s37
    s_lshl_b32 s37, s32, 1
    s_add_u32 s36, s36, s37
    s_lshl_b32 s36, s36, 10
    buffer_store_dwordx4 v[{P}:{P+3}], v2, s[24:27], s36 offen {SC}
    buffer_store_dwordx4 v[{P+4}:{P+7}], v2, s[24:27], s36 offen offset:1024 {SC}
    """)


def phase3(A):
    TOP = 126464
    VEC = TOP + 32768
    srd(A, 8, PTR['wo'], 0, 1024*2048)
    srd(A, 12, 20, WS_O, SZ_ACT)
    srd(A, 16, PTR['x'], 0, 2048*2048)
    srd(A, 44, 20, 0, 0x18000)
    srd(A, 48, 20, WS_Y, SZ_ACT)
    srd(A, 24, 20, WS_ST, 0x100000)
    gemm64_setup(A, 1024, 2048, 64, perm=True)
    g64_w_prologue(A, 2048)
    A("s_waitcnt vmcnt(6)\ns_barrier")
    A(f"s_lshl_b32 s56, s28, 4\ns_add_u32 s56, s56, s29")
    signal(A, F_O, "s56", wave=7)
    uvw_compute(A)
    u7 = uid()
    A(f"s_cmp_eq_u32 s30, 7\ns_cbranch_scc0 P3W{u7}")
    dbg_srd(A, 4)
    cnt_load(A, C_MR, 249)
    A(f"s_lshl_b32 s56, s28, 11\ns_add_u32 s56, s56, {F_O}")
    poll(A, [("s56", 16)], [248])
    cnt_check_or_poll(A, [(C_MR, 249, 128)])
    A(f"P3W{u7}:")
    A("s_waitcnt vmcnt(0)\ns_barrier")
    A("s_cmp_lt_u32 s2, 224\ns_cbranch_scc0 UV_NOSIG")
    cnt_signal(A, C_UV, wave=0)
    A("UV_NOSIG:")
    mprof(A, 6)
    g64_b_prologue(A)
    def h1(A):
      A(f"""
      v_and_b32 v8, 31, v1               ; t
      v_lshrrev_b32 v9, 5, v1            ; h
      v_lshlrev_b32 v10, 11, v8
      v_lshl_add_u32 v10, v9, 4, v10     ; t*2048 + h*16
      s_lshl_b32 s36, s28, 2
      s_add_u32 s36, s36, s31
      s_lshl_b32 s36, s36, 16
      s_lshl_b32 s37, s29, 7
      s_add_u32 s36, s36, s37
      s_lshl_b32 s37, s32, 6
      s_add_u32 s36, s36, s37
      buffer_load_dwordx4 v[144:147], v10, s[16:19], s36 offen
      buffer_load_dwordx4 v[148:151], v10, s[16:19], s36 offen offset:32
      v_lshlrev_b32 v11, 2, v1
      s_lshl_b32 s36, s29, 8             ; j*64*4
      """)
      for p, r in enumerate((152, 153, 162, 163)):
          A(f"s_add_u32 s37, s36, {0x10000 + p*8192}\nbuffer_load_dword v{r}, v11, s[44:47], s37 offen {SC}")
      for p in range(4):
          A(f"s_add_u32 s37, s36, {p*16384 + 8192}\nbuffer_load_dword v{154+p}, v11, s[44:47], s37 offen {SC}")
      for p in range(4):
          A(f"s_add_u32 s37, s36, {p*16384 + 12288}\nbuffer_load_dword v{158+p}, v11, s[44:47], s37 offen {SC}")
    g64_loop(A, "P3G", 8, 2048, True, {1: (14, h1)})
    mprof(A, 7)
    A(f"""
    v_add_f32 v152, v152, v153
    v_add_f32 v162, v162, v163
    v_add_f32 v152, v152, v162
    v_add_f32 v154, v154, v155
    v_add_f32 v156, v156, v157
    v_add_f32 v158, v158, v159
    v_add_f32 v160, v160, v161
    v_add_f32 v154, v154, v156
    v_add_f32 v158, v158, v160
    v_cvt_pk_bf16_f32 v152, v152, v154
    v_cvt_pk_bf16_f32 v158, v158, v158
    v_and_b32 v154, 0xffff0000, v152       ; sb
    v_lshlrev_b32 v152, 16, v152           ; ga
    v_lshlrev_b32 v158, 16, v158
    v_add_f32 v158, 1.0, v158
    v_cvt_pk_bf16_f32 v158, v158, v158
    v_lshlrev_b32 v158, 16, v158           ; g2
    v_lshlrev_b32 v8, 2, v1
    v_add_u32 v8, {VEC}, v8
    ds_write_b32 v8, v152
    ds_write_b32 v8, v158 offset:256
    v_lshlrev_b32 v8, 1, v1
    v_add_u32 v8, {VEC}, v8
    ds_write_b16_d16_hi v8, v154 offset:512
    ds_write_b16_d16_hi v8, v158 offset:640
    """)
    g64_exchange(A, "P3G", TOP)
    GA, G2, SBP, G2P = 152, 168, 184, 192
    A(f"""
    v_lshrrev_b32 v9, 5, v1
    v_lshlrev_b32 v10, 4, v9
    s_lshl_b32 s36, s32, 7
    s_add_u32 s36, s36, {VEC}
    v_add_u32 v10, s36, v10
    v_lshlrev_b32 v11, 3, v9
    s_lshl_b32 s36, s32, 6
    s_add_u32 s36, s36, {VEC}
    v_add_u32 v11, s36, v11
    """)
    for jq in range(4):
        A(f"ds_read_b128 v[{GA+4*jq}:{GA+4*jq+3}], v10 offset:{jq*32}")
    for jq in range(4):
        A(f"ds_read_b128 v[{G2+4*jq}:{G2+4*jq+3}], v10 offset:{256 + jq*32}")
    for jq in range(4):
        A(f"ds_read_b64 v[{SBP+2*jq}:{SBP+2*jq+1}], v11 offset:{512 + jq*16}")
        A(f"ds_read_b64 v[{G2P+2*jq}:{G2P+2*jq+1}], v11 offset:{640 + jq*16}")
    A("v_permlane32_swap_b32 v144, v146\nv_permlane32_swap_b32 v145, v147\nv_permlane32_swap_b32 v148, v150\nv_permlane32_swap_b32 v149, v151")
    A(f"""
    s_lshl_b32 s36, s28, 2
    s_add_u32 s36, s36, s31
    s_lshl_b32 s36, s36, 6
    s_lshl_b32 s37, s29, 2
    s_add_u32 s36, s36, s37
    s_lshl_b32 s37, s32, 1
    s_add_u32 s36, s36, s37
    s_lshl_b32 s36, s36, 10
    v_mov_b32 v70, 0x3f803f80
    s_waitcnt lgkmcnt(8)
    """)
    for jq in range(4):
        for d in range(2):
            x = 144 + 2*jq + d
            r = 16 + 4*jq + 2*d
            t = 72 + 2*((2*jq+d) % 4)
            A(f"""
            v_lshlrev_b32 v{t}, 16, v{x}
            v_and_b32 v{t+1}, 0xffff0000, v{x}
            v_fma_f32 v{r}, v{r}, v{GA+4*jq+2*d}, v{t}
            v_fma_f32 v{r+1}, v{r+1}, v{GA+4*jq+2*d+1}, v{t+1}
            """)
    A("s_waitcnt lgkmcnt(0)")
    Z = 48
    for m in range(8):
        A(f"v_mul_f32 v{Z+2*m}, v{16+2*m}, v{G2+2*m}\nv_mul_f32 v{Z+2*m+1}, v{16+2*m+1}, v{G2+2*m+1}")
        A(f"v_cvt_pk_bf16_f32 v{X1R+m}, v{16+2*m}, v{16+2*m+1}")
    for m in range(8):
        A(f"v_cvt_pk_bf16_f32 v{40+m}, v{Z+2*m}, v{Z+2*m+1}")
    A(f"""
    buffer_store_dwordx4 v[40:43], v2, s[48:51], s36 offen {SC}
    buffer_store_dwordx4 v[44:47], v2, s[48:51], s36 offen offset:1024 {SC}
    """)
    S = 64
    for m in range(8):
        c = (lambda k: "0" if m == 0 else f"v{S+k}")
        A(f"""
        v_dot2_f32_bf16 v{S}, v{X1R+m}, v70, {c(0)}
        v_dot2_f32_bf16 v{S+1}, v{X1R+m}, v{X1R+m}, {c(1)}
        v_dot2_f32_bf16 v{S+2}, v{40+m}, v70, {c(2)}
        v_dot2_f32_bf16 v{S+3}, v{40+m}, v{G2P+m}, {c(3)}
        v_dot2_f32_bf16 v{S+4}, v{40+m}, v{40+m}, {c(4)}
        v_dot2_f32_bf16 v{S+5}, v{40+m}, v{SBP+m}, {c(5)}
        """)
    A("s_nop 2")
    for k in range(6):
        A(f"v_mov_b32 v{72+k}, v{S+k}")
    A("s_nop 1")
    for k in range(6):
        A(f"v_permlane32_swap_b32 v{S+k}, v{72+k}")
    A("s_nop 1")
    for k in range(6):
        A(f"v_add_f32 v{S+k}, v{S+k}, v{72+k}")
    A(f"""
    v_and_b32 v8, 31, v1
    v_lshlrev_b32 v8, 5, v8
    s_lshl_b32 s37, s31, 13
    s_add_u32 s37, s37, {TOP + 4096}
    v_add_u32 v8, s37, v8
    v_mov_b32 v{S+6}, 0
    v_mov_b32 v{S+7}, 0
    s_cmp_eq_u32 s32, 1
    s_cbranch_scc0 P3_ST0
    ds_write_b128 v8, v[{S}:{S+3}]
    ds_write_b128 v8, v[{S+4}:{S+7}] offset:16
    s_waitcnt lgkmcnt(0)
    s_barrier
    s_branch P3_STE
    P3_ST0:
    s_barrier
    ds_read_b128 v[72:75], v8
    ds_read_b128 v[76:79], v8 offset:16
    s_waitcnt lgkmcnt(0)
    """)
    for k in range(6):
        A(f"v_add_f32 v{S+k}, v{S+k}, v{72+k}")
    A(f"""
    v_cmp_lt_u32 vcc, 31, v1
    s_nop 1
    v_cndmask_b32 v{S}, v{S}, v{S+4}, vcc
    v_cndmask_b32 v{S+1}, v{S+1}, v{S+5}, vcc
    v_cndmask_b32 v{S+2}, v{S+2}, v{S+6}, vcc
    v_cndmask_b32 v{S+3}, v{S+3}, v{S+7}, vcc
    s_lshl_b32 s36, s28, 2
    s_add_u32 s36, s36, s31
    s_lshl_b32 s36, s36, 3
    s_lshr_b32 s37, s29, 1
    s_add_u32 s36, s36, s37
    s_lshl_b32 s36, s36, 11
    s_and_b32 s37, s29, 1
    s_lshl_b32 s37, s37, 9
    s_add_u32 s36, s36, s37
    v_and_b32 v8, 31, v1
    v_lshlrev_b32 v8, 4, v8
    v_lshrrev_b32 v9, 5, v1
    v_lshl_add_u32 v8, v9, 10, v8
    buffer_store_dwordx4 v[{S}:{S+3}], v8, s[24:27], s36 offen {SC}
    P3_STE:
    s_lshl_b32 s101, s28, 4
    s_add_u32 s101, s101, s29
    """)


def phase4(A):
    SLOT = 28672
    ACC, AF, BF = 16, 128, 184
    AX = 4*SLOT; BX = AX + 7168; AL = BX + 4096
    wg_map_224(A)
    srd(A, 8, PTR['w1'], 0, 1024*7168)
    srd(A, 12, 20, WS_Y, SZ_ACT)
    srd(A, 16, PTR['b1'], 0, 7168)
    srd(A, 24, 20, WS_HH, SZ_HH)
    A("s_cmp_ge_u32 s30, 4\ns_cbranch_scc1 P4_LOADER")
    A("s_waitcnt vmcnt(0)\ns_barrier")
    signal(A, F_Z, "s101", wave=0)
    A(f"""
    v_lshrrev_b32 v9, 5, v1            ; h
    s_lshl_b32 s34, s28, 2
    s_add_u32 s34, s34, s30
    s_lshl_b32 s34, s34, 16
    v_bfe_u32 v6, v1, 2, 2
    v_lshlrev_b32 v4, 6, v6
    v_bfe_u32 v5, v1, 4, 1
    v_lshl_add_u32 v4, v5, 5, v4
    v_and_b32 v7, 3, v1
    v_lshl_add_u32 v4, v7, 3, v4
    v_mul_u32_u24 v5, 1792, v9
    v_add_u32 v4, v4, v5
    v_add_u32 v3, {2*SLOT}, v4
    """)
    for i in range(112):
        A(f"v_mov_b32 v{ACC+i}, 0")
    A("s_barrier")
    mprof(A, 8)
    for n in range(8):
        if n == 4:
            A("s_add_u32 s34, s34, 4096")
        A(f"buffer_load_dwordx4 v[{BF+4*n}:{BF+4*n+3}], v2, s[12:15], s34 offen offset:{(n & 3)*1024} {SC}")
    A("s_add_u32 s34, s34, 4096")
    def areads(slot, ks, buf):
        va = "v4" if slot < 2 else "v3"
        base = (slot & 1)*SLOT + ks*7168
        out = []
        for ft in range(7):
            for e in range(2):
                r = AF + 28*buf + 4*ft + 2*e
                out.append(f"ds_read_b64_tr_b16 v[{r}:{r+1}], {va} offset:{base + e*3584 + ft*256}")
        return out
    for x in areads(0, 0, 0):
        A(x)
    A("s_mov_b32 s41, 4\nP4_LOOP:")
    n = 0
    for slot in range(4):
        A("s_barrier")
        for ks in range(4):
            buf = n % 2
            nslot, nks = (slot, ks+1) if ks < 3 else ((slot+1) % 4, 0)
            rd = areads(nslot, nks, 1-buf)
            b = BF + 4*(n % 8)
            A("s_waitcnt vmcnt(7) lgkmcnt(0)")
            for ft in range(7):
                a = AF + 28*buf + 4*ft
                c = ACC + 16*ft
                A(f"v_mfma_f32_32x32x16_bf16 v[{c}:{c+15}], v[{a}:{a+3}], v[{b}:{b+3}], v[{c}:{c+15}]")
                if ft < 5:
                    k = 3 if ft < 4 else 2
                    for x in rd[:k]:
                        A(x)
                    rd = rd[k:]
            A(f"buffer_load_dwordx4 v[{b}:{b+3}], v2, s[12:15], s34 offen offset:{(n & 3)*1024} {SC}")
            if n % 4 == 3:
                A("s_add_u32 s34, s34, 4096")
            n += 1
    A(f"""
    s_sub_u32 s41, s41, 1
    s_cmp_lg_u32 s41, 0
    s_cbranch_scc1 P4_LOOP
    s_waitcnt lgkmcnt(0)
    v_add_u32 v10, {AX}, v2
    """)
    for ft in range(7):
        A(f"ds_read_b128 v[{AF+4*ft}:{AF+4*ft+3}], v10 offset:{ft*1024}")
    A(f"""
    s_lshl_b32 s36, s30, 10
    v_add_u32 v11, s36, v10
    ds_read_b128 v[{AF+28}:{AF+31}], v11 offset:{BX-AX}
    v_and_b32 v11, 31, v1
    v_lshlrev_b32 v11, 2, v11
    s_lshl_b32 s36, s30, 7
    v_add_u32 v11, s36, v11
    v_add_u32 v11, {AL}, v11
    ds_read_b32 v12, v11
    s_waitcnt lgkmcnt(0)
    s_barrier
    """)
    for ft in range(7):
        c = ACC + 16*ft
        A(f"v_mfma_f32_32x32x16_bf16 v[{c}:{c+15}], v[{AF+4*ft}:{AF+4*ft+3}], v[{AF+28}:{AF+31}], v[{c}:{c+15}]")
    A("s_waitcnt vmcnt(0)\ns_nop 15")
    mprof(A, 9)
    A(f"s_mov_b32 s42, {f32(GELU_C1)}\ns_mov_b32 s43, {f32(GELU_C2)}\nv_mov_b32 v8, s42")
    A(f"""
    s_lshl_b32 s36, s28, 2
    s_add_u32 s36, s36, s30
    s_mul_i32 s36, s36, 224
    s_mul_i32 s37, s29, 14
    s_add_u32 s36, s36, s37
    s_lshl_b32 s36, s36, 10
    """)
    for ft in range(7):
        c = ACC + 16*ft
        T = 160; E = 176
        for i in range(16):
            A(f"v_mul_f32 v{c+i}, v{c+i}, v12")
        for i in range(16):
            A(f"v_mul_f32 v{T+i}, v{c+i}, v{c+i}")
        for i in range(16):
            A(f"v_fma_f32 v{T+i}, v{T+i}, s43, v8")
        for i in range(16):
            A(f"v_mul_f32 v{T+i}, v{T+i}, v{c+i}")
        for i in range(16):
            A(f"v_exp_f32 v{T+i}, v{T+i}")
        for i in range(16):
            A(f"v_add_f32 v{T+i}, 1.0, v{T+i}")
        for i in range(16):
            A(f"v_rcp_f32 v{T+i}, v{T+i}")
        for i in range(16):
            A(f"v_mul_f32 v{T+i}, v{T+i}, v{c+i}")
        P = E + 8*(ft % 2)
        for m in range(8):
            A(f"v_cvt_pk_bf16_f32 v{P+m}, v{T+2*m}, v{T+2*m+1}")
        for e in range(2):
            kidx = 2*ft + e
            if kidx % 4 == 0 and kidx > 0:
                A("s_add_u32 s36, s36, 4096")
            A(f"buffer_store_dwordx4 v[{P+4*e}:{P+4*e+3}], v2, s[24:27], s36 offen offset:{(kidx & 3)*1024} {SC}")
    A(f"""
    s_lshl_b32 s101, s28, 4
    s_add_u32 s101, s101, s29
    s_branch P4_DONE
    """)
    A(f"""
    P4_LOADER:
    s_sub_u32 s31, s30, 4              ; lw
    s_mul_i32 s36, s31, 28
    v_lshrrev_b32 v5, 4, v1            ; l>>4
    v_add_u32 v5, s36, v5
    v_bfe_u32 v6, v1, 2, 2             ; r
    v_and_b32 v7, 3, v1                ; c
    """)
    for u in range(7):
        A(f"""
        v_add_u32 v8, {4*u}, v5
        v_mul_u32_u24 v9, 9363, v8
        v_lshrrev_b32 v9, 16, v9           ; q
        v_mul_u32_u24 v10, 7, v9
        v_sub_u32 v10, v8, v10             ; ft
        v_lshl_add_u32 v9, v9, 2, v6       ; row = 4q + r
        v_mul_u32_u24 v9, 7168, v9
        v_lshl_add_u32 v9, v10, 6, v9
        v_lshl_add_u32 v{16+u}, v7, 4, v9
        """)
    A(f"""
    s_mul_i32 s33, s29, 448
    s_mul_i32 s39, s31, 7168
    """)
    Q = []
    def issue_stage(st):
        for u in range(7):
            A(f"s_add_u32 m0, s39, {(st % 4)*SLOT + u*1024}\ns_nop 0\nbuffer_load_dwordx4 v{16+u}, s[8:11], s33 offen lds")
        A(f"s_add_u32 s33, s33, {64*7168}")
        Q.extend([("W", st)]*7)
    def wait_tag(tag):
        idx = max(i for i, t in enumerate(Q) if t == tag)
        return len(Q) - 1 - idx
    issue_stage(0)
    issue_stage(1)
    A("s_waitcnt vmcnt(14)\ns_barrier")
    poll_by(A, 7, [("s56", 16)], [248], pre=f"s_lshl_b32 s56, s28, 11\ns_add_u32 s56, s56, {F_Z}")
    A(f"s_waitcnt vmcnt(7)\ns_barrier")
    issue_stage(2)
    srd(A, 44, 20, WS_ST, 0x100000)
    srd(A, 48, 20, WS_UVW, 2*UVW_P + 128)
    ST = 32; UV = 140
    A(f"""
    s_lshl_b32 s52, s28, 2
    s_add_u32 s52, s52, s31
    s_lshl_b32 s52, s52, 14            ; tile*16384
    v_and_b32 v8, 31, v1               ; f
    s_mul_i32 s36, s29, 224
    s_lshl_b32 s37, s31, 5
    s_add_u32 s36, s36, s37            ; F0 = j*224 + lw*32
    v_add_u32 v8, s36, v8              ; F
    v_lshlrev_b32 v14, 2, v8           ; F*4
    v_lshlrev_b32 v15, 1, v8           ; F*2
    v_mov_b32 v11, 0
    """)
    side = []
    for qp in range(16):
        pre = f"s_add_u32 s52, s52, 4096\n" if (qp and qp % 4 == 0) else ""
        side.append(pre + f"buffer_load_dwordx4 v[{ST+4*qp}:{ST+4*qp+3}], v2, s[44:47], s52 offen offset:{(qp & 3)*1024} {SC}")
    small = []
    for tsel in range(2):
        for p in range(2):
            for m in range(3):
                small.append(f"s_mov_b32 s53, {p*UVW_P + m*3584*4}\nbuffer_load_dword v{UV+8*tsel+4*p+m}, v14, s[48:51], s53 offen offset:{512*tsel} {SC}")
        small.append(f"buffer_load_ushort v{UV+8*tsel+3}, v15, s[16:19], 0 offen offset:{256*tsel}")
    for p in range(2):
        small.append(f"s_mov_b32 s53, {2*UVW_P + p*64}\nbuffer_load_dwordx4 v[{104+8*p}:{107+8*p}], v11, s[48:51], s53 offen {SC}")
        small.append(f"s_mov_b32 s53, {2*UVW_P + p*64}\nbuffer_load_dwordx4 v[{108+8*p}:{111+8*p}], v11, s[48:51], s53 offen offset:16 {SC}")
    def liter(i, nside=0):
        A(f"s_waitcnt vmcnt({wait_tag(('W', i+1))})\ns_barrier")
        if i + 3 < 16: issue_stage(i+3)
        for k in range(nside):
            if side:
                A(side.pop(0)); Q.append(("S", 0))
    for i in range(0, 6):
        liter(i, 2)
    liter(6, 2)
    dbg_srd(A, 4)
    cnt_load(A, C_UV, 248)
    Q.append(("F", 0))
    liter(7, 2)
    assert not side
    liter(8)
    A(f"s_waitcnt vmcnt({wait_tag(('F', 0))})")
    cnt_check_or_poll(A, [(C_UV, 248, 224)])
    h = len(small)//2
    for x in small[:h]:
        A(x); Q.append(("S", 0))
    liter(9)
    for x in small[h:]:
        A(x); Q.append(("S", 0))
    liter(10)
    A(f"s_waitcnt vmcnt({wait_tag(('S', 0))})")
    for k in range(8):
        A(f"v_add_f32 v{104+k}, v{104+k}, v{112+k}")
    for tsel in range(2):
        for m in range(3):
            A(f"v_add_f32 v{UV+8*tsel+m}, v{UV+8*tsel+m}, v{UV+8*tsel+4+m}")
    for q in range(1, 8):
        for e in range(4):
            A(f"v_add_f32 v{ST+e}, v{ST+e}, v{ST+8*q+e}")
        for e in range(2):
            A(f"v_add_f32 v{ST+4+e}, v{ST+4+e}, v{ST+8*q+4+e}")
    for k in range(6):
        A(f"v_mov_b32 v{112+k}, v{ST+k}")
    A("s_nop 1")
    for k in range(6):
        A(f"v_permlane32_swap_b32 v{ST+k}, v{112+k}")
    A("s_nop 1")
    for k in range(6):
        A(f"v_add_f32 v{ST+k}, v{ST+k}, v{112+k}")
    S1, S2, S3, S4, S5, S6 = [ST+k for k in range(6)]
    G2c, GS, G1c, SB2, SB1 = 104, 105, 106, 109, 110
    iD = f32(1/1024)
    A(f"""
    v_mul_f32 v112, {iD}, v{S1}            ; mu1
    v_mul_f32 v113, {iD}, v{S2}
    v_fma_f32 v113, -v112, v112, v113      ; var1
    v_add_f32 v113, {f32(1e-5)}, v113
    v_rsq_f32 v114, v113                   ; r1
    s_nop 0
    v_mul_f32 v115, v113, v114             ; 1/r1
    v_fma_f32 v116, -v112, v{G1c}, v{S3}
    v_fma_f32 v116, v116, v114, v{SB1}
    v_mul_f32 v116, {iD}, v116             ; m2
    v_mul_f32 v117, v112, v{G2c}
    v_fma_f32 v117, -2.0, v{S4}, v117
    v_fma_f32 v117, v117, v112, v{S5}
    v_mul_f32 v117, v117, v114
    v_fma_f32 v118, -v112, v{GS}, v{S6}
    v_fma_f32 v117, 2.0, v118, v117
    v_fma_f32 v117, v117, v114, v{SB2}
    v_mul_f32 v117, {iD}, v117             ; E2
    v_fma_f32 v117, -v116, v116, v117      ; var2
    v_add_f32 v117, {f32(1e-5)}, v117
    v_rsq_f32 v118, v117                   ; r2
    s_nop 0
    v_mul_f32 v119, v117, v118             ; 1/r2
    v_mul_f32 v120, v114, v118             ; alpha
    v_sub_f32 v121, 0, v112                ; c1 = -mu1
    v_mul_f32 v122, v116, v115
    v_sub_f32 v122, 0, v122                ; c3 = -m2/r1
    v_mul_f32 v123, v115, v119             ; c4 = 1/alpha
    """)
    split_hilo(A, 121, 124, 125, 8)
    split_hilo(A, 115, 126, 127, 8)
    split_hilo(A, 122, 128, 129, 8)
    split_hilo(A, 123, 130, 131, 8)
    def pk(dst, lo, hi):
        if lo is None and hi is None: A(f"v_mov_b32 v{dst}, 0")
        elif hi is None: A(f"v_lshrrev_b32 v{dst}, 16, v{lo}")
        else: A(f"v_lshrrev_b32 v{dst}, 16, v{lo}\nv_or_b32 v{dst}, v{dst}, v{hi}")
    pk(132, 124, 124); pk(133, 125, 126); pk(134, 126, 127); pk(135, 128, 128)
    pk(136, 129, 130); pk(137, 131, None); pk(138, None, None); pk(139, None, None)
    A(f"""
    v_cmp_lt_u32 vcc, 31, v1
    s_nop 1
    v_cndmask_b32 v132, v132, v136, vcc
    v_cndmask_b32 v133, v133, v137, vcc
    v_cndmask_b32 v134, v134, v138, vcc
    v_cndmask_b32 v135, v135, v139, vcc
    s_lshl_b32 s36, s31, 10
    v_add_u32 v10, s36, v2
    v_add_u32 v10, {BX}, v10
    ds_write_b128 v10, v[132:135]
    v_and_b32 v10, 31, v1
    v_lshlrev_b32 v10, 2, v10
    s_lshl_b32 s36, s31, 7
    v_add_u32 v10, s36, v10
    v_add_u32 v10, {AL}, v10
    ds_write_b32 v10, v120
    s_waitcnt lgkmcnt(0)
    """)
    liter(11)
    for tsel in range(2):
        u_, v_, w_, b_ = UV+8*tsel, UV+8*tsel+1, UV+8*tsel+2, UV+8*tsel+3
        split_hilo(A, u_, 124, 125, 8)
        split_hilo(A, v_, 126, 127, 8)
        split_hilo(A, w_, 128, 129, 8)
        A(f"v_lshlrev_b32 v130, 16, v{b_}")
        pk(132, 124, 125); pk(133, 124, 126); pk(134, 127, 126); pk(135, 128, 129)
        pk(136, 128, 130); pk(137, 130, None); pk(138, None, None); pk(139, None, None)
        A(f"""
        v_cndmask_b32 v132, v132, v136, vcc
        v_cndmask_b32 v133, v133, v137, vcc
        v_cndmask_b32 v134, v134, v138, vcc
        v_cndmask_b32 v135, v135, v139, vcc
        s_add_u32 s36, s31, {4*tsel}
        s_cmp_lt_u32 s36, 7
        s_cbranch_scc0 P4_NOAX{tsel}
        s_lshl_b32 s36, s36, 10
        v_add_u32 v10, s36, v2
        v_add_u32 v10, {AX}, v10
        ds_write_b128 v10, v[132:135]
        P4_NOAX{tsel}:
        """)
    A("s_waitcnt lgkmcnt(0)")
    for i in range(12, 15):
        liter(i)
    A("s_barrier")
    A("s_barrier")
    wg_map_64(A)
    srd(A, 8, PTR['w2'], 0, 3584*2048)
    A(f"""
    v_lshrrev_b32 v5, 5, v1
    v_bfe_u32 v6, v1, 2, 2
    v_lshl_add_u32 v5, v5, 2, v6
    v_mul_u32_u24 v3, 2048, v5
    v_bfe_u32 v5, v1, 4, 1
    v_lshl_add_u32 v3, v5, 6, v3
    v_and_b32 v7, 3, v1
    v_lshl_add_u32 v3, v7, 4, v3
    """)
    for kh in range(2):
        A(f"""
        s_lshl_b32 s36, s31, 4
        s_add_u32 s33, s36, {kh*1792}
        s_mul_i32 s33, s33, 2048
        s_lshl_b32 s36, s29, 7
        s_add_u32 s33, s33, s36
        s_lshl_b32 s39, s31, 11
        s_add_u32 s39, s39, {kh*8192}
        """)
        g64_w_prologue(A, 2048)
    A("P4_DONE:")


def phase5(A):
    A("s_waitcnt vmcnt(0)\ns_barrier")
    signal(A, F_HH, "s101", wave=0)
    wg_map_64(A)
    lane_setup(A)
    srd(A, 8, PTR['w2'], 0, 3584*2048)
    srd(A, 12, 20, WS_HH, SZ_HH)
    srd(A, 16, PTR['b2'], 0, 2048)
    srd(A, 24, PTR['out'], 0, 2048*2048)
    srd(A, 44, 20, 0, 0x18000)
    gemm64_setup(A, 3584, 2048, 224, perm=True)
    A(f"s_add_u32 s33, s33, {3*64*2048}")
    poll_by(A, 7, [("s56", 16)], [248], pre=f"s_lshl_b32 s56, s28, 11\ns_add_u32 s56, s56, {F_HH}")
    A("s_barrier")
    mprof(A, 10)
    g64_b_prologue(A)
    def h1(A):
      A(f"""
      v_lshlrev_b32 v11, 2, v1
      s_lshl_b32 s36, s29, 8
      s_add_u32 s36, s36, {0x10000 + 4096}
      buffer_load_dword v152, v11, s[44:47], s36 offen {SC}
      s_add_u32 s36, s36, 8192
      buffer_load_dword v153, v11, s[44:47], s36 offen {SC}
      s_add_u32 s36, s36, 8192
      buffer_load_dword v155, v11, s[44:47], s36 offen {SC}
      s_add_u32 s36, s36, 8192
      buffer_load_dword v156, v11, s[44:47], s36 offen {SC}
      v_lshlrev_b32 v11, 1, v1
      s_lshl_b32 s36, s29, 7
      buffer_load_ushort v154, v11, s[16:19], s36 offen
      """)
    g64_loop(A, "P5G", 28, 2048, True, {1: (5, h1)})
    A(f"""
    v_add_f32 v152, v152, v153
    v_add_f32 v155, v155, v156
    v_add_f32 v152, v152, v155
    v_cvt_pk_bf16_f32 v152, v152, v152
    v_lshlrev_b32 v152, 16, v152
    v_lshlrev_b32 v154, 16, v154
    v_lshlrev_b32 v155, 2, v1
    ds_write_b32 v155, v152 offset:32768
    ds_write_b32 v155, v154 offset:33024
    """)
    g64_exchange(A, "P5G", 0)
    A(f"""
    v_lshrrev_b32 v9, 5, v1
    v_lshlrev_b32 v9, 4, v9
    s_lshl_b32 s36, s32, 7
    v_add_u32 v9, s36, v9
    """)
    for jq in range(4):
        A(f"ds_read_b128 v[{152+4*jq}:{155+4*jq}], v9 offset:{32768 + jq*32}")
        A(f"ds_read_b128 v[{168+4*jq}:{171+4*jq}], v9 offset:{33024 + jq*32}")
    A("s_waitcnt lgkmcnt(0)")
    for jq in range(4):
        for d in range(2):
            x = X1R + 2*jq + d
            r = 16 + 4*jq + 2*d
            A(f"""
            v_add_f32 v{r}, v{r}, v{168+4*jq+2*d}
            v_add_f32 v{r+1}, v{r+1}, v{168+4*jq+2*d+1}
            v_lshlrev_b32 v8, 16, v{x}
            v_and_b32 v9, 0xffff0000, v{x}
            v_fma_f32 v{r}, v{r}, v{152+4*jq+2*d}, v8
            v_fma_f32 v{r+1}, v{r+1}, v{152+4*jq+2*d+1}, v9
            """)
    for m in range(8):
        A(f"v_cvt_pk_bf16_f32 v{32+m}, v{16+2*m}, v{16+2*m+1}")
    A(f"""
    s_nop 1
    v_permlane32_swap_b32 v32, v34
    v_permlane32_swap_b32 v33, v35
    v_permlane32_swap_b32 v36, v38
    v_permlane32_swap_b32 v37, v39
    v_and_b32 v8, 31, v1
    v_lshrrev_b32 v9, 5, v1
    v_lshlrev_b32 v10, 11, v8
    v_lshl_add_u32 v10, v9, 4, v10      ; t*2048 + h*16
    s_lshl_b32 s36, s28, 2
    s_add_u32 s36, s36, s31
    s_lshl_b32 s36, s36, 16
    s_lshl_b32 s37, s29, 7
    s_add_u32 s36, s36, s37
    s_lshl_b32 s37, s32, 6
    s_add_u32 s36, s36, s37
    buffer_store_dwordx4 v[32:35], v10, s[24:27], s36 offen
    buffer_store_dwordx4 v[36:39], v10, s[24:27], s36 offen offset:32
    """)


def gen_mega(A, name="mega_kernel"):
    kernel_begin(A, name)
    A(f"""
    s_getpc_b64 s[62:63]
    MEGA_PC:
    s_cmp_ge_u32 s2, 256
    s_cbranch_scc1 MEGA_END
    s_load_dwordx16 s[64:79], s[0:1], 0
    s_load_dwordx8 s[80:87], s[0:1], 64       ; w2 b2 c wmod
    s_load_dwordx2 s[88:89], s[0:1], 96       ; out
    s_load_dwordx2 s[94:95], s[0:1], 104      ; dbg
    s_load_dwordx2 s[20:21], s[0:1], 112      ; ws
    s_memrealtime s[90:91]
    """)
    lane_setup(A)
    A("s_waitcnt lgkmcnt(0)")
    A("s_or_b32 s100, s90, 1")
    mprof(A, 0)
    srd(A, 96, 20, WS_FLAGS, FLAGS_SIZE)
    if OPT.get("code_pf", 1):
        A("""
        s_cmp_eq_u32 s30, 6
        s_cbranch_scc0 CPF_SKIP
        s_lshr_b32 s36, s2, 3
        s_lshl_b32 s36, s36, 4
        v_and_b32 v5, 15, v1
        v_add_u32 v5, s36, v5
        v_lshlrev_b32 v5, 7, v5
        s_mov_b32 s37, MEGA_CODE_END-MEGA_PC-8
        v_min_u32 v5, s37, v5
        v_and_b32 v5, -4, v5
        global_load_dword v254, v5, s[62:63]
        CPF_SKIP:
        """)
    phase01(A)
    mprof(A, 1)
    phase2(A)
    phase3(A)
    phase4(A)
    phase5(A)
    if genlib.PROF: A("s_waitcnt vmcnt(0)")
    mprof(A, 11)
    mprof_dump(A)
    A("MEGA_END:\ns_endpgm\nMEGA_CODE_END:")
    kernel_end(A, name, 256)
```

```python
class Asm:
    def __init__(self):
        self.L = []
    def __call__(self, txt):
        for line in txt.strip("\n").split("\n"):
            line = line.strip()
            if not line:
                continue
            if line.endswith(":") and not line.startswith(";"):
                self.L.append(line)
            else:
                self.L.append("    " + line)
    def text(self):
        return "\n".join(self.L) + "\n"

def vr(a, n=1):
    return f"v{a}" if n == 1 else f"v[{a}:{a+n-1}]"
def sr(a, n=1):
    return f"s{a}" if n == 1 else f"s[{a}:{a+n-1}]"

def kernel_begin(A, name):
    A.L.append(".text")
    A.L.append(f".globl {name}")
    A.L.append(".p2align 8")
    A.L.append(f".type {name},@function")
    A.L.append(f"{name}:")

def kernel_end(A, name, vgprs, sgprs=102):
    acc = (vgprs + 3) // 4 * 4
    A.L.append(".section .rodata,\"a\"")
    A.L.append(".p2align 6")
    A.L.append(f".amdhsa_kernel {name}")
    A.L.append(f"  .amdhsa_next_free_vgpr {vgprs}")
    A.L.append(f"  .amdhsa_next_free_sgpr {sgprs}")
    A.L.append(f"  .amdhsa_accum_offset {acc}")
    A.L.append("  .amdhsa_group_segment_fixed_size 0")
    A.L.append("  .amdhsa_kernarg_size 120")
    A.L.append("  .amdhsa_user_sgpr_count 2")
    A.L.append("  .amdhsa_user_sgpr_kernarg_segment_ptr 1")
    A.L.append("  .amdhsa_system_sgpr_workgroup_id_x 1")
    A.L.append(".end_amdhsa_kernel")

def srd(A, s, base_pair, off, nbytes):
    if off == 0:
        A(f"s_mov_b32 s{s}, s{base_pair}\ns_mov_b32 s{s+1}, s{base_pair+1}")
    else:
        A(f"s_add_u32 s{s}, s{base_pair}, {off:#x}\ns_addc_u32 s{s+1}, s{base_pair+1}, 0")
    A(f"s_mov_b32 s{s+2}, {nbytes:#x}\ns_mov_b32 s{s+3}, 0x00020000")

KA = dict(x=0, wq=8, wk=16, wv=24, wo=32, bx=40, w1=48, b1=56, w2=64, b2=72, c=80, wmod=88, out=96, dbg=104, ws=112)
WS_MODP = 0x0
WS_MODR = 0x10000
WS_MODF = 0x18000
WS_UVW  = 0x40000 - 0x18000 + 0x0
UVW_P = 3*3584*4
WS_ST   = 0x2200000
WS_GRAM = 0x28000 + 2*43008
WS_ST2 = 0x2300000
WS_KV   = 0x40000
WS_H    = 0x100000
WS_O    = 0x500000
WS_X1   = 0x900000
WS_Y    = 0xD00000
WS_HH   = 0x1100000
SZ_ACT  = 0x400000
SZ_HH   = 64 * 224 * 1024
LOG2E = 1.4426950408889634
import struct
def f32(x):
    return "0x%08x" % struct.unpack("<I", struct.pack("<f", x))[0]

PROF = False
WS_PROF = 0x2000000
def prof_init(A, kidx):
    if not PROF: return
    A(f"""
    s_lshl_b32 s66, s2, 7
    s_add_u32 s66, s66, {WS_PROF + kidx*512*128:#x}
    s_add_u32 s64, s20, s66
    s_addc_u32 s65, s21, 0
    """)
def prof_stamp(A, slot, early=False):
    if not PROF: return
    A(f"s_memrealtime s[{68}:{69}]\ns_memtime s[{72+2*slot}:{73+2*slot}]\ns_waitcnt lgkmcnt(0)\ns_mov_b32 s{73+2*slot}, s68")
def prof_dump(A, nslots):
    if not PROF: return
    A(f"""
    v_cmp_eq_u32 vcc, 0, v0
    s_and_saveexec_b64 s[68:69], vcc
    s_cbranch_execz PROF_SKIP_{len(A.L)}
    """)
    lab = A.L[-1].split()[-1]
    for i in range(nslots):
        A(f"v_mov_b32 v4, s{72+2*i}\nv_mov_b32 v5, s{73+2*i}\nv_mov_b32 v6, {8*i}\nglobal_store_dwordx2 v6, v[4:5], s[64:65]")
    A(f"{lab}:\ns_mov_b64 exec, s[68:69]")

def mprof(A, slot):
    if not PROF: return
    A(f"s_memtime s[90:91]\ns_memrealtime s[92:93]\ns_waitcnt lgkmcnt(0)\nv_writelane_b32 v252, s90, {slot}\nv_writelane_b32 v253, s92, {slot}")
def mprof_dump(A):
    if not PROF: return
    A(f"""
    s_cmp_eq_u32 s30, 0
    s_cbranch_scc0 MPD_SKIP
    s_lshl_b32 s90, s2, 9
    s_add_u32 s90, s90, {WS_PROF + 512*128:#x}
    s_add_u32 s90, s20, s90
    s_addc_u32 s91, s21, 0
    v_and_b32 v4, 63, v0
    v_lshlrev_b32 v4, 3, v4
    v_cmp_gt_u32 vcc, 64, v0
    s_and_saveexec_b64 s[92:93], vcc
    v_mov_b32 v6, v252
    v_mov_b32 v7, v253
    global_store_dwordx2 v4, v[6:7], s[90:91]
    s_mov_b64 exec, s[92:93]
    MPD_SKIP:
    """)
PTR = dict(x=64, wq=66, wk=68, wv=70, wo=72, w1=76, b1=78, w2=80, b2=82, c=84, wmod=86, out=88, dbg=94)

PROFSET = "front"
def mprof2(A, slot, which):
    if PROF and PROFSET == which: mprof(A, slot)

def mprof_dyn(A, base, sgpr_expr_lines):
    pass
def mstage(A, lane_sgpr):
    if not PROF: return
    A(f"s_memtime s[90:91]\ns_waitcnt lgkmcnt(0)\nv_writelane_b32 v252, s90, {lane_sgpr}")
```

```python
from genlib import *
import genlib
from mega import *
from mega_p1 import phase01
from k_gemm import OPT

X1R = 240


UV_W, UV_VEC, UV_RED = 65536, 98304, 102400

def uvw_issue(A):
    srd(A, 48, PTR['w1'], 0, 1024*7168)
    srd(A, 52, 20, 0, 0x18000)
    A(f"""
    s_lshr_b32 s58, s2, 1              ; ft
    s_and_b32 s59, s2, 1               ; kh
    s_lshl_b32 s36, s59, 9
    s_lshl_b32 s37, s30, 6
    s_add_u32 s36, s36, s37            ; k0 = 512kh + 64w
    s_mul_i32 s37, s36, 7168
    s_lshl_b32 s38, s58, 6
    s_add_u32 s37, s37, s38            ; W1 soffset
    s_cmp_lt_u32 s2, 224
    s_cselect_b32 s37, s37, 0x7f000000
    v_lshrrev_b32 v8, 2, v1
    v_mul_u32_u24 v8, 7168, v8
    v_and_b32 v9, 3, v1
    v_lshl_add_u32 v8, v9, 4, v8
    s_lshl_b32 s38, s30, 12
    s_add_u32 s38, s38, {UV_W}
    """)
    for i in range(4):
        A(f"s_add_u32 m0, s38, {i*1024}\ns_nop 0\nbuffer_load_dwordx4 v8, s[48:51], s37 offen lds\ns_add_u32 s37, s37, {16*7168}")
    A(f"""
    v_and_b32 v9, 15, v1
    v_lshlrev_b32 v9, 4, v9
    v_bfe_u32 v10, v1, 4, 1
    v_lshl_add_u32 v9, v10, 12, v9
    s_lshl_b32 s36, s36, 2
    s_add_u32 s36, s36, {2048*4}
    """)
    for p in range(4):
        A(f"s_add_u32 s37, s36, {p*16384}\nbuffer_load_dwordx4 v[{176+4*p}:{179+4*p}], v9, s[52:55], s37 offen {SC}")

def uvw_compute(A):
    srd(A, 40, 20, WS_UVW, 2*UVW_P + 128)
    A(f"""
    s_lshr_b32 s60, s2, 1              ; ft
    s_and_b32 s61, s2, 1               ; kh
    v_add_f32 v176, v176, v180
    v_add_f32 v177, v177, v181
    v_add_f32 v178, v178, v182
    v_add_f32 v179, v179, v183
    v_add_f32 v184, v184, v188
    v_add_f32 v185, v185, v189
    v_add_f32 v186, v186, v190
    v_add_f32 v187, v187, v191
    v_add_f32 v176, v176, v184
    v_add_f32 v177, v177, v185
    v_add_f32 v178, v178, v186
    v_add_f32 v179, v179, v187
    """)
    bf16_round_pairs(A, [176, 177, 178, 179], 180)
    A(f"""
    v_bfe_u32 v10, v1, 4, 1
    v_cvt_f32_u32 v180, v10
    v_add_f32 v176, v180, v176
    v_add_f32 v177, v180, v177
    v_add_f32 v178, v180, v178
    v_add_f32 v179, v180, v179
    v_cvt_pk_bf16_f32 v176, v176, v177
    v_cvt_pk_bf16_f32 v177, v178, v179
    v_xor_b32 v10, 1, v10
    v_lshlrev_b32 v10, 7, v10
    v_and_b32 v9, 15, v1
    v_lshl_add_u32 v10, v9, 3, v10
    s_lshl_b32 s36, s30, 8
    s_add_u32 s36, s36, {UV_VEC}
    v_add_u32 v10, s36, v10
    ds_write_b64 v10, v[176:177]
    v_and_b32 v9, 31, v1               ; t
    v_lshrrev_b32 v11, 5, v1           ; h
    v_min_u32 v10, 1, v9
    v_lshlrev_b32 v10, 7, v10
    v_lshl_add_u32 v10, v11, 4, v10
    v_add_u32 v10, s36, v10
    v_bfe_u32 v8, v1, 2, 2
    v_lshlrev_b32 v8, 6, v8
    v_bfe_u32 v12, v1, 4, 1
    v_lshl_add_u32 v8, v12, 5, v8
    v_and_b32 v12, 3, v1
    v_lshl_add_u32 v8, v12, 3, v8
    v_lshl_add_u32 v8, v11, 9, v8
    s_lshl_b32 s37, s30, 12
    s_add_u32 s37, s37, {UV_W}
    v_add_u32 v8, s37, v8
    v_cmp_eq_u32 vcc, 2, v9
    v_cmp_lt_u32 s[62:63], v9, 2
    v_mov_b32 v12, 0x3f803f80
    v_mov_b32 v13, 0
    s_waitcnt lgkmcnt(0)
    """)
    BV, AV = 176, 192
    for s_ in range(4):
        A(f"ds_read_b128 v[{BV+4*s_}:{BV+4*s_+3}], v10 offset:{s_*32}")
    for s_ in range(4):
        for e in range(2):
            A(f"ds_read_b64_tr_b16 v[{AV+4*s_+2*e}:{AV+4*s_+2*e+1}], v8 offset:{s_*1024 + e*256}")
    A("v_cndmask_b32 v12, v13, v12, vcc\ns_waitcnt lgkmcnt(0)")
    for i in range(16):
        A(f"v_cndmask_b32 v{BV+i}, v12, v{BV+i}, s[62:63]")
    A("s_nop 1")
    for s_ in range(4):
        cc = "0" if s_ == 0 else "v[208:223]"
        A(f"v_mfma_f32_32x32x16_bf16 v[208:223], v[{AV+4*s_}:{AV+4*s_+3}], v[{BV+4*s_}:{BV+4*s_+3}], {cc}")
        cc = "0" if s_ == 0 else "v[224:239]"
        A(f"v_mfma_f32_32x32x16_bf16 v[224:239], v[{BV+4*s_}:{BV+4*s_+3}], v[{BV+4*s_}:{BV+4*s_+3}], {cc}")
    A(f"""
    s_nop 15
    v_cmp_gt_u32 vcc, 4, v9
    s_and_saveexec_b64 s[54:55], vcc
    v_lshlrev_b32 v10, 7, v9           ; t*128
    v_lshl_add_u32 v10, v11, 4, v10    ; + h*16
    s_lshl_b32 s36, s30, 9
    s_add_u32 s36, s36, {UV_RED}
    v_add_u32 v10, s36, v10
    """)
    for jq in range(4):
        A(f"ds_write_b128 v10, v[{208+4*jq}:{211+4*jq}] offset:{jq*32}")
    A(f"""
    v_lshlrev_b32 v10, 4, v9
    s_lshl_b32 s36, s30, 6
    s_add_u32 s36, s36, {UV_RED + 4096}
    v_add_u32 v10, s36, v10
    v_cmp_eq_u32 vcc, 0, v11
    s_and_b64 exec, exec, vcc
    ds_write_b128 v10, v[224:227]
    s_mov_b64 exec, s[54:55]
    s_waitcnt lgkmcnt(0)
    s_barrier
    s_cmp_eq_u32 s30, 1
    s_cbranch_scc0 UV_NG
    s_cmp_eq_u32 s60, 0
    s_cbranch_scc0 UV_END
    v_lshlrev_b32 v10, 2, v1
    v_add_u32 v8, {UV_RED + 4096}, v10
    """)
    for w_ in range(8):
        A(f"ds_read_b32 v{176+w_}, v8 offset:{w_*64}")
    A("s_waitcnt lgkmcnt(0)")
    for st in (4, 2, 1):
        for i in range(st):
            A(f"v_add_f32 v{176+i}, v{176+i}, v{176+i+st}")
    A(f"""
    s_lshl_b32 s36, s61, 6
    s_add_u32 s36, s36, {2*UVW_P}
    v_cmp_gt_u32 vcc, 16, v1
    s_and_saveexec_b64 s[54:55], vcc
    buffer_store_dword v176, v10, s[40:43], s36 offen {SC}
    s_mov_b64 exec, s[54:55]
    s_branch UV_END
    UV_NG:
    s_cmp_lt_u32 s30, 4
    s_cbranch_scc0 UV_END
    s_cmp_lt_u32 s2, 224
    s_cbranch_scc0 UV_END
    s_cmp_eq_u32 s30, 0
    s_cselect_b32 s37, 0, s30
    s_sub_u32 s38, s37, 1
    s_cselect_b32 s37, 0, s38          ; t = (w==0) ? 0 : w-1
    v_and_b32 v9, 31, v1
    v_lshlrev_b32 v10, 2, v9
    s_lshl_b32 s36, s37, 7
    s_add_u32 s36, s36, {UV_RED}
    v_add_u32 v8, s36, v10
    """)
    for w_ in range(8):
        A(f"ds_read_b32 v{176+w_}, v8 offset:{w_*512}")
    A("s_waitcnt lgkmcnt(0)")
    for st in (4, 2, 1):
        for i in range(st):
            A(f"v_add_f32 v{176+i}, v{176+i}, v{176+i+st}")
    A(f"""
    s_mul_i32 s36, s61, {UVW_P}
    s_mul_i32 s38, s37, {3584*4}
    s_add_u32 s36, s36, s38
    s_lshl_b32 s38, s60, 7
    s_add_u32 s36, s36, s38
    v_cmp_gt_u32 vcc, 32, v1
    s_and_saveexec_b64 s[54:55], vcc
    buffer_store_dword v176, v10, s[40:43], s36 offen {SC}
    s_mov_b64 exec, s[54:55]
    UV_END:
    """)


def phase2(A):
    SB = [65536, 98304, 0]
    FLAG = 131072
    wg_map_64(A)
    lane_setup(A)
    srd(A, 8, PTR['wq'], 0, 1024*2048)
    srd(A, 12, 20, WS_H, SZ_ACT)
    srd(A, 16, 20, WS_KV, 0x40000)
    srd(A, 24, 20, WS_O, SZ_ACT)
    gemm64_setup(A, 1024, 2048, 64, perm=False)
    g64_w_prologue(A, 2048)
    A(f"""
    v_mov_b32 v5, {FLAG}
    v_mov_b32 v6, 0
    ds_write_b32 v5, v6
    s_lshl_b32 s42, s30, 12            ; w*4096
    """)
    A(f"""
    s_lshr_b32 s52, s2, 3              ; idx
    s_and_b32 s53, s2, 7               ; xcd
    v_lshrrev_b32 v5, 3, v1
    v_lshlrev_b32 v5, 11, v5
    v_and_b32 v6, 7, v1
    v_lshl_add_u32 v5, v6, 7, v5       ; (l>>3)*2048 + (l&7)*128
    s_lshl_b32 s36, s52, 5
    s_lshl_b32 s37, s30, 3
    s_add_u32 s36, s36, s37
    s_lshl_b32 s36, s36, 11
    s_lshr_b32 s37, s53, 2
    s_lshl_b32 s37, s37, 10
    s_add_u32 s36, s36, s37
    v_add_u32 v5, s36, v5
    v_lshrrev_b32 v6, 4, v1
    v_mul_u32_u24 v6, 7168, v6
    v_and_b32 v7, 15, v1
    v_min_u32 v7, 13, v7
    v_lshl_add_u32 v6, v7, 7, v6
    s_xor_b32 s37, s30, 4              ; u
    s_lshl_b32 s37, s37, 2
    s_lshl_b32 s36, s52, 5
    s_add_u32 s36, s36, s37
    s_mul_i32 s36, s36, 7168
    s_lshr_b32 s37, s53, 1
    s_mul_i32 s37, s37, 1792
    s_add_u32 s36, s36, s37
    v_add_u32 v6, s36, v6              ; W1 offset
    s_mul_i32 s36, s2, 224
    s_sub_u32 s37, s30, 4
    s_and_b32 s37, s37, 3
    s_lshl_b32 s37, s37, 6
    s_add_u32 s36, s36, s37
    v_add_u32 v7, s36, v1
    v_min_u32 v7, 57343, v7
    v_lshlrev_b32 v7, 7, v7            ; W2 offset
    s_cmp_lt_u32 s30, 4
    s_cselect_b32 s60, s{PTR['wo']}, s{PTR['w1']}
    s_cselect_b32 s61, s{PTR['wo']+1}, s{PTR['w1']+1}
    s_cselect_b32 s62, s{PTR['w1']}, s{PTR['w2']}
    s_cselect_b32 s63, s{PTR['w1']+1}, s{PTR['w2']+1}
    s_cselect_b64 vcc, -1, 0
    s_nop 1
    v_cndmask_b32 v168, v6, v5, vcc    ; A: w<4 ? Wo : W1
    v_cndmask_b32 v169, v7, v6, vcc    ; B: w<4 ? W1 : W2
    """)
    poll_by(A, 7, [("s56", 4)], [248], pre=f"s_lshl_b32 s56, s28, 9\ns_add_u32 s56, s56, {F_H}")
    dbg_srd(A, 4)
    A("s_barrier")
    mprof(A, 2)
    g64_b_prologue(A)
    def kv_issue(lds_const, stage):
        A(f"s_add_u32 m0, s42, {lds_const}\ns_add_u32 s36, s42, {stage*32768}")
        for q in range(4):
            A(f"buffer_load_dwordx4 v2, s[16:19], s36 offen offset:{q*1024} {SC} lds")
    def h0(A):
        cnt_load(A, C_KV, 172)
        cnt_load(A, C_M0B, 173)
    def pre2(A):
        cnt_check_or_poll(A, [(C_KV, 172, 128), (C_M0B, 173, 128)])
    def h2(A):
        kv_issue(SB[0], 0)
        kv_issue(SB[1], 1)
    g64_loop(A, "P2G", 8, 2048, False, {0: (2, h0), "pre2": pre2, "pre2_need": ("h0", 0), 2: (8, h2)})
    mprof(A, 3)
    g64_exchange(A, "P2G", 0)
    Q, C, S0, S1, P, O, Lr, SEL = 48, 56, 72, 88, 104, 112, 128, 132
    KF = [136, 144]; VF = [152, 160]
    SS = [S0, S1]
    qs = (32 ** -0.5) * LOG2E
    for i in range(16):
        A(f"v_mul_f32 v{16+i}, {f32(qs)}, v{16+i}")
    for m in range(8):
        A(f"v_cvt_pk_bf16_f32 v{Q+m}, v{16+2*m}, v{16+2*m+1}")
    A(f"""
    v_add_u32 v5, {SB[0]}, v2
    ds_read_b128 v[{KF[0]}:{KF[0]+3}], v5
    ds_read_b128 v[{KF[0]+4}:{KF[0]+7}], v5 offset:1024
    v_and_b32 v5, 3, v1
    v_bfe_u32 v6, v1, 2, 1
    v_bfe_u32 v7, v1, 4, 1
    v_xor_b32 v6, v6, v7
    v_or_b32 v5, v5, v6
    v_cmp_eq_u32 vcc, 0, v5
    v_mov_b32 v6, 0x3f803f80
    v_mov_b32 v5, 0
    s_mov_b32 s44, 0                   ; mode
    s_nop 0
    v_cndmask_b32 v{SEL}, v5, v6, vcc
    s_waitcnt lgkmcnt(0)
    v_mfma_f32_32x32x16_bf16 v[{S0}:{S0+15}], v[{KF[0]}:{KF[0]+3}], v[{Q}:{Q+3}], 0
    v_mfma_f32_32x32x16_bf16 v[{S0}:{S0+15}], v[{KF[0]+4}:{KF[0]+7}], v[{Q+4}:{Q+7}], v[{S0}:{S0+15}]
    v_mov_b32 v{SEL+1}, v{SEL}
    v_mov_b32 v{SEL+2}, v{SEL}
    v_mov_b32 v{SEL+3}, v{SEL}
    s_nop 12
    v_max3_f32 v7, v{S0}, v{S0+1}, v{S0+2}
    """)
    for i in range(3, 15, 2):
        A(f"v_max3_f32 v7, v7, v{S0+i}, v{S0+i+1}")
    A(f"""
    v_max_f32 v7, v7, v{S0+15}
    K2_SETC:
    v_mov_b32 v8, v7
    v_add_u32 v5, {SB[0]}, v2
    v_add_u32 v6, {SB[1]}, v2
    v_permlane32_swap_b32 v7, v8
    ds_read_b128 v[{KF[0]}:{KF[0]+3}], v5
    ds_read_b128 v[{KF[0]+4}:{KF[0]+7}], v5 offset:1024
    ds_read_b128 v[{KF[1]}:{KF[1]+3}], v5 offset:4096
    ds_read_b128 v[{KF[1]+4}:{KF[1]+7}], v5 offset:{4096+1024}
    ds_read_b128 v[{VF[0]}:{VF[0]+3}], v5 offset:2048
    ds_read_b128 v[{VF[0]+4}:{VF[0]+7}], v5 offset:3072
    v_max_f32 v7, v7, v8
    v_sub_f32 v7, 0, v7
    """)
    for i in range(16):
        A(f"v_mov_b32 v{C+i}, v7")
    for i in range(16):
        A(f"v_mov_b32 v{O+i}, 0")
    for i in range(4):
        A(f"v_mov_b32 v{Lr+i}, 0")
    for i in range(4):
        A(f"v_mov_b32 v{P+4+i}, 0\nv_mov_b32 v{VF[1]+4+i}, 0")
    A(f"""
    s_waitcnt lgkmcnt(0)
    v_mfma_f32_32x32x16_bf16 v[{S0}:{S0+15}], v[{KF[0]}:{KF[0]+3}], v[{Q}:{Q+3}], v[{C}:{C+15}]
    v_mfma_f32_32x32x16_bf16 v[{S0}:{S0+15}], v[{KF[0]+4}:{KF[0]+7}], v[{Q+4}:{Q+7}], v[{S0}:{S0+15}]
    s_mov_b32 s45, 0                   ; stage i
    s_add_u32 s46, s42, {2*32768}
    s_mov_b32 s47, {SB[2]}
    s_mov_b32 s56, {SB[0]}             ; cur
    s_mov_b32 s57, {SB[1]}             ; next
    s_nop 5
    """)
    mprof(A, 4)
    A(f"""
    K2_LOOP:
    s_cmp_lt_u32 s45, 3
    s_cbranch_scc1 K2_W1
    s_waitcnt vmcnt(0)
    K2_W1:
    s_waitcnt vmcnt(1)
    s_barrier
    s_add_u32 m0, s47, s42
    """)
    P0, P1 = P, P + 4
    def E(S, i): return f"v_exp_f32 v{S+i}, v{S+i}"
    def Cv(S, m): return f"v_cvt_pk_bf16_f32 v{P+m}, v{S+2*m}, v{S+2*m+1}"
    NT = 8
    for u in range(NT):
        S = SS[u % 2]; Sn = SS[(u+1) % 2]
        Kn = KF[(u+1) % 2]; Kl = KF[u % 2]
        V = VF[u % 2]; Vp = VF[(u+1) % 2]
        ka = ("v5", (u+2)*4096) if u+2 < NT else ("v6", (u+2-NT)*4096)
        va = ("v5", (u+1)*4096+2048) if u+1 < NT else ("v6", 2048)
        QKa = f"v_mfma_f32_32x32x16_bf16 v[{Sn}:{Sn+15}], v[{Kn}:{Kn+3}], v[{Q}:{Q+3}], v[{C}:{C+15}]"
        QKb = f"v_mfma_f32_32x32x16_bf16 v[{Sn}:{Sn+15}], v[{Kn+4}:{Kn+7}], v[{Q+4}:{Q+7}], v[{Sn}:{Sn+15}]"
        PVa = f"v_mfma_f32_32x32x16_bf16 v[{O}:{O+15}], v[{V}:{V+3}], v[{P0}:{P0+3}], v[{O}:{O+15}]"
        La = f"v_mfma_f32_16x16x32_bf16 v[{Lr}:{Lr+3}], v[{SEL}:{SEL+3}], v[{P0}:{P0+3}], v[{Lr}:{Lr+3}]"
        PVb_prev = f"v_mfma_f32_32x32x16_bf16 v[{O}:{O+15}], v[{Vp+4}:{Vp+7}], v[{P1}:{P1+3}], v[{O}:{O+15}]"
        Lb_prev = f"v_mfma_f32_16x16x32_bf16 v[{Lr}:{Lr+3}], v[{SEL}:{SEL+3}], v[{P1}:{P1+3}], v[{Lr}:{Lr+3}]"
        rdK = [f"ds_read_b128 v[{Kl}:{Kl+3}], {ka[0]} offset:{ka[1]}", f"ds_read_b128 v[{Kl+4}:{Kl+7}], {ka[0]} offset:{ka[1]+1024}"]
        rdV = [f"ds_read_b128 v[{Vp}:{Vp+3}], {va[0]} offset:{va[1]}", f"ds_read_b128 v[{Vp+4}:{Vp+7}], {va[0]} offset:{va[1]+1024}"]
        vm = []
        if u < 4:
            vm = [f"s_cmp_lt_u32 s45, 6", f"s_cbranch_scc0 K2_ND{u}",
                  f"buffer_load_dwordx4 v2, s[16:19], s46 offen offset:{u*1024} {SC} lds", f"K2_ND{u}:"]
        if u == 5:
            vm = ["s_cmp_eq_u32 s45, 0", "s_cbranch_scc0 K2_PFA", "global_load_dword v170, v168, s[60:61]", "K2_PFA:",
                  "s_cmp_eq_u32 s45, 1", "s_cbranch_scc0 K2_PFB", "global_load_dword v170, v169, s[62:63]", "K2_PFB:"]
        seq = ["s_waitcnt lgkmcnt(0)", QKa, E(S,0), E(S,1), E(S,2),
               PVb_prev, E(S,3), E(S,4), E(S,5),
               Lb_prev, rdK[0], rdK[1], E(S,6), E(S,7), Cv(S,0), Cv(S,1),
               QKb, rdV[0], rdV[1], Cv(S,2), Cv(S,3), E(S,8), E(S,9),
               PVa] + vm + [E(S,10), E(S,11), E(S,12),
               La, E(S,13), E(S,14), E(S,15), Cv(S,4), Cv(S,5), Cv(S,6), Cv(S,7)]
        for x in seq: A(x)
    A(f"""
    v_mov_b32 v5, v6
    v_add_u32 v6, s47, v2
    s_mov_b32 s36, s56
    s_mov_b32 s56, s57
    s_mov_b32 s57, s47
    s_mov_b32 s47, s36
    s_add_u32 s46, s46, 32768
    s_add_u32 s45, s45, 1
    s_cmp_lt_u32 s45, 8
    s_cbranch_scc1 K2_LOOP
    v_mfma_f32_32x32x16_bf16 v[{O}:{O+15}], v[{VF[1]+4}:{VF[1]+7}], v[{P+4}:{P+7}], v[{O}:{O+15}]
    v_mfma_f32_16x16x32_bf16 v[{Lr}:{Lr+3}], v[{SEL}:{SEL+3}], v[{P+4}:{P+7}], v[{Lr}:{Lr+3}]
    s_waitcnt vmcnt(0) lgkmcnt(0)
    s_nop 15
    """)
    mprof(A, 5)
    A(f"""
    v_mov_b32 v7, {f32(2.0**100)}
    v_cmp_nlt_f32 vcc, v{Lr}, v7
    s_mov_b64 s[48:49], vcc
    v_mov_b32 v7, 0x207
    """)
    for i in range(16):
        A(f"v_cmp_class_f32 vcc, v{O+i}, v7\ns_or_b64 s[48:49], s[48:49], vcc")
    A(f"""
    v_rcp_f32 v7, v{Lr}
    s_cmp_eq_u64 s[48:49], 0
    s_cbranch_scc1 K2_NOFLAG
    v_mov_b32 v9, {FLAG}
    v_mov_b32 v8, 1
    ds_write_b32 v9, v8
    K2_NOFLAG:
    """)
    for i in range(16):
        A(f"v_mul_f32 v{O+i}, v{O+i}, v7")
    for m in range(8):
        A(f"v_cvt_pk_bf16_f32 v{P+m}, v{O+2*m}, v{O+2*m+1}")
    A(f"""
    s_lshl_b32 s36, s28, 2
    s_add_u32 s36, s36, s31
    s_lshl_b32 s36, s36, 6
    s_lshl_b32 s37, s29, 2
    s_add_u32 s36, s36, s37
    s_lshl_b32 s37, s32, 1
    s_add_u32 s36, s36, s37
    s_lshl_b32 s36, s36, 10
    buffer_store_dwordx4 v[{P}:{P+3}], v2, s[24:27], s36 offen {SC}
    buffer_store_dwordx4 v[{P+4}:{P+7}], v2, s[24:27], s36 offen offset:1024 {SC}
    """)
    uvw_issue(A)
    srd(A, 8, PTR['wo'], 0, 1024*2048)
    srd(A, 12, 20, WS_O, SZ_ACT)
    gemm64_setup(A, 1024, 2048, 64, perm=True)
    g64_w_prologue(A, 2048)
    A(f"""
    s_waitcnt vmcnt(14) lgkmcnt(0)
    s_barrier
    s_cmp_lg_u32 s44, 0
    s_cbranch_scc1 K2_FINISH
    v_mov_b32 v9, {FLAG}
    ds_read_b32 v8, v9
    s_waitcnt lgkmcnt(0)
    v_readfirstlane_b32 s36, v8
    s_nop 3
    s_cmp_eq_u32 s36, 0
    s_cbranch_scc1 K2_FINISH
    s_waitcnt vmcnt(0)
    s_mov_b32 s44, 1
    s_lshl_b32 s42, s30, 12
    v_mov_b32 v7, 0xff800000
    s_mov_b32 s45, 0
    v_add_u32 v5, {SB[0]}, v2
    K2_MAXL:
    s_barrier
    s_lshl_b32 s36, s45, 15
    s_add_u32 s36, s36, s42
    s_add_u32 m0, s42, {SB[0]}
    s_nop 0
    """)
    for q in range(4):
        A(f"buffer_load_dwordx4 v2, s[16:19], s36 offen offset:{q*1024} {SC} lds")
    A("s_waitcnt vmcnt(0)\ns_barrier")
    for u in range(8):
        A(f"""
        ds_read_b128 v[{KF[0]}:{KF[0]+3}], v5 offset:{u*4096}
        ds_read_b128 v[{KF[0]+4}:{KF[0]+7}], v5 offset:{u*4096+1024}
        s_waitcnt lgkmcnt(0)
        v_mfma_f32_32x32x16_bf16 v[{S0}:{S0+15}], v[{KF[0]}:{KF[0]+3}], v[{Q}:{Q+3}], 0
        v_mfma_f32_32x32x16_bf16 v[{S0}:{S0+15}], v[{KF[0]+4}:{KF[0]+7}], v[{Q+4}:{Q+7}], v[{S0}:{S0+15}]
        s_nop 15
        """)
        for i in range(0, 16, 2):
            A(f"v_max3_f32 v7, v7, v{S0+i}, v{S0+i+1}")
    A(f"""
    s_add_u32 s45, s45, 1
    s_cmp_lt_u32 s45, 8
    s_cbranch_scc1 K2_MAXL
    s_barrier
    """)
    kv_issue(SB[0], 0)
    kv_issue(SB[1], 1)
    A(f"""
    s_waitcnt vmcnt(0)
    s_barrier
    s_branch K2_SETC
    K2_FINISH:
    """)
    mprof2(A, 12, 't23')


def phase3(A):
    TOP = 126464
    VEC = TOP + 32768
    A(f"s_lshl_b32 s56, s28, 4\ns_add_u32 s56, s56, s29")
    signal(A, F_O, "s56", wave=0)
    u7 = uid()
    A(f"s_cmp_eq_u32 s30, 7\ns_cbranch_scc0 P3W{u7}")
    dbg_srd(A, 4)
    cnt_load(A, C_MR, 249)
    A(f"s_lshl_b32 s56, s28, 11\ns_add_u32 s56, s56, {F_O}")
    poll(A, [("s56", 16)], [248])
    cnt_check_or_poll(A, [(C_MR, 249, 128)])
    A(f"P3W{u7}:")
    srd(A, 16, PTR['x'], 0, 2048*2048)
    srd(A, 44, 20, 0, 0x18000)
    srd(A, 48, 20, WS_Y, SZ_ACT)
    srd(A, 24, 20, WS_ST2, 0x10000)
    A("s_barrier")
    mprof(A, 6)
    g64_b_prologue(A)
    A("s_waitcnt vmcnt(12)")
    uvw_compute(A)
    def h1(A):
      A(f"""
      v_and_b32 v8, 31, v1               ; t
      v_lshrrev_b32 v9, 5, v1            ; h
      v_lshlrev_b32 v10, 11, v8
      v_lshl_add_u32 v10, v9, 4, v10     ; t*2048 + h*16
      s_lshl_b32 s36, s28, 2
      s_add_u32 s36, s36, s31
      s_lshl_b32 s36, s36, 16
      s_lshl_b32 s37, s29, 7
      s_add_u32 s36, s36, s37
      s_lshl_b32 s37, s32, 6
      s_add_u32 s36, s36, s37
      buffer_load_dwordx4 v[144:147], v10, s[16:19], s36 offen
      buffer_load_dwordx4 v[148:151], v10, s[16:19], s36 offen offset:32
      v_lshlrev_b32 v11, 2, v1
      s_lshl_b32 s36, s29, 8             ; j*64*4
      """)
      for p, r in enumerate((152, 153, 162, 163)):
          A(f"s_add_u32 s37, s36, {0x10000 + p*8192}\nbuffer_load_dword v{r}, v11, s[44:47], s37 offen {SC}")
      for p in range(4):
          A(f"s_add_u32 s37, s36, {p*16384 + 8192}\nbuffer_load_dword v{154+p}, v11, s[44:47], s37 offen {SC}")
      for p in range(4):
          A(f"s_add_u32 s37, s36, {p*16384 + 12288}\nbuffer_load_dword v{158+p}, v11, s[44:47], s37 offen {SC}")
    g64_loop(A, "P3G", 8, 2048, True, {1: (14, h1)})
    A("s_cmp_lt_u32 s2, 224\ns_cbranch_scc0 UV_NOSIG")
    cnt_signal(A, C_UV, wave=0)
    A("UV_NOSIG:")
    mprof(A, 7)
    A(f"""
    v_add_f32 v152, v152, v153
    v_add_f32 v162, v162, v163
    v_add_f32 v152, v152, v162
    v_add_f32 v154, v154, v155
    v_add_f32 v156, v156, v157
    v_add_f32 v158, v158, v159
    v_add_f32 v160, v160, v161
    v_add_f32 v154, v154, v156
    v_add_f32 v158, v158, v160
    v_cvt_pk_bf16_f32 v152, v152, v154
    v_cvt_pk_bf16_f32 v158, v158, v158
    v_and_b32 v154, 0xffff0000, v152       ; sb
    v_lshlrev_b32 v152, 16, v152           ; ga
    v_lshlrev_b32 v158, 16, v158
    v_add_f32 v158, 1.0, v158
    v_cvt_pk_bf16_f32 v158, v158, v158
    v_lshlrev_b32 v158, 16, v158           ; g2
    v_lshlrev_b32 v8, 2, v1
    v_add_u32 v8, {VEC}, v8
    ds_write_b32 v8, v152
    ds_write_b32 v8, v158 offset:256
    v_lshlrev_b32 v8, 1, v1
    v_add_u32 v8, {VEC}, v8
    ds_write_b16_d16_hi v8, v154 offset:512
    ds_write_b16_d16_hi v8, v158 offset:640
    """)
    g64_exchange(A, "P3G", TOP)
    mprof2(A, 12, 't34')
    GA, G2, SBP, G2P = 152, 168, 184, 192
    A(f"""
    v_lshrrev_b32 v9, 5, v1
    v_lshlrev_b32 v10, 4, v9
    s_lshl_b32 s36, s32, 7
    s_add_u32 s36, s36, {VEC}
    v_add_u32 v10, s36, v10
    v_lshlrev_b32 v11, 3, v9
    s_lshl_b32 s36, s32, 6
    s_add_u32 s36, s36, {VEC}
    v_add_u32 v11, s36, v11
    """)
    for jq in range(4):
        A(f"ds_read_b128 v[{GA+4*jq}:{GA+4*jq+3}], v10 offset:{jq*32}")
    for jq in range(4):
        A(f"ds_read_b128 v[{G2+4*jq}:{G2+4*jq+3}], v10 offset:{256 + jq*32}")
    for jq in range(4):
        A(f"ds_read_b64 v[{SBP+2*jq}:{SBP+2*jq+1}], v11 offset:{512 + jq*16}")
        A(f"ds_read_b64 v[{G2P+2*jq}:{G2P+2*jq+1}], v11 offset:{640 + jq*16}")
    A("v_permlane32_swap_b32 v144, v146\nv_permlane32_swap_b32 v145, v147\nv_permlane32_swap_b32 v148, v150\nv_permlane32_swap_b32 v149, v151")
    A(f"""
    s_lshl_b32 s36, s28, 2
    s_add_u32 s36, s36, s31
    s_lshl_b32 s36, s36, 6
    s_lshl_b32 s37, s29, 2
    s_add_u32 s36, s36, s37
    s_lshl_b32 s37, s32, 1
    s_add_u32 s36, s36, s37
    s_lshl_b32 s36, s36, 10
    v_mov_b32 v70, 0x3f803f80
    s_waitcnt lgkmcnt(8)
    """)
    for jq in range(4):
        for d in range(2):
            x = 144 + 2*jq + d
            r = 16 + 4*jq + 2*d
            t = 72 + 2*((2*jq+d) % 4)
            A(f"""
            v_lshlrev_b32 v{t}, 16, v{x}
            v_and_b32 v{t+1}, 0xffff0000, v{x}
            v_fma_f32 v{r}, v{r}, v{GA+4*jq+2*d}, v{t}
            v_fma_f32 v{r+1}, v{r+1}, v{GA+4*jq+2*d+1}, v{t+1}
            """)
    A("s_waitcnt lgkmcnt(0)")
    Z = 48
    for m in range(8):
        A(f"v_mul_f32 v{Z+2*m}, v{16+2*m}, v{G2+2*m}\nv_mul_f32 v{Z+2*m+1}, v{16+2*m+1}, v{G2+2*m+1}")
        A(f"v_cvt_pk_bf16_f32 v{X1R+m}, v{16+2*m}, v{16+2*m+1}")
    for m in range(8):
        A(f"v_cvt_pk_bf16_f32 v{40+m}, v{Z+2*m}, v{Z+2*m+1}")
    A(f"""
    buffer_store_dwordx4 v[40:43], v2, s[48:51], s36 offen {SC}
    buffer_store_dwordx4 v[44:47], v2, s[48:51], s36 offen offset:1024 {SC}
    """)
    mprof2(A, 13, 't34')
    S = 64
    for m in range(8):
        c = (lambda k: "0" if m == 0 else f"v{S+k}")
        A(f"""
        v_dot2_f32_bf16 v{S}, v{X1R+m}, v70, {c(0)}
        v_dot2_f32_bf16 v{S+1}, v{X1R+m}, v{X1R+m}, {c(1)}
        v_dot2_f32_bf16 v{S+2}, v{40+m}, v70, {c(2)}
        v_dot2_f32_bf16 v{S+3}, v{40+m}, v{G2P+m}, {c(3)}
        v_dot2_f32_bf16 v{S+4}, v{40+m}, v{40+m}, {c(4)}
        v_dot2_f32_bf16 v{S+5}, v{40+m}, v{SBP+m}, {c(5)}
        """)
    A("s_nop 2")
    for k in range(6):
        A(f"v_mov_b32 v{72+k}, v{S+k}")
    A("s_nop 1")
    for k in range(6):
        A(f"v_permlane32_swap_b32 v{S+k}, v{72+k}")
    A("s_nop 1")
    for k in range(6):
        A(f"v_add_f32 v{S+k}, v{S+k}, v{72+k}")
    A(f"""
    v_and_b32 v8, 31, v1
    v_lshlrev_b32 v8, 5, v8
    s_lshl_b32 s37, s31, 13
    s_add_u32 s37, s37, {TOP + 4096}
    v_add_u32 v8, s37, v8
    v_mov_b32 v{S+6}, 0
    v_mov_b32 v{S+7}, 0
    s_lshl_b32 s101, s28, 4
    s_add_u32 s101, s101, s29
    s_cmp_eq_u32 s32, 1
    s_cbranch_scc0 P3_ST0
    ds_write_b128 v8, v[{S}:{S+3}]
    ds_write_b128 v8, v[{S+4}:{S+7}] offset:16
    s_waitcnt vmcnt(0) lgkmcnt(0)
    s_barrier
    s_branch P3_STE
    P3_ST0:
    s_waitcnt vmcnt(0)
    s_barrier
    """)
    signal(A, F_Z, "s101", wave=0)
    A(f"""
    ds_read_b128 v[72:75], v8
    ds_read_b128 v[76:79], v8 offset:16
    s_waitcnt lgkmcnt(0)
    """)
    for k in range(6):
        A(f"v_add_f32 v{S+k}, v{S+k}, v{72+k}")
    A(f"""
    v_cmp_lt_u32 vcc, 31, v1
    v_and_b32 v8, 31, v1
    v_lshlrev_b32 v8, 5, v8            ; t*32
    v_lshrrev_b32 v9, 5, v1
    v_lshl_add_u32 v8, v9, 2, v8       ; + h*4
    v_cndmask_b32 v{S}, v{S}, v{S+1}, vcc
    v_cndmask_b32 v{S+2}, v{S+2}, v{S+3}, vcc
    v_cndmask_b32 v{S+4}, v{S+4}, v{S+5}, vcc
    s_lshl_b32 s36, s28, 2
    s_add_u32 s36, s36, s31
    s_lshl_b32 s36, s36, 10
    buffer_atomic_add_f32 v{S}, v8, s[24:27], s36 offen sc1
    buffer_atomic_add_f32 v{S+2}, v8, s[24:27], s36 offen offset:8 sc1
    buffer_atomic_add_f32 v{S+4}, v8, s[24:27], s36 offen offset:16 sc1
    P3_STE:
    """)


def phase4(A):
    SLOT = 28672
    ACC, AF, BF = 16, 128, 184
    AX = 4*SLOT; BX = AX + 7168; AL = BX + 4096
    wg_map_224(A)
    srd(A, 8, PTR['w1'], 0, 1024*7168)
    srd(A, 12, 20, WS_Y, SZ_ACT)
    srd(A, 16, PTR['b1'], 0, 7168)
    srd(A, 24, 20, WS_HH, SZ_HH)
    A("s_cmp_ge_u32 s30, 4\ns_cbranch_scc1 P4_LOADER")
    mprof2(A, 14, 't34')
    A("s_waitcnt vmcnt(0)\ns_barrier")
    mprof2(A, 15, 't34')
    signal(A, F_ST, "s101", wave=0)
    A(f"""
    v_lshrrev_b32 v9, 5, v1            ; h
    s_lshl_b32 s34, s28, 2
    s_add_u32 s34, s34, s30
    s_lshl_b32 s34, s34, 16
    v_bfe_u32 v6, v1, 2, 2
    v_lshlrev_b32 v4, 6, v6
    v_bfe_u32 v5, v1, 4, 1
    v_lshl_add_u32 v4, v5, 5, v4
    v_and_b32 v7, 3, v1
    v_lshl_add_u32 v4, v7, 3, v4
    v_mul_u32_u24 v5, 1792, v9
    v_add_u32 v4, v4, v5
    v_add_u32 v3, {2*SLOT}, v4
    """)
    for i in range(112):
        A(f"v_mov_b32 v{ACC+i}, 0")
    A("s_barrier")
    mprof(A, 8)
    for n in range(8):
        if n == 4:
            A("s_add_u32 s34, s34, 4096")
        A(f"buffer_load_dwordx4 v[{BF+4*n}:{BF+4*n+3}], v2, s[12:15], s34 offen offset:{(n & 3)*1024} {SC}")
    A("s_add_u32 s34, s34, 4096")
    def areads(slot, ks, buf):
        va = "v4" if slot < 2 else "v3"
        base = (slot & 1)*SLOT + ks*7168
        out = []
        for ft in range(7):
            for e in range(2):
                r = AF + 28*buf + 4*ft + 2*e
                out.append(f"ds_read_b64_tr_b16 v[{r}:{r+1}], {va} offset:{base + e*3584 + ft*256}")
        return out
    for x in areads(0, 0, 0):
        A(x)
    A("s_mov_b32 s41, 4\nP4_LOOP:")
    n = 0
    for slot in range(4):
        A("s_barrier")
        if genlib.PROF and genlib.PROFSET == "p4":
            A(f"s_sub_u32 s92, 4, s41\ns_lshl_b32 s92, s92, 2\ns_add_u32 s92, s92, {16+slot}\ns_nop 0\ns_memtime s[90:91]\ns_waitcnt lgkmcnt(0)\ns_mov_b32 m0, s92\nv_writelane_b32 v252, s90, m0")
        for ks in range(4):
            buf = n % 2
            nslot, nks = (slot, ks+1) if ks < 3 else ((slot+1) % 4, 0)
            rd = areads(nslot, nks, 1-buf)
            b = BF + 4*(n % 8)
            A("s_waitcnt vmcnt(7) lgkmcnt(0)")
            for ft in range(7):
                a = AF + 28*buf + 4*ft
                c = ACC + 16*ft
                A(f"v_mfma_f32_32x32x16_bf16 v[{c}:{c+15}], v[{a}:{a+3}], v[{b}:{b+3}], v[{c}:{c+15}]")
                if ft < 5:
                    k = 3 if ft < 4 else 2
                    for x in rd[:k]:
                        A(x)
                    rd = rd[k:]
            A(f"buffer_load_dwordx4 v[{b}:{b+3}], v2, s[12:15], s34 offen offset:{(n & 3)*1024} {SC}")
            if n % 4 == 3:
                A("s_add_u32 s34, s34, 4096")
            n += 1
    A(f"""
    s_sub_u32 s41, s41, 1
    s_cmp_lg_u32 s41, 0
    s_cbranch_scc1 P4_LOOP
    s_waitcnt lgkmcnt(0)
    v_add_u32 v10, {AX}, v2
    """)
    for ft in range(7):
        A(f"ds_read_b128 v[{AF+4*ft}:{AF+4*ft+3}], v10 offset:{ft*1024}")
    A(f"""
    s_lshl_b32 s36, s30, 10
    v_add_u32 v11, s36, v10
    ds_read_b128 v[{AF+28}:{AF+31}], v11 offset:{BX-AX}
    v_and_b32 v11, 31, v1
    v_lshlrev_b32 v11, 2, v11
    s_lshl_b32 s36, s30, 7
    v_add_u32 v11, s36, v11
    v_add_u32 v11, {AL}, v11
    ds_read_b32 v12, v11
    s_waitcnt lgkmcnt(0)
    s_barrier
    """)
    for ft in range(7):
        c = ACC + 16*ft
        A(f"v_mfma_f32_32x32x16_bf16 v[{c}:{c+15}], v[{AF+4*ft}:{AF+4*ft+3}], v[{AF+28}:{AF+31}], v[{c}:{c+15}]")
    A("s_waitcnt vmcnt(0)\ns_nop 15")
    mprof(A, 9)
    A(f"""
    v_mul_f32 v6, {f32(GELU_C1)}, v12
    v_mul_f32 v8, v12, v12
    v_mul_f32 v8, v8, v12
    v_mul_f32 v8, {f32(GELU_C2)}, v8
    v_rcp_f32 v10, v12
    v_mov_b32 v7, v6
    v_mov_b32 v9, v8
    v_mov_b32 v11, v10
    """)
    A(f"""
    s_lshl_b32 s36, s28, 2
    s_add_u32 s36, s36, s30
    s_mul_i32 s36, s36, 224
    s_mul_i32 s37, s29, 14
    s_add_u32 s36, s36, s37
    s_lshl_b32 s36, s36, 10
    """)
    for ft in range(7):
        c = ACC + 16*ft
        T = 160; E = 176
        pr = lambda r, i: f"v[{r+2*i}:{r+2*i+1}]"
        for i in range(8): A(f"v_pk_mul_f32 {pr(T,i)}, {pr(c,i)}, {pr(c,i)}")
        for i in range(8): A(f"v_pk_fma_f32 {pr(T,i)}, {pr(T,i)}, v[8:9], v[6:7]")
        for i in range(8): A(f"v_pk_mul_f32 {pr(T,i)}, {pr(T,i)}, {pr(c,i)}")
        for i in range(16): A(f"v_exp_f32 v{T+i}, v{T+i}")
        for i in range(8): A(f"v_pk_fma_f32 {pr(T,i)}, {pr(T,i)}, v[10:11], v[10:11]")
        for i in range(16): A(f"v_rcp_f32 v{T+i}, v{T+i}")
        for i in range(8): A(f"v_pk_mul_f32 {pr(T,i)}, {pr(T,i)}, {pr(c,i)}")
        P = E + 8*(ft % 2)
        for m in range(8):
            A(f"v_cvt_pk_bf16_f32 v{P+m}, v{T+2*m}, v{T+2*m+1}")
        for e in range(2):
            kidx = 2*ft + e
            if kidx % 4 == 0 and kidx > 0:
                A("s_add_u32 s36, s36, 4096")
            A(f"buffer_store_dwordx4 v[{P+4*e}:{P+4*e+3}], v2, s[24:27], s36 offen offset:{(kidx & 3)*1024} {SC}")
    A(f"""
    s_lshl_b32 s101, s28, 4
    s_add_u32 s101, s101, s29
    """)
    mprof2(A, 12, 't45')
    A("s_branch P4_DONE")
    A(f"""
    P4_LOADER:
    s_setprio 2
    s_sub_u32 s31, s30, 4              ; lw
    s_mul_i32 s36, s31, 28
    v_lshrrev_b32 v5, 4, v1            ; l>>4
    v_add_u32 v5, s36, v5
    v_bfe_u32 v6, v1, 2, 2             ; r
    v_and_b32 v7, 3, v1                ; c
    """)
    for u in range(7):
        A(f"""
        v_add_u32 v8, {4*u}, v5
        v_mul_u32_u24 v9, 9363, v8
        v_lshrrev_b32 v9, 16, v9           ; q
        v_mul_u32_u24 v10, 7, v9
        v_sub_u32 v10, v8, v10             ; ft
        v_lshl_add_u32 v9, v9, 2, v6       ; row = 4q + r
        v_mul_u32_u24 v9, 7168, v9
        v_lshl_add_u32 v9, v10, 6, v9
        v_lshl_add_u32 v{16+u}, v7, 4, v9
        """)
    A(f"""
    s_mul_i32 s33, s29, 448
    s_mul_i32 s39, s31, 7168
    """)
    Q = []
    def issue_stage(st):
        for u in range(7):
            A(f"s_add_u32 m0, s39, {(st % 4)*SLOT + u*1024}\ns_nop 0\nbuffer_load_dwordx4 v{16+u}, s[8:11], s33 offen lds")
        A(f"s_add_u32 s33, s33, {64*7168}")
        Q.extend([("W", st)]*7)
    def wait_tag(tag):
        idx = max(i for i, t in enumerate(Q) if t == tag)
        return len(Q) - 1 - idx
    issue_stage(0)
    issue_stage(1)
    A("s_barrier")
    poll_by(A, 7, [("s56", 16)], [248], pre=f"s_lshl_b32 s56, s28, 11\ns_add_u32 s56, s56, {F_Z}")
    A(f"s_waitcnt vmcnt({wait_tag(('W', 0))})\ns_barrier")
    issue_stage(2)
    srd(A, 44, 20, WS_ST2, 0x10000)
    srd(A, 48, 20, WS_UVW, 2*UVW_P + 128)
    ST = 32; UV = 140
    A(f"""
    v_and_b32 v8, 31, v1               ; f / t
    s_mul_i32 s36, s29, 224
    s_lshl_b32 s37, s31, 5
    s_add_u32 s36, s36, s37            ; F0 = j*224 + lw*32
    v_add_u32 v9, s36, v8              ; F
    v_lshlrev_b32 v14, 2, v9           ; F*4
    v_lshlrev_b32 v15, 1, v9           ; F*2
    v_mov_b32 v236, 0
    s_lshl_b32 s52, s28, 2
    s_add_u32 s52, s52, s31
    s_lshl_b32 s52, s52, 10
    v_lshlrev_b32 v237, 5, v8
    """)
    small = []
    for tsel in range(2):
        for p in range(2):
            for m in range(3):
                small.append(f"s_mov_b32 s53, {p*UVW_P + m*3584*4}\nbuffer_load_dword v{UV+8*tsel+4*p+m}, v14, s[48:51], s53 offen offset:{512*tsel} {SC}")
        small.append(f"buffer_load_ushort v{UV+8*tsel+3}, v15, s[16:19], 0 offen offset:{256*tsel}")
    for p in range(2):
        small.append(f"s_mov_b32 s53, {2*UVW_P + p*64}\nbuffer_load_dwordx4 v[{104+8*p}:{107+8*p}], v236, s[48:51], s53 offen {SC}")
        small.append(f"s_mov_b32 s53, {2*UVW_P + p*64}\nbuffer_load_dwordx4 v[{108+8*p}:{111+8*p}], v236, s[48:51], s53 offen offset:16 {SC}")
    stl = [f"buffer_load_dwordx4 v[{ST}:{ST+3}], v237, s[44:47], s52 offen {SC}",
           f"buffer_load_dwordx4 v[{ST+4}:{ST+7}], v237, s[44:47], s52 offen offset:16 {SC}"]
    def liter(i):
        A(f"s_waitcnt vmcnt({wait_tag(('W', i+1))})\ns_barrier")
        if i + 3 < 16: issue_stage(i+3)
    for i in range(0, 5):
        liter(i)
    dbg_srd(A, 4)
    cnt_load(A, C_UV, 249)
    A(f"""
    v_min_u32 v248, 15, v1
    v_lshlrev_b32 v248, 7, v248
    s_lshl_b32 s56, s28, 11
    s_add_u32 s56, s56, {F_ST}
    buffer_load_dword v248, v248, s[96:99], s56 offen {FLAGS_SFX}
    """)
    Q.extend([("F", 0)]*2)
    liter(5)
    liter(6)
    A(f"s_waitcnt vmcnt({wait_tag(('F', 0))})")
    ug = uid()
    A(f"v_cmp_eq_u32 vcc, {TOK}, v248\ns_cmp_eq_u64 vcc, -1\ns_cbranch_scc1 STOK{ug}")
    poll(A, [("s56", 16)], [248])
    A(f"STOK{ug}:")
    cnt_check_or_poll(A, [(C_UV, 249, 224)])
    for x in stl + small[:7]:
        A(x); Q.append(("S", 0))
    liter(7)
    for x in small[7:]:
        A(x); Q.append(("S", 0))
    liter(8)
    liter(9)
    A(f"s_waitcnt vmcnt({wait_tag(('S', 0))})")
    for k in range(8):
        A(f"v_add_f32 v{104+k}, v{104+k}, v{112+k}")
    for tsel in range(2):
        for m in range(3):
            A(f"v_add_f32 v{UV+8*tsel+m}, v{UV+8*tsel+m}, v{UV+8*tsel+4+m}")
    S1, S2, S3, S4, S5, S6 = [ST+k for k in range(6)]
    G2c, GS, G1c, SB2, SB1 = 104, 105, 106, 109, 110
    iD = f32(1/1024)
    A(f"""
    v_mul_f32 v112, {iD}, v{S1}            ; mu1
    v_mul_f32 v113, {iD}, v{S2}
    v_fma_f32 v113, -v112, v112, v113      ; var1
    v_add_f32 v113, {f32(1e-5)}, v113
    v_rsq_f32 v114, v113                   ; r1
    s_nop 0
    v_mul_f32 v115, v113, v114             ; 1/r1
    v_fma_f32 v116, -v112, v{G1c}, v{S3}
    v_fma_f32 v116, v116, v114, v{SB1}
    v_mul_f32 v116, {iD}, v116             ; m2
    v_mul_f32 v117, v112, v{G2c}
    v_fma_f32 v117, -2.0, v{S4}, v117
    v_fma_f32 v117, v117, v112, v{S5}
    v_mul_f32 v117, v117, v114
    v_fma_f32 v118, -v112, v{GS}, v{S6}
    v_fma_f32 v117, 2.0, v118, v117
    v_fma_f32 v117, v117, v114, v{SB2}
    v_mul_f32 v117, {iD}, v117             ; E2
    v_fma_f32 v117, -v116, v116, v117      ; var2
    v_add_f32 v117, {f32(1e-5)}, v117
    v_rsq_f32 v118, v117                   ; r2
    s_nop 0
    v_mul_f32 v119, v117, v118             ; 1/r2
    v_mul_f32 v120, v114, v118             ; alpha
    v_sub_f32 v121, 0, v112                ; c1 = -mu1
    v_mul_f32 v122, v116, v115
    v_sub_f32 v122, 0, v122                ; c3 = -m2/r1
    v_mul_f32 v123, v115, v119             ; c4 = 1/alpha
    """)
    liter(10)
    split_hilo(A, 121, 124, 125, 8)
    split_hilo(A, 115, 126, 127, 8)
    split_hilo(A, 122, 128, 129, 8)
    split_hilo(A, 123, 130, 131, 8)
    def pk(dst, lo, hi):
        if lo is None and hi is None: A(f"v_mov_b32 v{dst}, 0")
        elif hi is None: A(f"v_lshrrev_b32 v{dst}, 16, v{lo}")
        else: A(f"v_lshrrev_b32 v{dst}, 16, v{lo}\nv_or_b32 v{dst}, v{dst}, v{hi}")
    pk(132, 124, 124); pk(133, 125, 126); pk(134, 126, 127); pk(135, 128, 128)
    pk(136, 129, 130); pk(137, 131, None); pk(138, None, None); pk(139, None, None)
    A(f"""
    v_cmp_lt_u32 vcc, 31, v1
    s_nop 1
    v_cndmask_b32 v132, v132, v136, vcc
    v_cndmask_b32 v133, v133, v137, vcc
    v_cndmask_b32 v134, v134, v138, vcc
    v_cndmask_b32 v135, v135, v139, vcc
    s_lshl_b32 s36, s31, 10
    v_add_u32 v10, s36, v2
    v_add_u32 v10, {BX}, v10
    ds_write_b128 v10, v[132:135]
    v_and_b32 v10, 31, v1
    v_lshlrev_b32 v10, 2, v10
    s_lshl_b32 s36, s31, 7
    v_add_u32 v10, s36, v10
    v_add_u32 v10, {AL}, v10
    ds_write_b32 v10, v120
    s_waitcnt lgkmcnt(0)
    """)
    for tsel in range(2):
        liter(11 + tsel)
        u_, v_, w_, b_ = UV+8*tsel, UV+8*tsel+1, UV+8*tsel+2, UV+8*tsel+3
        split_hilo(A, u_, 124, 125, 8)
        split_hilo(A, v_, 126, 127, 8)
        split_hilo(A, w_, 128, 129, 8)
        A(f"v_lshlrev_b32 v130, 16, v{b_}")
        pk(132, 124, 125); pk(133, 124, 126); pk(134, 127, 126); pk(135, 128, 129)
        pk(136, 128, 130); pk(137, 130, None); pk(138, None, None); pk(139, None, None)
        A(f"""
        v_cndmask_b32 v132, v132, v136, vcc
        v_cndmask_b32 v133, v133, v137, vcc
        v_cndmask_b32 v134, v134, v138, vcc
        v_cndmask_b32 v135, v135, v139, vcc
        s_add_u32 s36, s31, {4*tsel}
        s_cmp_lt_u32 s36, 7
        s_cbranch_scc0 P4_NOAX{tsel}
        s_lshl_b32 s36, s36, 10
        v_add_u32 v10, s36, v2
        v_add_u32 v10, {AX}, v10
        ds_write_b128 v10, v[132:135]
        P4_NOAX{tsel}:
        """)
    A("s_waitcnt lgkmcnt(0)")
    liter(13)
    liter(14)
    A("s_barrier")
    A("s_barrier")
    A("s_setprio 0")
    wg_map_64(A)
    srd(A, 8, PTR['w2'], 0, 3584*2048)
    A(f"""
    v_lshrrev_b32 v5, 5, v1
    v_bfe_u32 v6, v1, 2, 2
    v_lshl_add_u32 v5, v5, 2, v6
    v_mul_u32_u24 v3, 2048, v5
    v_bfe_u32 v5, v1, 4, 1
    v_lshl_add_u32 v3, v5, 6, v3
    v_and_b32 v7, 3, v1
    v_lshl_add_u32 v3, v7, 4, v3
    """)
    for kh in range(2):
        A(f"""
        s_lshl_b32 s36, s31, 4
        s_add_u32 s33, s36, {kh*1792}
        s_mul_i32 s33, s33, 2048
        s_lshl_b32 s36, s29, 7
        s_add_u32 s33, s33, s36
        s_lshl_b32 s39, s31, 11
        s_add_u32 s39, s39, {kh*8192}
        """)
        g64_w_prologue(A, 2048)
    A("P4_DONE:")


def phase5(A):
    A("s_waitcnt vmcnt(0)\ns_barrier")
    mprof2(A, 13, 't45')
    signal(A, F_HH, "s101", wave=0)
    wg_map_64(A)
    lane_setup(A)
    srd(A, 8, PTR['w2'], 0, 3584*2048)
    srd(A, 12, 20, WS_HH, SZ_HH)
    srd(A, 16, PTR['b2'], 0, 2048)
    srd(A, 24, PTR['out'], 0, 2048*2048)
    srd(A, 44, 20, 0, 0x18000)
    gemm64_setup(A, 3584, 2048, 224, perm=True)
    A(f"s_add_u32 s33, s33, {3*64*2048}")
    poll_by(A, 7, [("s56", 16)], [248], pre=f"s_lshl_b32 s56, s28, 11\ns_add_u32 s56, s56, {F_HH}")
    A("s_barrier")
    mprof(A, 10)
    g64_b_prologue(A)
    def h1(A):
      A(f"""
      v_lshlrev_b32 v11, 2, v1
      s_lshl_b32 s36, s29, 8
      s_add_u32 s36, s36, {0x10000 + 4096}
      buffer_load_dword v152, v11, s[44:47], s36 offen {SC}
      s_add_u32 s36, s36, 8192
      buffer_load_dword v153, v11, s[44:47], s36 offen {SC}
      s_add_u32 s36, s36, 8192
      buffer_load_dword v155, v11, s[44:47], s36 offen {SC}
      s_add_u32 s36, s36, 8192
      buffer_load_dword v156, v11, s[44:47], s36 offen {SC}
      v_lshlrev_b32 v11, 1, v1
      s_lshl_b32 s36, s29, 7
      buffer_load_ushort v154, v11, s[16:19], s36 offen
      """)
    g64_loop(A, "P5G", 28, 2048, True, {1: (5, h1)})
    mprof2(A, 14, 't45')
    A(f"""
    v_add_f32 v152, v152, v153
    v_add_f32 v155, v155, v156
    v_add_f32 v152, v152, v155
    v_cvt_pk_bf16_f32 v152, v152, v152
    v_lshlrev_b32 v152, 16, v152
    v_lshlrev_b32 v154, 16, v154
    v_lshlrev_b32 v155, 2, v1
    ds_write_b32 v155, v152 offset:32768
    ds_write_b32 v155, v154 offset:33024
    """)
    g64_exchange(A, "P5G", 0)
    A(f"""
    v_lshrrev_b32 v9, 5, v1
    v_lshlrev_b32 v9, 4, v9
    s_lshl_b32 s36, s32, 7
    v_add_u32 v9, s36, v9
    """)
    for jq in range(4):
        A(f"ds_read_b128 v[{152+4*jq}:{155+4*jq}], v9 offset:{32768 + jq*32}")
        A(f"ds_read_b128 v[{168+4*jq}:{171+4*jq}], v9 offset:{33024 + jq*32}")
    A("s_waitcnt lgkmcnt(0)")
    for jq in range(4):
        for d in range(2):
            x = X1R + 2*jq + d
            r = 16 + 4*jq + 2*d
            A(f"""
            v_add_f32 v{r}, v{r}, v{168+4*jq+2*d}
            v_add_f32 v{r+1}, v{r+1}, v{168+4*jq+2*d+1}
            v_lshlrev_b32 v8, 16, v{x}
            v_and_b32 v9, 0xffff0000, v{x}
            v_fma_f32 v{r}, v{r}, v{152+4*jq+2*d}, v8
            v_fma_f32 v{r+1}, v{r+1}, v{152+4*jq+2*d+1}, v9
            """)
    for m in range(8):
        A(f"v_cvt_pk_bf16_f32 v{32+m}, v{16+2*m}, v{16+2*m+1}")
    A(f"""
    s_nop 1
    v_permlane32_swap_b32 v32, v34
    v_permlane32_swap_b32 v33, v35
    v_permlane32_swap_b32 v36, v38
    v_permlane32_swap_b32 v37, v39
    v_and_b32 v8, 31, v1
    v_lshrrev_b32 v9, 5, v1
    v_lshlrev_b32 v10, 11, v8
    v_lshl_add_u32 v10, v9, 4, v10      ; t*2048 + h*16
    s_lshl_b32 s36, s28, 2
    s_add_u32 s36, s36, s31
    s_lshl_b32 s36, s36, 16
    s_lshl_b32 s37, s29, 7
    s_add_u32 s36, s36, s37
    s_lshl_b32 s37, s32, 6
    s_add_u32 s36, s36, s37
    buffer_store_dwordx4 v[32:35], v10, s[24:27], s36 offen
    buffer_store_dwordx4 v[36:39], v10, s[24:27], s36 offen offset:32
    """)


def gen_mega(A, name="mega_kernel"):
    kernel_begin(A, name)
    A(f"""
    s_getpc_b64 s[62:63]
    MEGA_PC:
    s_cmp_ge_u32 s2, 256
    s_cbranch_scc1 MEGA_END
    s_load_dwordx16 s[64:79], s[0:1], 0
    s_load_dwordx8 s[80:87], s[0:1], 64       ; w2 b2 c wmod
    s_load_dwordx2 s[88:89], s[0:1], 96       ; out
    s_load_dwordx2 s[94:95], s[0:1], 104      ; dbg
    s_load_dwordx2 s[20:21], s[0:1], 112      ; ws
    s_memrealtime s[90:91]
    """)
    lane_setup(A)
    A("s_waitcnt lgkmcnt(0)")
    A("s_or_b32 s100, s90, 1")
    mprof(A, 0)
    srd(A, 96, 20, WS_FLAGS, FLAGS_SIZE)
    if OPT.get("code_pf", 1):
        A("""
        s_cmp_eq_u32 s30, 6
        s_cbranch_scc0 CPF_SKIP
        s_lshr_b32 s36, s2, 3
        s_lshl_b32 s36, s36, 4
        v_and_b32 v5, 15, v1
        v_add_u32 v5, s36, v5
        v_lshlrev_b32 v5, 7, v5
        s_mov_b32 s37, MEGA_CODE_END-MEGA_PC-8
        v_min_u32 v5, s37, v5
        v_and_b32 v5, -4, v5
        global_load_dword v254, v5, s[62:63]
        CPF_SKIP:
        """)
    phase01(A)
    mprof(A, 1)
    phase2(A)
    phase3(A)
    phase4(A)
    phase5(A)
    if genlib.PROF: A("s_waitcnt vmcnt(0)")
    mprof(A, 11)
    mprof_dump(A)
    A("MEGA_END:\ns_endpgm\nMEGA_CODE_END:")
    kernel_end(A, name, 256)
```

```python
from genlib import *
import genlib
from mega import *
from k_front import silu_regs, bf16_round_pairs

def token_wait(A, tag):
    A(f"""
    s_mov_b32 s57, 0
    TOKW{tag}:
    s_waitcnt vmcnt(0)
    v_readfirstlane_b32 s100, v250
    s_add_u32 s57, s57, 1
    s_cmp_gt_u32 s57, 400000
    s_cbranch_scc1 TOKD{tag}
    s_cmp_eq_u32 s100, 0
    s_cbranch_scc0 TOKD{tag}
    s_sleep 1
    buffer_load_dword v250, v251, s[8:11], 0 offen sc0 sc1
    s_branch TOKW{tag}
    TOKD{tag}:
    """)

def modjob_fma(A, wbase, sbase):
    for i in range(4):
        for d in range(4):
            w = wbase + 4*i + d
            A(f"""
            v_lshlrev_b32 v5, 16, v{w}
            v_and_b32 v6, 0xffff0000, v{w}
            v_fmac_f32 v{48+2*d}, v5, v{sbase+i}
            v_fmac_f32 v{49+2*d}, v6, v{sbase+i}
            """)

def modjob_reduce_store(A, SCR, tag, store_soff_lines, flag_idx, srd_s=24, fbase=None):
    A(f"""
    v_lshlrev_b32 v5, 5, v0
    v_add_u32 v5, {SCR}, v5
    ds_write_b128 v5, v[48:51]
    ds_write_b128 v5, v[52:55] offset:16
    s_waitcnt lgkmcnt(0)
    s_barrier
    v_and_b32 v6, 63, v0
    v_lshrrev_b32 v7, 6, v0
    v_lshlrev_b32 v5, 11, v7           ; part*8*256
    v_lshl_add_u32 v5, v6, 2, v5
    v_add_u32 v5, {SCR}, v5
    """)
    for r in range(8):
        A(f"ds_read_b32 v{56+r}, v5 offset:{r*256}")
    A("s_waitcnt lgkmcnt(0)")
    for st in (4, 2, 1):
        for i in range(st):
            A(f"v_add_f32 v{56+i}, v{56+i}, v{56+i+st}")
    A(f"""
    v_lshlrev_b32 v5, 2, v0
    v_add_u32 v6, {SCR}, v5
    ds_write_b32 v6, v56 offset:16384
    s_waitcnt lgkmcnt(0)
    s_barrier
    s_cmp_eq_u32 s30, 0
    s_cbranch_scc0 MJ_SKIP{tag}
    """)
    for r in range(8):
        A(f"ds_read_b32 v{56+r}, v6 offset:{16384 + r*256}")
    A("s_waitcnt lgkmcnt(0)")
    for st in (4, 2, 1):
        for i in range(st):
            A(f"v_add_f32 v{56+i}, v{56+i}, v{56+i+st}")
    A(store_soff_lines)
    A(f"buffer_store_dword v56, v5, s[{srd_s}:{srd_s+3}], s33 offen {SC}\ns_waitcnt vmcnt(0)")
    if fbase is None: signal(A, F_M0, flag_idx, wave=0)
    else: cnt_signal(A, fbase, wave=0)
    A(f"MJ_SKIP{tag}:")

def phase01(A):
    XR, WR, GR, RED = 0, 65536, 131072, 139264
    A(f"""
    s_mov_b32 s8, s{PTR['dbg']}
    s_mov_b32 s9, s{PTR['dbg']+1}
    s_mov_b32 s10, 256
    s_mov_b32 s11, 0x00020000
    v_mov_b32 v251, 0
    s_cmp_eq_u32 s2, 0
    s_cbranch_scc0 P0_NOTOK
    s_cmp_eq_u32 s30, 0
    s_cbranch_scc0 P0_NOTOK
    v_mov_b32 v250, s100
    v_cmp_eq_u32 vcc, 0, v1
    s_and_saveexec_b64 s[54:55], vcc
    buffer_store_dword v250, v251, s[8:11], 0 offen sc0 sc1
    s_mov_b64 exec, s[54:55]
    P0_NOTOK:
    s_cmp_ge_u32 s2, 128
    s_cbranch_scc1 P0_MOD
    """)
    A(f"""
    v_lshlrev_b32 v7, 4, v1        ; l*16
    v_and_b32 v3, 31, v0           ; t
    v_bfe_u32 v4, v0, 5, 1         ; h
    s_lshr_b32 s36, s2, 3          ; q
    s_and_b32 s32, s36, 1          ; typ
    s_lshr_b32 s36, s36, 1
    s_lshl_b32 s36, s36, 3
    s_and_b32 s31, s2, 7
    s_add_u32 s31, s31, s36
    """)
    srd(A, 40, PTR['x'], 0, 2048 * 2048)
    A(f"""
    v_lshrrev_b32 v5, 4, v1            ; j>>4
    v_and_b32 v6, 15, v1               ; p
    v_xor_b32 v6, v6, v5
    v_lshlrev_b32 v6, 4, v6
    v_lshl_add_u32 v5, v5, 11, v6      ; v_a
    s_lshl_b32 s33, s31, 16
    s_lshl_b32 s34, s30, 8
    s_add_u32 s33, s33, s34
    s_lshl_b32 s35, s30, 13            ; w*8192
    """)
    for i in range(8):
        A(f"""
        v_xor_b32 v6, {((4*i) & 15) << 4}, v5
        s_add_u32 m0, s35, {XR + i*1024}
        s_add_u32 s36, s33, {i*8192}
        buffer_load_dwordx4 v6, s[40:43], s36 offen lds
        """)
    A("buffer_load_dword v250, v251, s[8:11], 0 offen sc0 sc1")
    A(f"""
    s_cmp_eq_u32 s32, 0
    s_cselect_b32 s12, s{PTR['wk']}, s{PTR['wv']}
    s_cselect_b32 s13, s{PTR['wk']+1}, s{PTR['wv']+1}
    s_mov_b32 s14, 65536
    s_mov_b32 s15, 0x00020000
    """)
    srd(A, 16, 20, WS_MODP, 4 * 4096 * 4)
    srd(A, 24, 20, WS_H, SZ_ACT)
    A("s_cmp_eq_u32 s32, 0\ns_cselect_b32 s26, s26, 0")
    srd(A, 44, 20, WS_KV, 0x40000)
    XV = 64
    A(f"""
    v_and_b32 v9, 15, v3
    v_xor_b32 v9, v9, v4
    v_lshlrev_b32 v9, 4, v9
    v_lshl_add_u32 v9, v3, 8, v9       ; t*256 + ((h ^ (t&15))*16)
    v_add_u32 v9, s35, v9
    v_mov_b32 v12, 0
    v_mov_b32 v13, 0
    v_mov_b32 v14, 0x3f803f80
    v_mov_b32 v11, 0
    v_mov_b32 v15, 0
    """)
    token_wait(A, "LN")
    mprof2(A, 12, 'front')
    for i in range(8):
        A(f"s_add_u32 m0, s35, {WR + i*1024}\ns_add_u32 s38, s35, {i*1024}\nbuffer_load_dwordx4 v7, s[12:15], s38 offen lds")
    for s_ in range(8):
        A(f"v_xor_b32 v10, {32*s_}, v9")
        A(f"ds_read_b128 v[{XV+4*s_}:{XV+4*s_+3}], v10")
    for s_ in range(8):
        A(f"s_waitcnt lgkmcnt({7-s_})")
        for d in range(4):
            r = XV + 4*s_ + d
            a1, a2 = (12, 13) if d % 2 == 0 else (11, 15)
            A(f"v_dot2_f32_bf16 v{a1}, v{r}, v14, v{a1}")
            A(f"v_dot2_f32_bf16 v{a2}, v{r}, v{r}, v{a2}")
    A(f"""
    s_nop 2
    v_add_f32 v12, v12, v11
    v_add_f32 v13, v13, v15
    v_mov_b32 v10, v12
    v_mov_b32 v11, v13
    s_nop 1
    v_permlane32_swap_b32 v12, v10
    v_permlane32_swap_b32 v13, v11
    s_nop 1
    v_add_f32 v12, v12, v10
    v_add_f32 v13, v13, v11
    v_lshlrev_b32 v10, 3, v3           ; t*8
    s_lshl_b32 s36, s30, 8
    v_add_u32 v11, s36, v10
    v_add_u32 v11, {RED}, v11
    ds_write_b64 v11, v[12:13]
    s_waitcnt lgkmcnt(0)
    s_barrier
    v_add_u32 v10, {RED}, v10
    """)
    for w_ in range(8):
        A(f"ds_read_b64 v[{16+2*w_}:{17+2*w_}], v10 offset:{w_*256}")
    A("s_waitcnt lgkmcnt(0)")
    for st in (4, 2, 1):
        for i in range(st):
            A(f"v_add_f32 v{16+2*i}, v{16+2*i}, v{16+2*(i+st)}\nv_add_f32 v{17+2*i}, v{17+2*i}, v{17+2*(i+st)}")
    A(f"""
    v_mul_f32 v16, {f32(1/1024)}, v16      ; mean
    v_mul_f32 v17, {f32(1/1024)}, v17      ; E[x^2]
    v_fma_f32 v17, -v16, v16, v17          ; var
    v_add_f32 v17, {f32(1e-5)}, v17
    v_rsq_f32 v12, v17                     ; a = rstd
    s_nop 0
    v_mul_f32 v13, v16, v12
    v_sub_f32 v13, 0, v13
    """)
    XN = 128
    for s_ in range(8):
        for d in range(4):
            r = XV + 4*s_ + d
            o = XN + 8*s_ + 2*d
            A(f"""
            v_lshlrev_b32 v{o}, 16, v{r}
            v_and_b32 v{o+1}, 0xffff0000, v{r}
            v_fma_f32 v{o}, v{o}, v12, v13
            v_fma_f32 v{o+1}, v{o+1}, v12, v13
            """)
    mprof2(A, 13, 'front')
    poll_by(A, 7, [("s56", 64), ("s55", 64)], [248, 249], pre=f"s_mov_b32 s56, {F_M0}\ns_mov_b32 s55, {F_M0+64*FS}")
    A("s_barrier")
    mprof2(A, 14, 'front')
    A(f"""
    v_lshlrev_b32 v8, 4, v3
    v_lshl_add_u32 v8, v4, 12, v8      ; t*16 + h*4096
    s_lshl_b32 s37, s30, 9             ; w*512
    """)
    for p in range(4):
        A(f"s_add_u32 s36, s37, {p*16384}\nbuffer_load_dwordx4 v[{16+4*p}:{19+4*p}], v8, s[16:19], s36 offen {SC}")
    A(f"""
    v_xor_b32 v21+0, 1, v4
    """.replace("v21+0", "v32"))
    A(f"""
    v_lshlrev_b32 v32, 12, v32         ; h? 0 : 4096
    v_lshl_add_u32 v32, v3, 4, v32
    s_lshl_b32 s36, s30, 9
    v_add_u32 v32, s36, v32
    v_add_u32 v32, {GR}, v32
    v_lshlrev_b32 v10, 5, v4
    v_add_u32 v10, s36, v10
    v_add_u32 v10, {GR}, v10               ; GR + w*512 + h*32
    v_cvt_f32_u32 v33, v4
    s_lshl_b32 s36, s31, 16
    s_lshl_b32 s37, s30, 13
    s_add_u32 s36, s36, s37            ; (tt*64 + 8w)*1024
    s_add_u32 s37, s36, 4096
    s_waitcnt vmcnt(0)
    """)
    for e in range(4):
        A(f"v_add_f32 v{16+e}, v{16+e}, v{20+e}\nv_add_f32 v{24+e}, v{24+e}, v{28+e}")
    for e in range(4):
        A(f"v_add_f32 v{16+e}, v{16+e}, v{24+e}")
    bf16_round_pairs(A, [16, 17, 18, 19], 20)
    for e in range(4):
        A(f"v_add_f32 v{16+e}, v33, v{16+e}")
    bf16_round_pairs(A, [16, 17, 18, 19], 20)
    A("ds_write_b128 v32, v[16:19]")
    def gread(s_):
        b = 16 + 16*(s_ & 1)
        A(f"ds_read_b128 v[{b}:{b+3}], v10 offset:{s_*64}")
        A(f"ds_read_b128 v[{b+4}:{b+7}], v10 offset:{s_*64+16}")
        A(f"ds_read_b128 v[{b+8}:{b+11}], v10 offset:{4096+s_*64}")
        A(f"ds_read_b128 v[{b+12}:{b+15}], v10 offset:{4096+s_*64+16}")
    A("s_waitcnt lgkmcnt(0)")
    gread(0)
    for s_ in range(8):
        if s_ < 7:
            gread(s_+1)
            A("s_waitcnt lgkmcnt(4)")
        else:
            A("s_waitcnt lgkmcnt(0)")
        b = 16 + 16*(s_ & 1)
        for d in range(4):
            o = XN + 8*s_ + 2*d
            A(f"""
            v_fma_f32 v{o}, v{o}, v{b+2*d}, v{b+8+2*d}
            v_fma_f32 v{o+1}, v{o+1}, v{b+2*d+1}, v{b+8+2*d+1}
            """)
        for d in range(4):
            o = XN + 8*s_ + 2*d
            A(f"v_cvt_pk_bf16_f32 v{XV+4*s_+d}, v{o}, v{o+1}")
        A(f"buffer_store_dwordx4 v[{XV+4*s_}:{XV+4*s_+3}], v7, s[24:27], s{36 if s_ < 4 else 37} offen offset:{(s_ & 3)*1024} {SC}")
    WV = 96
    A(f"""
    v_bfe_u32 v10, v1, 2, 2            ; r
    v_lshlrev_b32 v10, 6, v10
    v_bfe_u32 v11, v1, 4, 1            ; G
    v_lshl_add_u32 v10, v11, 5, v10
    v_and_b32 v11, 3, v1
    v_lshl_add_u32 v10, v11, 3, v10
    v_lshl_add_u32 v10, v4, 9, v10     ; + h*512
    v_add_u32 v10, s35, v10
    v_add_u32 v10, {WR}, v10
    """)
    for s_ in range(8):
        for e in range(2):
            A(f"ds_read_b64_tr_b16 v[{WV+4*s_+2*e}:{WV+4*s_+2*e+1}], v10 offset:{s_*1024+e*256}")
    AC = 16
    A("s_waitcnt lgkmcnt(0)\ns_cmp_eq_u32 s32, 0\ns_cbranch_scc0 K1_V")
    for s_ in range(8):
        c = "0" if s_ == 0 else f"v[{AC}:{AC+15}]"
        A(f"v_mfma_f32_32x32x16_bf16 v[{AC}:{AC+15}], v[{WV+4*s_}:{WV+4*s_+3}], v[{XV+4*s_}:{XV+4*s_+3}], {c}")
    A("s_branch K1_RED\nK1_V:")
    for s_ in range(8):
        c = "0" if s_ == 0 else f"v[{AC}:{AC+15}]"
        A(f"v_mfma_f32_32x32x16_bf16 v[{AC}:{AC+15}], v[{XV+4*s_}:{XV+4*s_+3}], v[{WV+4*s_}:{WV+4*s_+3}], {c}")
    A(f"""
    K1_RED:
    s_nop 15
    v_add_u32 v10, s35, v7             ; w*8192 + l*16
    """)
    for jq in range(4):
        A(f"ds_write_b128 v10, v[{AC+4*jq}:{AC+4*jq+3}] offset:{jq*1024}")
    A(f"""
    s_waitcnt vmcnt(0) lgkmcnt(0)
    s_barrier
    """)
    mprof2(A, 15, 'front')
    u = uid()
    A(f"s_cmp_eq_u32 s32, 0\ns_cbranch_scc0 P1NH{u}")
    signal(A, F_H, "s31", wave=7)
    A(f"P1NH{u}:")
    A(f"""
    s_cmp_ge_u32 s30, 2
    s_cbranch_scc1 P1_KVSKIP
    s_lshl_b32 s36, s30, 11            ; e*2048  (jq = 2e, 2e+1)
    v_add_u32 v10, s36, v7
    """)
    for w_ in range(8):
        A(f"ds_read_b128 v[{32+8*w_}:{35+8*w_}], v10 offset:{w_*8192}")
        A(f"ds_read_b128 v[{36+8*w_}:{39+8*w_}], v10 offset:{w_*8192+1024}")
    A("s_waitcnt lgkmcnt(0)")
    for st in (4, 2, 1):
        for i in range(st):
            for e in range(8):
                A(f"v_add_f32 v{32+8*i+e}, v{32+8*i+e}, v{32+8*(i+st)+e}")
    for m in range(4):
        A(f"v_cvt_pk_bf16_f32 v{32+m}, v{32+2*m}, v{33+2*m}")
    A(f"""
    s_lshl_b32 s36, s31, 12            ; tt*4096
    s_lshl_b32 s37, s32, 11
    s_add_u32 s36, s36, s37
    s_lshl_b32 s37, s30, 10
    s_add_u32 s36, s36, s37
    buffer_store_dwordx4 v[32:35], v7, s[44:47], s36 offen {SC}
    P1_KVSKIP:
    s_waitcnt vmcnt(0)
    s_barrier
    """)
    cnt_signal(A, C_KV, wave=0)
    A("s_branch P1_DONE")
    SCR = 65536
    A("P0_MOD:")
    srd(A, 12, PTR['wmod'], 0, 1024 * 12288)
    srd(A, 16, PTR['c'], 0, 2048)
    srd(A, 24, 20, WS_MODP, 4 * 4096 * 4)
    A(f"""
    s_sub_u32 s31, s2, 128         ; b'
    s_lshr_b32 s22, s31, 2         ; cb (0..31)
    s_and_b32 s23, s31, 3          ; ks
    v_lshrrev_b32 v8, 3, v0        ; rg (0..63)
    v_and_b32 v9, 7, v0            ; cc
    v_mul_u32_u24 v3, 12288, v8
    v_lshl_add_u32 v3, v9, 4, v3   ; w voffset
    v_lshlrev_b32 v4, 1, v8        ; c voffset
    s_mul_i32 s33, s23, {256*12288}
    s_lshl_b32 s34, s22, 7
    s_add_u32 s33, s33, s34
    s_add_u32 s35, s33, {3072*2}
    s_lshl_b32 s34, s23, 9         ; c soffset
    """)
    for i in range(4):
        A(f"buffer_load_ushort v{12+i}, v4, s[16:19], s34 offen offset:{i*128}")
    for i in range(4):
        A(f"buffer_load_dwordx4 v[{16+4*i}:{19+4*i}], v3, s[12:15], s33 offen nt")
        if i < 3: A(f"s_add_u32 s33, s33, {64*12288}")
    A("buffer_load_dword v250, v251, s[8:11], 0 offen sc0 sc1")
    srd(A, 44, 20, WS_ST2, 0x10000)
    A(f"""
    v_mov_b32 v100, 0
    v_mov_b32 v101, 0
    v_mov_b32 v102, 0
    v_mov_b32 v103, 0
    v_and_b32 v104, 31, v1
    v_lshlrev_b32 v104, 4, v104
    s_lshl_b32 s36, s31, 9
    s_cmp_eq_u32 s30, 0
    s_cselect_b32 s36, s36, 0x7f000000
    buffer_store_dwordx4 v[100:103], v104, s[44:47], s36 offen {SC}
    """)
    for j in range(8):
        A(f"v_mov_b32 v{48+j}, 0")
    A("s_waitcnt vmcnt(6)")
    silu_regs(A, [12, 13, 14, 15], 56)
    A("s_waitcnt vmcnt(2)")
    modjob_fma(A, 16, 12)
    token_wait(A, "M")
    def jobB_loads():
        A("s_mov_b32 s36, s35")
        for i in range(4):
            A(f"buffer_load_dwordx4 v[{32+4*i}:{35+4*i}], v3, s[12:15], s36 offen nt")
            if i < 3: A(f"s_add_u32 s36, s36, {64*12288}")
    A("s_cmp_eq_u32 s30, 0\ns_cbranch_scc1 MJB_LATE")
    jobB_loads()
    A("MJB_LATE:")
    modjob_reduce_store(A, SCR, "A", "s_lshl_b32 s33, s23, 14\ns_lshl_b32 s34, s22, 8\ns_add_u32 s33, s33, s34", "s31")
    mprof2(A, 12, 'front')
    A("s_cmp_eq_u32 s30, 0\ns_cbranch_scc0 MJB_EARLY")
    jobB_loads()
    A("MJB_EARLY:")
    A(f"""
    s_mul_i32 s36, s23, {256*12288}
    s_lshl_b32 s37, s22, 7
    s_add_u32 s36, s36, s37
    s_mov_b32 s37, {2048*2}
    s_cmp_ge_u32 s22, 16
    s_cselect_b32 s37, {4096*2}, s37
    s_add_u32 s36, s36, s37
    """)
    for i in range(4):
        A(f"buffer_load_dwordx4 v[{64+4*i}:{67+4*i}], v3, s[12:15], s36 offen nt")
        if i < 3: A(f"s_add_u32 s36, s36, {64*12288}")
    for j in range(8):
        A(f"v_mov_b32 v{48+j}, 0")
    A("s_waitcnt vmcnt(4)")
    modjob_fma(A, 32, 12)
    A("s_barrier")
    A("s_add_u32 s38, s31, 128")
    modjob_reduce_store(A, SCR, "B", f"s_lshl_b32 s33, s23, 14\ns_lshl_b32 s34, s22, 8\ns_add_u32 s33, s33, s34\ns_add_u32 s33, s33, {2048*4}", "s38", fbase=C_M0B)
    mprof2(A, 13, 'front')
    srd(A, 56, PTR['wq'], 0, 1024*2048)
    srd(A, 44, 20, WS_MODR, 4 * 2048 * 4)
    A(f"""
    s_lshr_b32 s36, s31, 3         ; idx16
    s_lshl_b32 s36, s36, 6
    s_lshl_b32 s37, s30, 3
    s_add_u32 s36, s36, s37
    s_lshl_b32 s36, s36, 11        ; row*2048
    s_and_b32 s37, s2, 7
    s_lshr_b32 s37, s37, 2
    s_lshl_b32 s37, s37, 10
    s_add_u32 s36, s36, s37
    v_and_b32 v5, 63, v0
    v_lshrrev_b32 v6, 3, v5
    v_lshlrev_b32 v6, 11, v6
    v_and_b32 v5, 7, v5
    v_lshl_add_u32 v5, v5, 7, v6
    buffer_load_dword v100, v5, s[56:59], s36 offen
    """)
    for j in range(8):
        A(f"v_mov_b32 v{48+j}, 0")
    A("s_waitcnt vmcnt(1)")
    modjob_fma(A, 64, 12)
    A("s_barrier")
    modjob_reduce_store(A, SCR, "C", f"s_lshl_b32 s33, s23, 13\ns_lshl_b32 s34, s22, 8\ns_add_u32 s33, s33, s34", "s31", srd_s=44, fbase=C_MR)
    A("s_waitcnt vmcnt(0)\ns_barrier")
    A("P1_DONE:")
```

```python
class Asm:
    def __init__(self):
        self.L = []
    def __call__(self, txt):
        for line in txt.strip("\n").split("\n"):
            line = line.strip()
            if not line:
                continue
            if line.endswith(":") and not line.startswith(";"):
                self.L.append(line)
            else:
                self.L.append("    " + line)
    def text(self):
        return "\n".join(self.L) + "\n"

def vr(a, n=1):
    return f"v{a}" if n == 1 else f"v[{a}:{a+n-1}]"
def sr(a, n=1):
    return f"s{a}" if n == 1 else f"s[{a}:{a+n-1}]"

def kernel_begin(A, name):
    A.L.append(".text")
    A.L.append(f".globl {name}")
    A.L.append(".p2align 8")
    A.L.append(f".type {name},@function")
    A.L.append(f"{name}:")

def kernel_end(A, name, vgprs, sgprs=102):
    acc = (vgprs + 3) // 4 * 4
    A.L.append(".section .rodata,\"a\"")
    A.L.append(".p2align 6")
    A.L.append(f".amdhsa_kernel {name}")
    A.L.append(f"  .amdhsa_next_free_vgpr {vgprs}")
    A.L.append(f"  .amdhsa_next_free_sgpr {sgprs}")
    A.L.append(f"  .amdhsa_accum_offset {acc}")
    A.L.append("  .amdhsa_group_segment_fixed_size 0")
    A.L.append("  .amdhsa_kernarg_size 120")
    A.L.append("  .amdhsa_user_sgpr_count 2")
    A.L.append("  .amdhsa_user_sgpr_kernarg_segment_ptr 1")
    A.L.append("  .amdhsa_system_sgpr_workgroup_id_x 1")
    A.L.append(".end_amdhsa_kernel")

def srd(A, s, base_pair, off, nbytes):
    if off == 0:
        A(f"s_mov_b32 s{s}, s{base_pair}\ns_mov_b32 s{s+1}, s{base_pair+1}")
    else:
        A(f"s_add_u32 s{s}, s{base_pair}, {off:#x}\ns_addc_u32 s{s+1}, s{base_pair+1}, 0")
    A(f"s_mov_b32 s{s+2}, {nbytes:#x}\ns_mov_b32 s{s+3}, 0x00020000")

KA = dict(x=0, wq=8, wk=16, wv=24, wo=32, bx=40, w1=48, b1=56, w2=64, b2=72, c=80, wmod=88, out=96, dbg=104, ws=112)
WS_MODP = 0x0
WS_MODR = 0x10000
WS_MODF = 0x18000
WS_UVW  = 0x40000 - 0x18000 + 0x0
UVW_P = 3*3584*4
WS_ST   = 0x2200000
WS_GRAM = 0x28000 + 2*43008
WS_ST2 = 0x2300000
WS_KV   = 0x40000
WS_H    = 0x100000
WS_O    = 0x500000
WS_X1   = 0x900000
WS_Y    = 0xD00000
WS_HH   = 0x1100000
SZ_ACT  = 0x400000
SZ_HH   = 64 * 224 * 1024
LOG2E = 1.4426950408889634
import struct
def f32(x):
    return "0x%08x" % struct.unpack("<I", struct.pack("<f", x))[0]

PROF = False
WS_PROF = 0x2000000
def prof_init(A, kidx):
    if not PROF: return
    A(f"""
    s_lshl_b32 s66, s2, 7
    s_add_u32 s66, s66, {WS_PROF + kidx*512*128:#x}
    s_add_u32 s64, s20, s66
    s_addc_u32 s65, s21, 0
    """)
def prof_stamp(A, slot, early=False):
    if not PROF: return
    A(f"s_memrealtime s[{68}:{69}]\ns_memtime s[{72+2*slot}:{73+2*slot}]\ns_waitcnt lgkmcnt(0)\ns_mov_b32 s{73+2*slot}, s68")
def prof_dump(A, nslots):
    if not PROF: return
    A(f"""
    v_cmp_eq_u32 vcc, 0, v0
    s_and_saveexec_b64 s[68:69], vcc
    s_cbranch_execz PROF_SKIP_{len(A.L)}
    """)
    lab = A.L[-1].split()[-1]
    for i in range(nslots):
        A(f"v_mov_b32 v4, s{72+2*i}\nv_mov_b32 v5, s{73+2*i}\nv_mov_b32 v6, {8*i}\nglobal_store_dwordx2 v6, v[4:5], s[64:65]")
    A(f"{lab}:\ns_mov_b64 exec, s[68:69]")

def mprof(A, slot):
    if not PROF: return
    A(f"s_memtime s[90:91]\ns_memrealtime s[92:93]\ns_waitcnt lgkmcnt(0)\nv_writelane_b32 v252, s90, {slot}\nv_writelane_b32 v253, s92, {slot}")
def mprof_dump(A):
    if not PROF: return
    A(f"""
    s_cmp_eq_u32 s30, 0
    s_cbranch_scc0 MPD_SKIP
    s_lshl_b32 s90, s2, 9
    s_add_u32 s90, s90, {WS_PROF + 512*128:#x}
    s_add_u32 s90, s20, s90
    s_addc_u32 s91, s21, 0
    v_and_b32 v4, 63, v0
    v_lshlrev_b32 v4, 3, v4
    v_cmp_gt_u32 vcc, 64, v0
    s_and_saveexec_b64 s[92:93], vcc
    v_mov_b32 v6, v252
    v_mov_b32 v7, v253
    global_store_dwordx2 v4, v[6:7], s[90:91]
    s_mov_b64 exec, s[92:93]
    MPD_SKIP:
    """)
PTR = dict(x=64, wq=66, wk=68, wv=70, wo=72, w1=76, b1=78, w2=80, b2=82, c=84, wmod=86, out=88, dbg=94)

PROFSET = "front"
def mprof2(A, slot, which):
    if PROF and PROFSET == which: mprof(A, slot)

def mprof_dyn(A, base, sgpr_expr_lines):
    pass
def mstage(A, lane_sgpr):
    if not PROF: return
    A(f"s_memtime s[90:91]\ns_waitcnt lgkmcnt(0)\nv_writelane_b32 v252, s90, {lane_sgpr}")

DBGPROF = False
def mprof_dbg(A):
    if not (PROF and DBGPROF): return
    A(f"""
    s_cmp_eq_u32 s30, 0
    s_cbranch_scc0 MPG_SKIP
    s_mov_b32 s4, s94
    s_mov_b32 s5, s95
    s_mov_b32 s6, 256
    s_mov_b32 s7, 0x00020000
    v_and_b32 v4, 63, v0
    v_subrev_u32 v6, s100, v253
    v_add_u32 v5, 1, v4
    v_cmp_lt_u32 vcc, 6, v4
    s_nop 1
    v_addc_co_u32 v5, vcc, 0, v5, vcc
    v_lshlrev_b32 v5, 2, v5
    v_cmp_gt_u32 vcc, 12, v4
    s_and_saveexec_b64 s[92:93], vcc
    buffer_atomic_umax v6, v5, s[4:7], 0 offen sc1
    s_mov_b64 exec, s[92:93]
    MPG_SKIP:
    """)
```

```python
from genlib import *
import genlib
from mega import *
from mega_p1 import phase01
from k_gemm import OPT

X1R = 240


UV_W, UV_VEC, UV_RED = 65536, 98304, 102400

def uvw_issue(A):
    srd(A, 48, PTR['w1'], 0, 1024*7168)
    srd(A, 52, 20, 0, 0x18000)
    A(f"""
    s_lshr_b32 s58, s2, 1              ; ft
    s_and_b32 s59, s2, 1               ; kh
    s_lshl_b32 s36, s59, 9
    s_lshl_b32 s37, s30, 6
    s_add_u32 s36, s36, s37            ; k0 = 512kh + 64w
    s_mul_i32 s37, s36, 7168
    s_lshl_b32 s38, s58, 6
    s_add_u32 s37, s37, s38            ; W1 soffset
    s_cmp_lt_u32 s2, 224
    s_cselect_b32 s37, s37, 0x7f000000
    v_lshrrev_b32 v8, 2, v1
    v_mul_u32_u24 v8, 7168, v8
    v_and_b32 v9, 3, v1
    v_lshl_add_u32 v8, v9, 4, v8
    s_lshl_b32 s38, s30, 12
    s_add_u32 s38, s38, {UV_W}
    """)
    for i in range(4):
        A(f"s_add_u32 m0, s38, {i*1024}\ns_nop 0\nbuffer_load_dwordx4 v8, s[48:51], s37 offen lds\ns_add_u32 s37, s37, {16*7168}")
    A(f"""
    v_and_b32 v9, 15, v1
    v_lshlrev_b32 v9, 4, v9
    v_bfe_u32 v10, v1, 4, 1
    v_lshl_add_u32 v9, v10, 12, v9
    s_lshl_b32 s36, s36, 2
    s_add_u32 s36, s36, {2048*4}
    """)
    for p in range(4):
        A(f"s_add_u32 s37, s36, {p*16384}\nbuffer_load_dwordx4 v[{176+4*p}:{179+4*p}], v9, s[52:55], s37 offen {SC}")

def uvw_compute(A):
    srd(A, 40, 20, WS_UVW, 2*UVW_P + 128)
    A(f"""
    s_lshr_b32 s60, s2, 1              ; ft
    s_and_b32 s61, s2, 1               ; kh
    v_add_f32 v176, v176, v180
    v_add_f32 v177, v177, v181
    v_add_f32 v178, v178, v182
    v_add_f32 v179, v179, v183
    v_add_f32 v184, v184, v188
    v_add_f32 v185, v185, v189
    v_add_f32 v186, v186, v190
    v_add_f32 v187, v187, v191
    v_add_f32 v176, v176, v184
    v_add_f32 v177, v177, v185
    v_add_f32 v178, v178, v186
    v_add_f32 v179, v179, v187
    """)
    bf16_round_pairs(A, [176, 177, 178, 179], 180)
    A(f"""
    v_bfe_u32 v10, v1, 4, 1
    v_cvt_f32_u32 v180, v10
    v_add_f32 v176, v180, v176
    v_add_f32 v177, v180, v177
    v_add_f32 v178, v180, v178
    v_add_f32 v179, v180, v179
    v_cvt_pk_bf16_f32 v176, v176, v177
    v_cvt_pk_bf16_f32 v177, v178, v179
    v_xor_b32 v10, 1, v10
    v_lshlrev_b32 v10, 7, v10
    v_and_b32 v9, 15, v1
    v_lshl_add_u32 v10, v9, 3, v10
    s_lshl_b32 s36, s30, 8
    s_add_u32 s36, s36, {UV_VEC}
    v_add_u32 v10, s36, v10
    ds_write_b64 v10, v[176:177]
    v_and_b32 v9, 31, v1               ; t
    v_lshrrev_b32 v11, 5, v1           ; h
    v_min_u32 v10, 1, v9
    v_lshlrev_b32 v10, 7, v10
    v_lshl_add_u32 v10, v11, 4, v10
    v_add_u32 v10, s36, v10
    v_bfe_u32 v8, v1, 2, 2
    v_lshlrev_b32 v8, 6, v8
    v_bfe_u32 v12, v1, 4, 1
    v_lshl_add_u32 v8, v12, 5, v8
    v_and_b32 v12, 3, v1
    v_lshl_add_u32 v8, v12, 3, v8
    v_lshl_add_u32 v8, v11, 9, v8
    s_lshl_b32 s37, s30, 12
    s_add_u32 s37, s37, {UV_W}
    v_add_u32 v8, s37, v8
    v_cmp_eq_u32 vcc, 2, v9
    v_cmp_lt_u32 s[62:63], v9, 2
    v_mov_b32 v12, 0x3f803f80
    v_mov_b32 v13, 0
    s_waitcnt lgkmcnt(0)
    """)
    BV, AV = 176, 192
    for s_ in range(4):
        A(f"ds_read_b128 v[{BV+4*s_}:{BV+4*s_+3}], v10 offset:{s_*32}")
    for s_ in range(4):
        for e in range(2):
            A(f"ds_read_b64_tr_b16 v[{AV+4*s_+2*e}:{AV+4*s_+2*e+1}], v8 offset:{s_*1024 + e*256}")
    A("v_cndmask_b32 v12, v13, v12, vcc\ns_waitcnt lgkmcnt(0)")
    for i in range(16):
        A(f"v_cndmask_b32 v{BV+i}, v12, v{BV+i}, s[62:63]")
    A("s_nop 1")
    for s_ in range(4):
        cc = "0" if s_ == 0 else "v[208:223]"
        A(f"v_mfma_f32_32x32x16_bf16 v[208:223], v[{AV+4*s_}:{AV+4*s_+3}], v[{BV+4*s_}:{BV+4*s_+3}], {cc}")
        cc = "0" if s_ == 0 else "v[224:239]"
        A(f"v_mfma_f32_32x32x16_bf16 v[224:239], v[{BV+4*s_}:{BV+4*s_+3}], v[{BV+4*s_}:{BV+4*s_+3}], {cc}")
    A(f"""
    s_nop 15
    v_cmp_gt_u32 vcc, 4, v9
    s_and_saveexec_b64 s[54:55], vcc
    v_lshlrev_b32 v10, 7, v9           ; t*128
    v_lshl_add_u32 v10, v11, 4, v10    ; + h*16
    s_lshl_b32 s36, s30, 9
    s_add_u32 s36, s36, {UV_RED}
    v_add_u32 v10, s36, v10
    """)
    for jq in range(4):
        A(f"ds_write_b128 v10, v[{208+4*jq}:{211+4*jq}] offset:{jq*32}")
    A(f"""
    v_lshlrev_b32 v10, 4, v9
    s_lshl_b32 s36, s30, 6
    s_add_u32 s36, s36, {UV_RED + 4096}
    v_add_u32 v10, s36, v10
    v_cmp_eq_u32 vcc, 0, v11
    s_and_b64 exec, exec, vcc
    ds_write_b128 v10, v[224:227]
    s_mov_b64 exec, s[54:55]
    s_waitcnt lgkmcnt(0)
    s_barrier
    s_cmp_eq_u32 s30, 1
    s_cbranch_scc0 UV_NG
    s_cmp_eq_u32 s60, 0
    s_cbranch_scc0 UV_END
    v_lshlrev_b32 v10, 2, v1
    v_add_u32 v8, {UV_RED + 4096}, v10
    """)
    for w_ in range(8):
        A(f"ds_read_b32 v{176+w_}, v8 offset:{w_*64}")
    A("s_waitcnt lgkmcnt(0)")
    for st in (4, 2, 1):
        for i in range(st):
            A(f"v_add_f32 v{176+i}, v{176+i}, v{176+i+st}")
    A(f"""
    s_lshl_b32 s36, s61, 6
    s_add_u32 s36, s36, {2*UVW_P}
    v_cmp_gt_u32 vcc, 16, v1
    s_and_saveexec_b64 s[54:55], vcc
    buffer_store_dword v176, v10, s[40:43], s36 offen {SC}
    s_mov_b64 exec, s[54:55]
    s_branch UV_END
    UV_NG:
    s_cmp_lt_u32 s30, 4
    s_cbranch_scc0 UV_END
    s_cmp_lt_u32 s2, 224
    s_cbranch_scc0 UV_END
    s_cmp_eq_u32 s30, 0
    s_cselect_b32 s37, 0, s30
    s_sub_u32 s38, s37, 1
    s_cselect_b32 s37, 0, s38          ; t = (w==0) ? 0 : w-1
    v_and_b32 v9, 31, v1
    v_lshlrev_b32 v10, 2, v9
    s_lshl_b32 s36, s37, 7
    s_add_u32 s36, s36, {UV_RED}
    v_add_u32 v8, s36, v10
    """)
    for w_ in range(8):
        A(f"ds_read_b32 v{176+w_}, v8 offset:{w_*512}")
    A("s_waitcnt lgkmcnt(0)")
    for st in (4, 2, 1):
        for i in range(st):
            A(f"v_add_f32 v{176+i}, v{176+i}, v{176+i+st}")
    A(f"""
    s_mul_i32 s36, s61, {UVW_P}
    s_mul_i32 s38, s37, {3584*4}
    s_add_u32 s36, s36, s38
    s_lshl_b32 s38, s60, 7
    s_add_u32 s36, s36, s38
    v_cmp_gt_u32 vcc, 32, v1
    s_and_saveexec_b64 s[54:55], vcc
    buffer_store_dword v176, v10, s[40:43], s36 offen {SC}
    s_mov_b64 exec, s[54:55]
    UV_END:
    """)


def phase2(A):
    SB = [65536, 98304, 0]
    FLAG = 131072
    wg_map_64(A)
    lane_setup(A)
    srd(A, 8, PTR['wq'], 0, 1024*2048)
    srd(A, 12, 20, WS_H, SZ_ACT)
    srd(A, 16, 20, WS_KV, 0x40000)
    srd(A, 24, 20, WS_O, SZ_ACT)
    gemm64_setup(A, 1024, 2048, 64, perm=False)
    g64_w_prologue(A, 2048)
    A(f"""
    v_mov_b32 v5, {FLAG}
    v_mov_b32 v6, 0
    ds_write_b32 v5, v6
    s_lshl_b32 s42, s30, 12            ; w*4096
    """)
    A(f"""
    s_lshr_b32 s52, s2, 3              ; idx
    s_and_b32 s53, s2, 7               ; xcd
    v_lshrrev_b32 v5, 3, v1
    v_lshlrev_b32 v5, 11, v5
    v_and_b32 v6, 7, v1
    v_lshl_add_u32 v5, v6, 7, v5       ; (l>>3)*2048 + (l&7)*128
    s_lshl_b32 s36, s52, 5
    s_lshl_b32 s37, s30, 3
    s_add_u32 s36, s36, s37
    s_lshl_b32 s36, s36, 11
    s_lshr_b32 s37, s53, 2
    s_lshl_b32 s37, s37, 10
    s_add_u32 s36, s36, s37
    v_add_u32 v5, s36, v5
    v_lshrrev_b32 v6, 4, v1
    v_mul_u32_u24 v6, 7168, v6
    v_and_b32 v7, 15, v1
    v_min_u32 v7, 13, v7
    v_lshl_add_u32 v6, v7, 7, v6
    s_xor_b32 s37, s30, 4              ; u
    s_lshl_b32 s37, s37, 2
    s_lshl_b32 s36, s52, 5
    s_add_u32 s36, s36, s37
    s_mul_i32 s36, s36, 7168
    s_lshr_b32 s37, s53, 1
    s_mul_i32 s37, s37, 1792
    s_add_u32 s36, s36, s37
    v_add_u32 v6, s36, v6              ; W1 offset
    s_mul_i32 s36, s2, 224
    s_sub_u32 s37, s30, 4
    s_and_b32 s37, s37, 3
    s_lshl_b32 s37, s37, 6
    s_add_u32 s36, s36, s37
    v_add_u32 v7, s36, v1
    v_min_u32 v7, 57343, v7
    v_lshlrev_b32 v7, 7, v7            ; W2 offset
    s_cmp_lt_u32 s30, 4
    s_cselect_b32 s60, s{PTR['wo']}, s{PTR['w1']}
    s_cselect_b32 s61, s{PTR['wo']+1}, s{PTR['w1']+1}
    s_cselect_b32 s62, s{PTR['w1']}, s{PTR['w2']}
    s_cselect_b32 s63, s{PTR['w1']+1}, s{PTR['w2']+1}
    s_cselect_b64 vcc, -1, 0
    s_nop 1
    v_cndmask_b32 v168, v6, v5, vcc    ; A: w<4 ? Wo : W1
    v_cndmask_b32 v169, v7, v6, vcc    ; B: w<4 ? W1 : W2
    """)
    poll_by(A, 7, [("s56", 4)], [248], pre=f"s_lshl_b32 s56, s28, 9\ns_add_u32 s56, s56, {F_H}")
    dbg_srd(A, 4)
    A("s_barrier")
    mprof(A, 2)
    g64_b_prologue(A)
    def kv_issue(lds_const, stage):
        A(f"s_add_u32 m0, s42, {lds_const}\ns_add_u32 s36, s42, {stage*32768}")
        for q in range(4):
            A(f"buffer_load_dwordx4 v2, s[16:19], s36 offen offset:{q*1024} {SC} lds")
    def h0(A):
        cnt_load(A, C_KV, 172)
        cnt_load(A, C_M0B, 173)
    def pre2(A):
        cnt_check_or_poll(A, [(C_KV, 172, 128), (C_M0B, 173, 128)])
    def h2(A):
        kv_issue(SB[0], 0)
        kv_issue(SB[1], 1)
    g64_loop(A, "P2G", 8, 2048, False, {0: (2, h0), "pre2": pre2, "pre2_need": ("h0", 0), 2: (8, h2)})
    mprof(A, 3)
    g64_exchange(A, "P2G", 0)
    Q, C, S0, S1, P, O, Lr, SEL = 48, 56, 72, 88, 104, 112, 128, 132
    KF = [136, 144]; VF = [152, 160]
    SS = [S0, S1]
    qs = (32 ** -0.5) * LOG2E
    for i in range(16):
        A(f"v_mul_f32 v{16+i}, {f32(qs)}, v{16+i}")
    for m in range(8):
        A(f"v_cvt_pk_bf16_f32 v{Q+m}, v{16+2*m}, v{16+2*m+1}")
    A(f"""
    v_add_u32 v5, {SB[0]}, v2
    ds_read_b128 v[{KF[0]}:{KF[0]+3}], v5
    ds_read_b128 v[{KF[0]+4}:{KF[0]+7}], v5 offset:1024
    v_and_b32 v5, 3, v1
    v_bfe_u32 v6, v1, 2, 1
    v_bfe_u32 v7, v1, 4, 1
    v_xor_b32 v6, v6, v7
    v_or_b32 v5, v5, v6
    v_cmp_eq_u32 vcc, 0, v5
    v_mov_b32 v6, 0x3f803f80
    v_mov_b32 v5, 0
    s_mov_b32 s44, 0                   ; mode
    s_nop 0
    v_cndmask_b32 v{SEL}, v5, v6, vcc
    s_waitcnt lgkmcnt(0)
    v_mfma_f32_32x32x16_bf16 v[{S0}:{S0+15}], v[{KF[0]}:{KF[0]+3}], v[{Q}:{Q+3}], 0
    v_mfma_f32_32x32x16_bf16 v[{S0}:{S0+15}], v[{KF[0]+4}:{KF[0]+7}], v[{Q+4}:{Q+7}], v[{S0}:{S0+15}]
    v_mov_b32 v{SEL+1}, v{SEL}
    v_mov_b32 v{SEL+2}, v{SEL}
    v_mov_b32 v{SEL+3}, v{SEL}
    s_nop 12
    v_max3_f32 v7, v{S0}, v{S0+1}, v{S0+2}
    """)
    for i in range(3, 15, 2):
        A(f"v_max3_f32 v7, v7, v{S0+i}, v{S0+i+1}")
    A(f"""
    v_max_f32 v7, v7, v{S0+15}
    K2_SETC:
    v_mov_b32 v8, v7
    v_add_u32 v5, {SB[0]}, v2
    v_add_u32 v6, {SB[1]}, v2
    v_permlane32_swap_b32 v7, v8
    ds_read_b128 v[{KF[0]}:{KF[0]+3}], v5
    ds_read_b128 v[{KF[0]+4}:{KF[0]+7}], v5 offset:1024
    ds_read_b128 v[{KF[1]}:{KF[1]+3}], v5 offset:4096
    ds_read_b128 v[{KF[1]+4}:{KF[1]+7}], v5 offset:{4096+1024}
    ds_read_b128 v[{VF[0]}:{VF[0]+3}], v5 offset:2048
    ds_read_b128 v[{VF[0]+4}:{VF[0]+7}], v5 offset:3072
    v_max_f32 v7, v7, v8
    v_sub_f32 v7, 0, v7
    """)
    for i in range(16):
        A(f"v_mov_b32 v{C+i}, v7")
    for i in range(16):
        A(f"v_mov_b32 v{O+i}, 0")
    for i in range(4):
        A(f"v_mov_b32 v{Lr+i}, 0")
    for i in range(4):
        A(f"v_mov_b32 v{P+4+i}, 0\nv_mov_b32 v{VF[1]+4+i}, 0")
    A(f"""
    s_waitcnt lgkmcnt(0)
    v_mfma_f32_32x32x16_bf16 v[{S0}:{S0+15}], v[{KF[0]}:{KF[0]+3}], v[{Q}:{Q+3}], v[{C}:{C+15}]
    v_mfma_f32_32x32x16_bf16 v[{S0}:{S0+15}], v[{KF[0]+4}:{KF[0]+7}], v[{Q+4}:{Q+7}], v[{S0}:{S0+15}]
    s_mov_b32 s45, 0                   ; stage i
    s_add_u32 s46, s42, {2*32768}
    s_mov_b32 s47, {SB[2]}
    s_mov_b32 s56, {SB[0]}             ; cur
    s_mov_b32 s57, {SB[1]}             ; next
    s_nop 5
    """)
    mprof(A, 4)
    A(f"""
    K2_LOOP:
    s_cmp_lt_u32 s45, 3
    s_cbranch_scc1 K2_W1
    s_waitcnt vmcnt(0)
    K2_W1:
    s_waitcnt vmcnt(1)
    s_barrier
    s_add_u32 m0, s47, s42
    """)
    P0, P1 = P, P + 4
    def E(S, i): return f"v_exp_f32 v{S+i}, v{S+i}"
    def Cv(S, m): return f"v_cvt_pk_bf16_f32 v{P+m}, v{S+2*m}, v{S+2*m+1}"
    NT = 8
    for u in range(NT):
        S = SS[u % 2]; Sn = SS[(u+1) % 2]
        Kn = KF[(u+1) % 2]; Kl = KF[u % 2]
        V = VF[u % 2]; Vp = VF[(u+1) % 2]
        ka = ("v5", (u+2)*4096) if u+2 < NT else ("v6", (u+2-NT)*4096)
        va = ("v5", (u+1)*4096+2048) if u+1 < NT else ("v6", 2048)
        QKa = f"v_mfma_f32_32x32x16_bf16 v[{Sn}:{Sn+15}], v[{Kn}:{Kn+3}], v[{Q}:{Q+3}], v[{C}:{C+15}]"
        QKb = f"v_mfma_f32_32x32x16_bf16 v[{Sn}:{Sn+15}], v[{Kn+4}:{Kn+7}], v[{Q+4}:{Q+7}], v[{Sn}:{Sn+15}]"
        PVa = f"v_mfma_f32_32x32x16_bf16 v[{O}:{O+15}], v[{V}:{V+3}], v[{P0}:{P0+3}], v[{O}:{O+15}]"
        La = f"v_mfma_f32_16x16x32_bf16 v[{Lr}:{Lr+3}], v[{SEL}:{SEL+3}], v[{P0}:{P0+3}], v[{Lr}:{Lr+3}]"
        PVb_prev = f"v_mfma_f32_32x32x16_bf16 v[{O}:{O+15}], v[{Vp+4}:{Vp+7}], v[{P1}:{P1+3}], v[{O}:{O+15}]"
        Lb_prev = f"v_mfma_f32_16x16x32_bf16 v[{Lr}:{Lr+3}], v[{SEL}:{SEL+3}], v[{P1}:{P1+3}], v[{Lr}:{Lr+3}]"
        rdK = [f"ds_read_b128 v[{Kl}:{Kl+3}], {ka[0]} offset:{ka[1]}", f"ds_read_b128 v[{Kl+4}:{Kl+7}], {ka[0]} offset:{ka[1]+1024}"]
        rdV = [f"ds_read_b128 v[{Vp}:{Vp+3}], {va[0]} offset:{va[1]}", f"ds_read_b128 v[{Vp+4}:{Vp+7}], {va[0]} offset:{va[1]+1024}"]
        vm = []
        if u < 4:
            vm = [f"s_cmp_lt_u32 s45, 6", f"s_cbranch_scc0 K2_ND{u}",
                  f"buffer_load_dwordx4 v2, s[16:19], s46 offen offset:{u*1024} {SC} lds", f"K2_ND{u}:"]
        if u == 5:
            vm = ["s_cmp_eq_u32 s45, 0", "s_cbranch_scc0 K2_PFA", "global_load_dword v170, v168, s[60:61]", "K2_PFA:",
                  "s_cmp_eq_u32 s45, 1", "s_cbranch_scc0 K2_PFB", "global_load_dword v170, v169, s[62:63]", "K2_PFB:"]
        seq = ["s_waitcnt lgkmcnt(0)", QKa, E(S,0), E(S,1), E(S,2),
               PVb_prev, E(S,3), E(S,4), E(S,5),
               Lb_prev, rdK[0], rdK[1], E(S,6), E(S,7), Cv(S,0), Cv(S,1),
               QKb, rdV[0], rdV[1], Cv(S,2), Cv(S,3), E(S,8), E(S,9),
               PVa] + vm + [E(S,10), E(S,11), E(S,12),
               La, E(S,13), E(S,14), E(S,15), Cv(S,4), Cv(S,5), Cv(S,6), Cv(S,7)]
        for x in seq: A(x)
    A(f"""
    v_mov_b32 v5, v6
    v_add_u32 v6, s47, v2
    s_mov_b32 s36, s56
    s_mov_b32 s56, s57
    s_mov_b32 s57, s47
    s_mov_b32 s47, s36
    s_add_u32 s46, s46, 32768
    s_add_u32 s45, s45, 1
    s_cmp_lt_u32 s45, 8
    s_cbranch_scc1 K2_LOOP
    v_mfma_f32_32x32x16_bf16 v[{O}:{O+15}], v[{VF[1]+4}:{VF[1]+7}], v[{P+4}:{P+7}], v[{O}:{O+15}]
    v_mfma_f32_16x16x32_bf16 v[{Lr}:{Lr+3}], v[{SEL}:{SEL+3}], v[{P+4}:{P+7}], v[{Lr}:{Lr+3}]
    s_waitcnt vmcnt(0) lgkmcnt(0)
    s_nop 15
    """)
    mprof(A, 5)
    A(f"""
    v_mov_b32 v7, {f32(2.0**100)}
    v_cmp_nlt_f32 vcc, v{Lr}, v7
    s_mov_b64 s[48:49], vcc
    v_mov_b32 v7, 0x207
    """)
    for i in range(16):
        A(f"v_cmp_class_f32 vcc, v{O+i}, v7\ns_or_b64 s[48:49], s[48:49], vcc")
    A(f"""
    v_rcp_f32 v7, v{Lr}
    s_cmp_eq_u64 s[48:49], 0
    s_cbranch_scc1 K2_NOFLAG
    v_mov_b32 v9, {FLAG}
    v_mov_b32 v8, 1
    ds_write_b32 v9, v8
    K2_NOFLAG:
    """)
    for i in range(16):
        A(f"v_mul_f32 v{O+i}, v{O+i}, v7")
    for m in range(8):
        A(f"v_cvt_pk_bf16_f32 v{P+m}, v{O+2*m}, v{O+2*m+1}")
    A(f"""
    s_lshl_b32 s36, s28, 2
    s_add_u32 s36, s36, s31
    s_lshl_b32 s36, s36, 6
    s_lshl_b32 s37, s29, 2
    s_add_u32 s36, s36, s37
    s_lshl_b32 s37, s32, 1
    s_add_u32 s36, s36, s37
    s_lshl_b32 s36, s36, 10
    buffer_store_dwordx4 v[{P}:{P+3}], v2, s[24:27], s36 offen {SC}
    buffer_store_dwordx4 v[{P+4}:{P+7}], v2, s[24:27], s36 offen offset:1024 {SC}
    """)
    uvw_issue(A)
    srd(A, 8, PTR['wo'], 0, 1024*2048)
    srd(A, 12, 20, WS_O, SZ_ACT)
    gemm64_setup(A, 1024, 2048, 64, perm=True)
    g64_w_prologue(A, 2048)
    A(f"""
    s_waitcnt vmcnt(14) lgkmcnt(0)
    s_barrier
    s_cmp_lg_u32 s44, 0
    s_cbranch_scc1 K2_FINISH
    v_mov_b32 v9, {FLAG}
    ds_read_b32 v8, v9
    s_waitcnt lgkmcnt(0)
    v_readfirstlane_b32 s36, v8
    s_nop 3
    s_cmp_eq_u32 s36, 0
    s_cbranch_scc1 K2_FINISH
    s_waitcnt vmcnt(0)
    s_mov_b32 s44, 1
    s_lshl_b32 s42, s30, 12
    v_mov_b32 v7, 0xff800000
    s_mov_b32 s45, 0
    v_add_u32 v5, {SB[0]}, v2
    K2_MAXL:
    s_barrier
    s_lshl_b32 s36, s45, 15
    s_add_u32 s36, s36, s42
    s_add_u32 m0, s42, {SB[0]}
    s_nop 0
    """)
    for q in range(4):
        A(f"buffer_load_dwordx4 v2, s[16:19], s36 offen offset:{q*1024} {SC} lds")
    A("s_waitcnt vmcnt(0)\ns_barrier")
    for u in range(8):
        A(f"""
        ds_read_b128 v[{KF[0]}:{KF[0]+3}], v5 offset:{u*4096}
        ds_read_b128 v[{KF[0]+4}:{KF[0]+7}], v5 offset:{u*4096+1024}
        s_waitcnt lgkmcnt(0)
        v_mfma_f32_32x32x16_bf16 v[{S0}:{S0+15}], v[{KF[0]}:{KF[0]+3}], v[{Q}:{Q+3}], 0
        v_mfma_f32_32x32x16_bf16 v[{S0}:{S0+15}], v[{KF[0]+4}:{KF[0]+7}], v[{Q+4}:{Q+7}], v[{S0}:{S0+15}]
        s_nop 15
        """)
        for i in range(0, 16, 2):
            A(f"v_max3_f32 v7, v7, v{S0+i}, v{S0+i+1}")
    A(f"""
    s_add_u32 s45, s45, 1
    s_cmp_lt_u32 s45, 8
    s_cbranch_scc1 K2_MAXL
    s_barrier
    """)
    kv_issue(SB[0], 0)
    kv_issue(SB[1], 1)
    A(f"""
    s_waitcnt vmcnt(0)
    s_barrier
    s_branch K2_SETC
    K2_FINISH:
    """)
    mprof2(A, 12, 't23')


def phase3(A):
    TOP = 126464
    VEC = TOP + 32768
    A(f"s_lshl_b32 s56, s28, 4\ns_add_u32 s56, s56, s29")
    signal(A, F_O, "s56", wave=0)
    u7 = uid()
    A(f"s_cmp_eq_u32 s30, 7\ns_cbranch_scc0 P3W{u7}")
    dbg_srd(A, 4)
    cnt_load(A, C_MR, 249)
    A(f"s_lshl_b32 s56, s28, 11\ns_add_u32 s56, s56, {F_O}")
    poll(A, [("s56", 16)], [248])
    cnt_check_or_poll(A, [(C_MR, 249, 128)])
    A(f"P3W{u7}:")
    srd(A, 16, PTR['x'], 0, 2048*2048)
    srd(A, 44, 20, 0, 0x18000)
    srd(A, 48, 20, WS_Y, SZ_ACT)
    srd(A, 24, 20, WS_ST2, 0x10000)
    A("s_barrier")
    mprof(A, 6)
    g64_b_prologue(A)
    A("s_waitcnt vmcnt(12)")
    uvw_compute(A)
    def h1(A):
      A(f"""
      v_and_b32 v8, 31, v1               ; t
      v_lshrrev_b32 v9, 5, v1            ; h
      v_lshlrev_b32 v10, 11, v8
      v_lshl_add_u32 v10, v9, 4, v10     ; t*2048 + h*16
      s_lshl_b32 s36, s28, 2
      s_add_u32 s36, s36, s31
      s_lshl_b32 s36, s36, 16
      s_lshl_b32 s37, s29, 7
      s_add_u32 s36, s36, s37
      s_lshl_b32 s37, s32, 6
      s_add_u32 s36, s36, s37
      buffer_load_dwordx4 v[144:147], v10, s[16:19], s36 offen
      buffer_load_dwordx4 v[148:151], v10, s[16:19], s36 offen offset:32
      v_lshlrev_b32 v11, 2, v1
      s_lshl_b32 s36, s29, 8             ; j*64*4
      """)
      for p, r in enumerate((152, 153, 162, 163)):
          A(f"s_add_u32 s37, s36, {0x10000 + p*8192}\nbuffer_load_dword v{r}, v11, s[44:47], s37 offen {SC}")
      for p in range(4):
          A(f"s_add_u32 s37, s36, {p*16384 + 8192}\nbuffer_load_dword v{154+p}, v11, s[44:47], s37 offen {SC}")
      for p in range(4):
          A(f"s_add_u32 s37, s36, {p*16384 + 12288}\nbuffer_load_dword v{158+p}, v11, s[44:47], s37 offen {SC}")
    g64_loop(A, "P3G", 8, 2048, True, {1: (14, h1)})
    A("s_cmp_lt_u32 s2, 224\ns_cbranch_scc0 UV_NOSIG")
    cnt_signal(A, C_UV, wave=0)
    A("UV_NOSIG:")
    mprof(A, 7)
    A(f"""
    v_add_f32 v152, v152, v153
    v_add_f32 v162, v162, v163
    v_add_f32 v152, v152, v162
    v_add_f32 v154, v154, v155
    v_add_f32 v156, v156, v157
    v_add_f32 v158, v158, v159
    v_add_f32 v160, v160, v161
    v_add_f32 v154, v154, v156
    v_add_f32 v158, v158, v160
    v_cvt_pk_bf16_f32 v152, v152, v154
    v_cvt_pk_bf16_f32 v158, v158, v158
    v_and_b32 v154, 0xffff0000, v152       ; sb
    v_lshlrev_b32 v152, 16, v152           ; ga
    v_lshlrev_b32 v158, 16, v158
    v_add_f32 v158, 1.0, v158
    v_cvt_pk_bf16_f32 v158, v158, v158
    v_lshlrev_b32 v158, 16, v158           ; g2
    v_lshlrev_b32 v8, 2, v1
    v_add_u32 v8, {VEC}, v8
    ds_write_b32 v8, v152
    ds_write_b32 v8, v158 offset:256
    v_lshlrev_b32 v8, 1, v1
    v_add_u32 v8, {VEC}, v8
    ds_write_b16_d16_hi v8, v154 offset:512
    ds_write_b16_d16_hi v8, v158 offset:640
    """)
    g64_exchange(A, "P3G", TOP)
    mprof2(A, 12, 't34')
    GA, G2, SBP, G2P = 152, 168, 184, 192
    A(f"""
    v_lshrrev_b32 v9, 5, v1
    v_lshlrev_b32 v10, 4, v9
    s_lshl_b32 s36, s32, 7
    s_add_u32 s36, s36, {VEC}
    v_add_u32 v10, s36, v10
    v_lshlrev_b32 v11, 3, v9
    s_lshl_b32 s36, s32, 6
    s_add_u32 s36, s36, {VEC}
    v_add_u32 v11, s36, v11
    """)
    for jq in range(4):
        A(f"ds_read_b128 v[{GA+4*jq}:{GA+4*jq+3}], v10 offset:{jq*32}")
    for jq in range(4):
        A(f"ds_read_b128 v[{G2+4*jq}:{G2+4*jq+3}], v10 offset:{256 + jq*32}")
    for jq in range(4):
        A(f"ds_read_b64 v[{SBP+2*jq}:{SBP+2*jq+1}], v11 offset:{512 + jq*16}")
        A(f"ds_read_b64 v[{G2P+2*jq}:{G2P+2*jq+1}], v11 offset:{640 + jq*16}")
    A("v_permlane32_swap_b32 v144, v146\nv_permlane32_swap_b32 v145, v147\nv_permlane32_swap_b32 v148, v150\nv_permlane32_swap_b32 v149, v151")
    A(f"""
    s_lshl_b32 s36, s28, 2
    s_add_u32 s36, s36, s31
    s_lshl_b32 s36, s36, 6
    s_lshl_b32 s37, s29, 2
    s_add_u32 s36, s36, s37
    s_lshl_b32 s37, s32, 1
    s_add_u32 s36, s36, s37
    s_lshl_b32 s36, s36, 10
    v_mov_b32 v70, 0x3f803f80
    s_waitcnt lgkmcnt(8)
    """)
    for jq in range(4):
        for d in range(2):
            x = 144 + 2*jq + d
            r = 16 + 4*jq + 2*d
            t = 72 + 2*((2*jq+d) % 4)
            A(f"""
            v_lshlrev_b32 v{t}, 16, v{x}
            v_and_b32 v{t+1}, 0xffff0000, v{x}
            v_fma_f32 v{r}, v{r}, v{GA+4*jq+2*d}, v{t}
            v_fma_f32 v{r+1}, v{r+1}, v{GA+4*jq+2*d+1}, v{t+1}
            """)
    A("s_waitcnt lgkmcnt(0)")
    Z = 48
    for m in range(8):
        A(f"v_mul_f32 v{Z+2*m}, v{16+2*m}, v{G2+2*m}\nv_mul_f32 v{Z+2*m+1}, v{16+2*m+1}, v{G2+2*m+1}")
        A(f"v_cvt_pk_bf16_f32 v{X1R+m}, v{16+2*m}, v{16+2*m+1}")
    for m in range(8):
        A(f"v_cvt_pk_bf16_f32 v{40+m}, v{Z+2*m}, v{Z+2*m+1}")
    A(f"""
    buffer_store_dwordx4 v[40:43], v2, s[48:51], s36 offen {SC}
    buffer_store_dwordx4 v[44:47], v2, s[48:51], s36 offen offset:1024 {SC}
    """)
    mprof2(A, 13, 't34')
    S = 64
    for m in range(8):
        c = (lambda k: "0" if m == 0 else f"v{S+k}")
        A(f"""
        v_dot2_f32_bf16 v{S}, v{X1R+m}, v70, {c(0)}
        v_dot2_f32_bf16 v{S+1}, v{X1R+m}, v{X1R+m}, {c(1)}
        v_dot2_f32_bf16 v{S+2}, v{40+m}, v70, {c(2)}
        v_dot2_f32_bf16 v{S+3}, v{40+m}, v{G2P+m}, {c(3)}
        v_dot2_f32_bf16 v{S+4}, v{40+m}, v{40+m}, {c(4)}
        v_dot2_f32_bf16 v{S+5}, v{40+m}, v{SBP+m}, {c(5)}
        """)
    A("s_nop 2")
    for k in range(6):
        A(f"v_mov_b32 v{72+k}, v{S+k}")
    A("s_nop 1")
    for k in range(6):
        A(f"v_permlane32_swap_b32 v{S+k}, v{72+k}")
    A("s_nop 1")
    for k in range(6):
        A(f"v_add_f32 v{S+k}, v{S+k}, v{72+k}")
    A(f"""
    v_and_b32 v8, 31, v1
    v_lshlrev_b32 v8, 5, v8
    s_lshl_b32 s37, s31, 13
    s_add_u32 s37, s37, {TOP + 4096}
    v_add_u32 v8, s37, v8
    v_mov_b32 v{S+6}, 0
    v_mov_b32 v{S+7}, 0
    s_lshl_b32 s101, s28, 4
    s_add_u32 s101, s101, s29
    s_cmp_eq_u32 s32, 1
    s_cbranch_scc0 P3_ST0
    ds_write_b128 v8, v[{S}:{S+3}]
    ds_write_b128 v8, v[{S+4}:{S+7}] offset:16
    s_waitcnt vmcnt(0) lgkmcnt(0)
    s_barrier
    s_branch P3_STE
    P3_ST0:
    s_waitcnt vmcnt(0)
    s_barrier
    """)
    signal(A, F_Z, "s101", wave=0)
    A(f"""
    ds_read_b128 v[72:75], v8
    ds_read_b128 v[76:79], v8 offset:16
    s_waitcnt lgkmcnt(0)
    """)
    for k in range(6):
        A(f"v_add_f32 v{S+k}, v{S+k}, v{72+k}")
    A(f"""
    v_cmp_lt_u32 vcc, 31, v1
    v_and_b32 v8, 31, v1
    v_lshlrev_b32 v8, 5, v8            ; t*32
    v_lshrrev_b32 v9, 5, v1
    v_lshl_add_u32 v8, v9, 2, v8       ; + h*4
    v_cndmask_b32 v{S}, v{S}, v{S+1}, vcc
    v_cndmask_b32 v{S+2}, v{S+2}, v{S+3}, vcc
    v_cndmask_b32 v{S+4}, v{S+4}, v{S+5}, vcc
    s_lshl_b32 s36, s28, 2
    s_add_u32 s36, s36, s31
    s_lshl_b32 s36, s36, 10
    buffer_atomic_add_f32 v{S}, v8, s[24:27], s36 offen sc1
    buffer_atomic_add_f32 v{S+2}, v8, s[24:27], s36 offen offset:8 sc1
    buffer_atomic_add_f32 v{S+4}, v8, s[24:27], s36 offen offset:16 sc1
    P3_STE:
    """)


def phase4(A):
    SLOT = 28672
    ACC, AF, BF = 16, 128, 184
    AX = 4*SLOT; BX = AX + 7168; AL = BX + 4096
    wg_map_224(A)
    srd(A, 8, PTR['w1'], 0, 1024*7168)
    srd(A, 12, 20, WS_Y, SZ_ACT)
    srd(A, 16, PTR['b1'], 0, 7168)
    srd(A, 24, 20, WS_HH, SZ_HH)
    A("s_cmp_ge_u32 s30, 4\ns_cbranch_scc1 P4_LOADER")
    mprof2(A, 14, 't34')
    A("s_waitcnt vmcnt(0)\ns_barrier")
    mprof2(A, 15, 't34')
    signal(A, F_ST, "s101", wave=0)
    A(f"""
    v_lshrrev_b32 v9, 5, v1            ; h
    s_lshl_b32 s34, s28, 2
    s_add_u32 s34, s34, s30
    s_lshl_b32 s34, s34, 16
    v_bfe_u32 v6, v1, 2, 2
    v_lshlrev_b32 v4, 6, v6
    v_bfe_u32 v5, v1, 4, 1
    v_lshl_add_u32 v4, v5, 5, v4
    v_and_b32 v7, 3, v1
    v_lshl_add_u32 v4, v7, 3, v4
    v_mul_u32_u24 v5, 1792, v9
    v_add_u32 v4, v4, v5
    v_add_u32 v3, {2*SLOT}, v4
    """)
    for i in range(112):
        A(f"v_mov_b32 v{ACC+i}, 0")
    A("s_barrier")
    mprof(A, 8)
    for n in range(8):
        if n == 4:
            A("s_add_u32 s34, s34, 4096")
        A(f"buffer_load_dwordx4 v[{BF+4*n}:{BF+4*n+3}], v2, s[12:15], s34 offen offset:{(n & 3)*1024} {SC}")
    A("s_add_u32 s34, s34, 4096")
    def areads(slot, ks, buf):
        va = "v4" if slot < 2 else "v3"
        base = (slot & 1)*SLOT + ks*7168
        out = []
        for ft in range(7):
            for e in range(2):
                r = AF + 28*buf + 4*ft + 2*e
                out.append(f"ds_read_b64_tr_b16 v[{r}:{r+1}], {va} offset:{base + e*3584 + ft*256}")
        return out
    for x in areads(0, 0, 0):
        A(x)
    A("s_mov_b32 s41, 4\nP4_LOOP:")
    n = 0
    for slot in range(4):
        A("s_barrier")
        if genlib.PROF and genlib.PROFSET == "p4":
            A(f"s_sub_u32 s92, 4, s41\ns_lshl_b32 s92, s92, 2\ns_add_u32 s92, s92, {16+slot}\ns_nop 0\ns_memtime s[90:91]\ns_waitcnt lgkmcnt(0)\ns_mov_b32 m0, s92\nv_writelane_b32 v252, s90, m0")
        for ks in range(4):
            buf = n % 2
            nslot, nks = (slot, ks+1) if ks < 3 else ((slot+1) % 4, 0)
            rd = areads(nslot, nks, 1-buf)
            b = BF + 4*(n % 8)
            A("s_waitcnt vmcnt(7) lgkmcnt(0)")
            for ft in range(7):
                a = AF + 28*buf + 4*ft
                c = ACC + 16*ft
                A(f"v_mfma_f32_32x32x16_bf16 v[{c}:{c+15}], v[{a}:{a+3}], v[{b}:{b+3}], v[{c}:{c+15}]")
                if ft < 5:
                    k = 3 if ft < 4 else 2
                    for x in rd[:k]:
                        A(x)
                    rd = rd[k:]
            A(f"buffer_load_dwordx4 v[{b}:{b+3}], v2, s[12:15], s34 offen offset:{(n & 3)*1024} {SC}")
            if n % 4 == 3:
                A("s_add_u32 s34, s34, 4096")
            n += 1
    A(f"""
    s_sub_u32 s41, s41, 1
    s_cmp_lg_u32 s41, 0
    s_cbranch_scc1 P4_LOOP
    s_waitcnt lgkmcnt(0)
    v_add_u32 v10, {AX}, v2
    """)
    for ft in range(7):
        A(f"ds_read_b128 v[{AF+4*ft}:{AF+4*ft+3}], v10 offset:{ft*1024}")
    A(f"""
    s_lshl_b32 s36, s30, 10
    v_add_u32 v11, s36, v10
    ds_read_b128 v[{AF+28}:{AF+31}], v11 offset:{BX-AX}
    v_and_b32 v11, 31, v1
    v_lshlrev_b32 v11, 2, v11
    s_lshl_b32 s36, s30, 7
    v_add_u32 v11, s36, v11
    v_add_u32 v11, {AL}, v11
    ds_read_b32 v12, v11
    s_waitcnt lgkmcnt(0)
    s_barrier
    """)
    for ft in range(7):
        c = ACC + 16*ft
        A(f"v_mfma_f32_32x32x16_bf16 v[{c}:{c+15}], v[{AF+4*ft}:{AF+4*ft+3}], v[{AF+28}:{AF+31}], v[{c}:{c+15}]")
    A("s_waitcnt vmcnt(0)\ns_nop 15")
    mprof(A, 9)
    A(f"""
    v_mul_f32 v6, {f32(GELU_C1)}, v12
    v_mul_f32 v8, v12, v12
    v_mul_f32 v8, v8, v12
    v_mul_f32 v8, {f32(GELU_C2)}, v8
    v_rcp_f32 v10, v12
    v_mov_b32 v7, v6
    v_mov_b32 v9, v8
    v_mov_b32 v11, v10
    """)
    A(f"""
    s_lshl_b32 s36, s28, 2
    s_add_u32 s36, s36, s30
    s_mul_i32 s36, s36, 224
    s_mul_i32 s37, s29, 14
    s_add_u32 s36, s36, s37
    s_lshl_b32 s36, s36, 10
    """)
    for ft in range(7):
        c = ACC + 16*ft
        T = 160; E = 176
        pr = lambda r, i: f"v[{r+2*i}:{r+2*i+1}]"
        for i in range(8): A(f"v_pk_mul_f32 {pr(T,i)}, {pr(c,i)}, {pr(c,i)}")
        for i in range(8): A(f"v_pk_fma_f32 {pr(T,i)}, {pr(T,i)}, v[8:9], v[6:7]")
        for i in range(8): A(f"v_pk_mul_f32 {pr(T,i)}, {pr(T,i)}, {pr(c,i)}")
        for i in range(16): A(f"v_exp_f32 v{T+i}, v{T+i}")
        for i in range(8): A(f"v_pk_fma_f32 {pr(T,i)}, {pr(T,i)}, v[10:11], v[10:11]")
        for i in range(16): A(f"v_rcp_f32 v{T+i}, v{T+i}")
        for i in range(8): A(f"v_pk_mul_f32 {pr(T,i)}, {pr(T,i)}, {pr(c,i)}")
        P = E + 8*(ft % 2)
        for m in range(8):
            A(f"v_cvt_pk_bf16_f32 v{P+m}, v{T+2*m}, v{T+2*m+1}")
        for e in range(2):
            kidx = 2*ft + e
            if kidx % 4 == 0 and kidx > 0:
                A("s_add_u32 s36, s36, 4096")
            A(f"buffer_store_dwordx4 v[{P+4*e}:{P+4*e+3}], v2, s[24:27], s36 offen offset:{(kidx & 3)*1024} {SC}")
    A(f"""
    s_lshl_b32 s101, s28, 4
    s_add_u32 s101, s101, s29
    """)
    mprof2(A, 12, 't45')
    A("s_branch P4_DONE")
    A(f"""
    P4_LOADER:
    s_setprio 2
    s_sub_u32 s31, s30, 4              ; lw
    s_mul_i32 s36, s31, 28
    v_lshrrev_b32 v5, 4, v1            ; l>>4
    v_add_u32 v5, s36, v5
    v_bfe_u32 v6, v1, 2, 2             ; r
    v_and_b32 v7, 3, v1                ; c
    """)
    for u in range(7):
        A(f"""
        v_add_u32 v8, {4*u}, v5
        v_mul_u32_u24 v9, 9363, v8
        v_lshrrev_b32 v9, 16, v9           ; q
        v_mul_u32_u24 v10, 7, v9
        v_sub_u32 v10, v8, v10             ; ft
        v_lshl_add_u32 v9, v9, 2, v6       ; row = 4q + r
        v_mul_u32_u24 v9, 7168, v9
        v_lshl_add_u32 v9, v10, 6, v9
        v_lshl_add_u32 v{16+u}, v7, 4, v9
        """)
    A(f"""
    s_mul_i32 s33, s29, 448
    s_mul_i32 s39, s31, 7168
    """)
    Q = []
    def issue_stage(st):
        for u in range(7):
            A(f"s_add_u32 m0, s39, {(st % 4)*SLOT + u*1024}\ns_nop 0\nbuffer_load_dwordx4 v{16+u}, s[8:11], s33 offen lds")
        A(f"s_add_u32 s33, s33, {64*7168}")
        Q.extend([("W", st)]*7)
    def wait_tag(tag):
        idx = max(i for i, t in enumerate(Q) if t == tag)
        return len(Q) - 1 - idx
    issue_stage(0)
    issue_stage(1)
    A("s_barrier")
    poll_by(A, 7, [("s56", 16)], [248], pre=f"s_lshl_b32 s56, s28, 11\ns_add_u32 s56, s56, {F_Z}")
    A(f"s_waitcnt vmcnt({wait_tag(('W', 0))})\ns_barrier")
    issue_stage(2)
    srd(A, 44, 20, WS_ST2, 0x10000)
    srd(A, 48, 20, WS_UVW, 2*UVW_P + 128)
    ST = 32; UV = 140
    A(f"""
    v_and_b32 v8, 31, v1               ; f / t
    s_mul_i32 s36, s29, 224
    s_lshl_b32 s37, s31, 5
    s_add_u32 s36, s36, s37            ; F0 = j*224 + lw*32
    v_add_u32 v9, s36, v8              ; F
    v_lshlrev_b32 v14, 2, v9           ; F*4
    v_lshlrev_b32 v15, 1, v9           ; F*2
    v_mov_b32 v236, 0
    s_lshl_b32 s52, s28, 2
    s_add_u32 s52, s52, s31
    s_lshl_b32 s52, s52, 10
    v_lshlrev_b32 v237, 5, v8
    """)
    small = []
    for tsel in range(2):
        for p in range(2):
            for m in range(3):
                small.append(f"s_mov_b32 s53, {p*UVW_P + m*3584*4}\nbuffer_load_dword v{UV+8*tsel+4*p+m}, v14, s[48:51], s53 offen offset:{512*tsel} {SC}")
        small.append(f"buffer_load_ushort v{UV+8*tsel+3}, v15, s[16:19], 0 offen offset:{256*tsel}")
    for p in range(2):
        small.append(f"s_mov_b32 s53, {2*UVW_P + p*64}\nbuffer_load_dwordx4 v[{104+8*p}:{107+8*p}], v236, s[48:51], s53 offen {SC}")
        small.append(f"s_mov_b32 s53, {2*UVW_P + p*64}\nbuffer_load_dwordx4 v[{108+8*p}:{111+8*p}], v236, s[48:51], s53 offen offset:16 {SC}")
    stl = [f"buffer_load_dwordx4 v[{ST}:{ST+3}], v237, s[44:47], s52 offen {SC}",
           f"buffer_load_dwordx4 v[{ST+4}:{ST+7}], v237, s[44:47], s52 offen offset:16 {SC}"]
    def liter(i):
        A(f"s_waitcnt vmcnt({wait_tag(('W', i+1))})\ns_barrier")
        if i + 3 < 16: issue_stage(i+3)
    for i in range(0, 5):
        liter(i)
    dbg_srd(A, 4)
    cnt_load(A, C_UV, 249)
    A(f"""
    v_min_u32 v248, 15, v1
    v_lshlrev_b32 v248, 7, v248
    s_lshl_b32 s56, s28, 11
    s_add_u32 s56, s56, {F_ST}
    buffer_load_dword v248, v248, s[96:99], s56 offen {FLAGS_SFX}
    """)
    Q.extend([("F", 0)]*2)
    liter(5)
    liter(6)
    A(f"s_waitcnt vmcnt({wait_tag(('F', 0))})")
    ug = uid()
    A(f"v_cmp_eq_u32 vcc, {TOK}, v248\ns_cmp_eq_u64 vcc, -1\ns_cbranch_scc1 STOK{ug}")
    poll(A, [("s56", 16)], [248])
    A(f"STOK{ug}:")
    cnt_check_or_poll(A, [(C_UV, 249, 224)])
    for x in stl + small[:7]:
        A(x); Q.append(("S", 0))
    liter(7)
    for x in small[7:]:
        A(x); Q.append(("S", 0))
    liter(8)
    liter(9)
    A(f"s_waitcnt vmcnt({wait_tag(('S', 0))})")
    for k in range(8):
        A(f"v_add_f32 v{104+k}, v{104+k}, v{112+k}")
    for tsel in range(2):
        for m in range(3):
            A(f"v_add_f32 v{UV+8*tsel+m}, v{UV+8*tsel+m}, v{UV+8*tsel+4+m}")
    S1, S2, S3, S4, S5, S6 = [ST+k for k in range(6)]
    G2c, GS, G1c, SB2, SB1 = 104, 105, 106, 109, 110
    iD = f32(1/1024)
    A(f"""
    v_mul_f32 v112, {iD}, v{S1}            ; mu1
    v_mul_f32 v113, {iD}, v{S2}
    v_fma_f32 v113, -v112, v112, v113      ; var1
    v_add_f32 v113, {f32(1e-5)}, v113
    v_rsq_f32 v114, v113                   ; r1
    s_nop 0
    v_mul_f32 v115, v113, v114             ; 1/r1
    v_fma_f32 v116, -v112, v{G1c}, v{S3}
    v_fma_f32 v116, v116, v114, v{SB1}
    v_mul_f32 v116, {iD}, v116             ; m2
    v_mul_f32 v117, v112, v{G2c}
    v_fma_f32 v117, -2.0, v{S4}, v117
    v_fma_f32 v117, v117, v112, v{S5}
    v_mul_f32 v117, v117, v114
    v_fma_f32 v118, -v112, v{GS}, v{S6}
    v_fma_f32 v117, 2.0, v118, v117
    v_fma_f32 v117, v117, v114, v{SB2}
    v_mul_f32 v117, {iD}, v117             ; E2
    v_fma_f32 v117, -v116, v116, v117      ; var2
    v_add_f32 v117, {f32(1e-5)}, v117
    v_rsq_f32 v118, v117                   ; r2
    s_nop 0
    v_mul_f32 v119, v117, v118             ; 1/r2
    v_mul_f32 v120, v114, v118             ; alpha
    v_sub_f32 v121, 0, v112                ; c1 = -mu1
    v_mul_f32 v122, v116, v115
    v_sub_f32 v122, 0, v122                ; c3 = -m2/r1
    v_mul_f32 v123, v115, v119             ; c4 = 1/alpha
    """)
    liter(10)
    split_hilo(A, 121, 124, 125, 8)
    split_hilo(A, 115, 126, 127, 8)
    split_hilo(A, 122, 128, 129, 8)
    split_hilo(A, 123, 130, 131, 8)
    def pk(dst, lo, hi):
        if lo is None and hi is None: A(f"v_mov_b32 v{dst}, 0")
        elif hi is None: A(f"v_lshrrev_b32 v{dst}, 16, v{lo}")
        else: A(f"v_lshrrev_b32 v{dst}, 16, v{lo}\nv_or_b32 v{dst}, v{dst}, v{hi}")
    pk(132, 124, 124); pk(133, 125, 126); pk(134, 126, 127); pk(135, 128, 128)
    pk(136, 129, 130); pk(137, 131, None); pk(138, None, None); pk(139, None, None)
    A(f"""
    v_cmp_lt_u32 vcc, 31, v1
    s_nop 1
    v_cndmask_b32 v132, v132, v136, vcc
    v_cndmask_b32 v133, v133, v137, vcc
    v_cndmask_b32 v134, v134, v138, vcc
    v_cndmask_b32 v135, v135, v139, vcc
    s_lshl_b32 s36, s31, 10
    v_add_u32 v10, s36, v2
    v_add_u32 v10, {BX}, v10
    ds_write_b128 v10, v[132:135]
    v_and_b32 v10, 31, v1
    v_lshlrev_b32 v10, 2, v10
    s_lshl_b32 s36, s31, 7
    v_add_u32 v10, s36, v10
    v_add_u32 v10, {AL}, v10
    ds_write_b32 v10, v120
    s_waitcnt lgkmcnt(0)
    """)
    for tsel in range(2):
        liter(11 + tsel)
        u_, v_, w_, b_ = UV+8*tsel, UV+8*tsel+1, UV+8*tsel+2, UV+8*tsel+3
        split_hilo(A, u_, 124, 125, 8)
        split_hilo(A, v_, 126, 127, 8)
        split_hilo(A, w_, 128, 129, 8)
        A(f"v_lshlrev_b32 v130, 16, v{b_}")
        pk(132, 124, 125); pk(133, 124, 126); pk(134, 127, 126); pk(135, 128, 129)
        pk(136, 128, 130); pk(137, 130, None); pk(138, None, None); pk(139, None, None)
        A(f"""
        v_cndmask_b32 v132, v132, v136, vcc
        v_cndmask_b32 v133, v133, v137, vcc
        v_cndmask_b32 v134, v134, v138, vcc
        v_cndmask_b32 v135, v135, v139, vcc
        s_add_u32 s36, s31, {4*tsel}
        s_cmp_lt_u32 s36, 7
        s_cbranch_scc0 P4_NOAX{tsel}
        s_lshl_b32 s36, s36, 10
        v_add_u32 v10, s36, v2
        v_add_u32 v10, {AX}, v10
        ds_write_b128 v10, v[132:135]
        P4_NOAX{tsel}:
        """)
    A("s_waitcnt lgkmcnt(0)")
    liter(13)
    liter(14)
    A("s_barrier")
    A("s_barrier")
    A("s_setprio 0")
    wg_map_64(A)
    srd(A, 8, PTR['w2'], 0, 3584*2048)
    p5_dma_voff(A)
    for kh in range(2):
        A(f"""
        s_and_b32 s36, s29, 1
        s_mul_i32 s33, s36, 1792
        s_add_u32 s33, s33, {kh*896}
        s_lshl_b32 s36, s31, 4
        s_add_u32 s33, s33, s36
        s_lshl_b32 s33, s33, 11
        s_lshr_b32 s36, s29, 1
        s_lshl_b32 s36, s36, 8
        s_add_u32 s33, s33, s36            ; + jj*256
        s_lshl_b32 s39, s31, 12
        s_add_u32 s39, s39, {kh*16384}
        """)
        for st in range(3):
            for x in p5_w_issue(st): A(x)
    A("P4_DONE:")


def p5_dma_voff(A):
    A("""
    v_bfe_u32 v6, v1, 2, 2
    v_lshlrev_b32 v3, 11, v6           ; r*2048
    v_lshrrev_b32 v5, 4, v1
    v_lshl_add_u32 v3, v5, 6, v3       ; + ft*64
    v_and_b32 v7, 3, v1
    v_lshl_add_u32 v3, v7, 4, v3       ; + c*16
    """)

def p5_w_issue(slot):
    L = []
    for i in range(4):
        L.append(f"s_add_u32 s37, s33, {i*8192}\ns_add_u32 m0, s39, {slot*32768 + i*1024}\ns_nop 0\nbuffer_load_dwordx4 v3, s[8:11], s37 offen lds")
    L.append(f"s_add_u32 s33, s33, {64*2048}")
    return L

def phase5(A):
    ACC5, AF5, BF5 = 16, 80, 112
    NS = 14
    A("s_cmp_ge_u32 s30, 4\ns_cbranch_scc1 P5_NOWAIT\ns_waitcnt vmcnt(0)\nP5_NOWAIT:\ns_barrier")
    mprof2(A, 13, 't45')
    signal(A, F_HH, "s101", wave=0)
    wg_map_64(A)
    lane_setup(A)
    srd(A, 8, PTR['w2'], 0, 3584*2048)
    srd(A, 12, 20, WS_HH, SZ_HH)
    srd(A, 16, PTR['b2'], 0, 2048)
    srd(A, 24, PTR['out'], 0, 2048*2048)
    srd(A, 44, 20, 0, 0x18000)
    srd(A, 48, 20, WS_XB, 0x800000)
    p5_dma_voff(A)
    A(f"""
    v_bfe_u32 v6, v1, 2, 2
    v_lshlrev_b32 v4, 6, v6
    v_bfe_u32 v5, v1, 4, 1
    v_lshl_add_u32 v4, v5, 5, v4
    v_and_b32 v7, 3, v1
    v_lshl_add_u32 v4, v7, 3, v4
    v_lshrrev_b32 v5, 5, v1
    v_lshl_add_u32 v4, v5, 10, v4
    s_lshl_b32 s36, s32, 14
    v_add_u32 v4, s36, v4
    v_add_u32 v5, 65536, v4
    s_and_b32 s36, s29, 1              ; kq
    s_mul_i32 s33, s36, 1792
    s_mul_i32 s37, s32, 896
    s_add_u32 s33, s33, s37            ; kbase
    s_lshr_b32 s34, s33, 4             ; kstep0
    s_lshl_b32 s37, s31, 4
    s_add_u32 s33, s33, s37
    s_add_u32 s33, s33, {3*64}
    s_lshl_b32 s33, s33, 11
    s_lshr_b32 s37, s29, 1
    s_lshl_b32 s37, s37, 8
    s_add_u32 s33, s33, s37
    s_lshl_b32 s39, s32, 14
    s_lshl_b32 s37, s31, 12
    s_add_u32 s39, s39, s37            ; m0 base
    s_lshl_b32 s37, s28, 2
    s_add_u32 s37, s37, s31
    s_mul_i32 s37, s37, 224
    s_add_u32 s34, s34, s37
    s_lshl_b32 s34, s34, 10
    """)
    PD = OPT.get("p5_pd", 2)
    if OPT.get("p5_pf", 1):
        A(f"""
        s_and_b32 s36, s28, 3              ; gi
        s_lshr_b32 s37, s36, 1             ; kh'
        s_mul_i32 s37, s37, 896
        s_and_b32 s36, s36, 1
        s_lshl_b32 s36, s36, 5
        s_add_u32 s37, s37, s36
        s_and_b32 s36, s29, 1
        s_mul_i32 s36, s36, 1792
        s_add_u32 s37, s37, s36
        s_add_u32 s37, s37, {(3+PD)*64}
        s_lshl_b32 s60, s37, 11
        s_lshr_b32 s36, s29, 1
        s_lshl_b32 s36, s36, 8
        s_add_u32 s60, s60, s36
        v_lshrrev_b32 v182, 1, v1
        v_lshlrev_b32 v182, 11, v182
        v_and_b32 v183, 1, v1
        v_lshl_add_u32 v182, v183, 7, v182
        s_lshr_b32 s36, s29, 1
        s_and_b32 s36, s36, 3              ; ji
        s_lshl_b32 s37, s28, 2
        s_add_u32 s37, s37, s36
        s_mul_i32 s37, s37, 224
        s_and_b32 s36, s29, 1
        s_mul_i32 s36, s36, 112
        s_add_u32 s37, s37, s36
        s_add_u32 s37, s37, {(3+PD)*4}
        s_lshl_b32 s61, s37, 10
        v_lshrrev_b32 v183, 5, v1
        v_mul_u32_u24 v183, {56*1024}, v183
        v_and_b32 v184, 31, v1
        v_lshl_add_u32 v183, v184, 7, v183
        """)
    poll_by(A, 7, [("s56", 16)], [248], pre=f"s_lshl_b32 s56, s28, 11\ns_add_u32 s56, s56, {F_HH}")
    A("s_waitcnt vmcnt(0)\ns_barrier")
    mprof(A, 10)
    def b5(slot):
        return [f"buffer_load_dwordx4 v[{BF5+16*slot+4*ks}:{BF5+16*slot+4*ks+3}], v2, s[12:15], s34 offen offset:{ks*1024} {SC}" for ks in range(4)] + ["s_add_u32 s34, s34, 4096"]
    Q = []
    for st in range(3):
        for x in b5(st): A(x)
        Q.extend([("B", st)]*4)
    for i in range(64):
        A(f"v_mov_b32 v{ACC5+i}, 0")
    def wt(*tags):
        w = 63
        for tag in tags:
            idxs = [i for i, t in enumerate(Q) if t == tag]
            if idxs: w = min(w, len(Q) - 1 - max(idxs))
        return w
    def reads(slot, ks, buf):
        va = "v4" if slot < 2 else "v5"
        out = []
        for ft in range(4):
            for e in range(2):
                r = AF5 + 16*buf + 4*ft + 2*e
                out.append(f"ds_read_b64_tr_b16 v[{r}:{r+1}], {va} offset:{(slot & 1)*32768 + ks*4096 + e*2048 + ft*256}")
        return out
    for st in range(NS):
        slot = st % 4
        A(f"s_waitcnt vmcnt({wt(('B', st), ('W', st))})\ns_barrier")
        for x in reads(slot, 0, 0): A(x)
        vm = []
        if st + 3 < NS:
            w = p5_w_issue((st+3) % 4); bb = b5((st+3) % 4)
            vm = [([w[0], w[1]], [("W", st+3)]*2), ([w[2], w[3], w[4]], [("W", st+3)]*2), ([bb[0], bb[1]], [("B", st+3)]*2), ([bb[2], bb[3], bb[4]], [("B", st+3)]*2)]
        for ks in range(4):
            if ks < 3:
                for x in reads(slot, ks+1, (ks+1) & 1): A(x)
                A("s_waitcnt lgkmcnt(8)")
            else:
                A("s_waitcnt lgkmcnt(0)")
            b_ = BF5 + 16*slot + 4*ks
            for ft in range(4):
                a_ = AF5 + 16*(ks & 1) + 4*ft
                c = ACC5 + 16*ft
                A(f"v_mfma_f32_32x32x16_bf16 v[{c}:{c+15}], v[{a_}:{a_+3}], v[{b_}:{b_+3}], v[{c}:{c+15}]")
            if vm:
                for x in vm[ks][0]: A(x)
                Q.extend(vm[ks][1])
            if OPT.get("p5_pf", 1) and ks == 1 and st + 3 + PD < NS:
                u = uid()
                A(f"""
                s_cmp_eq_u32 s30, {st % 4}
                s_cbranch_scc0 P5PFa{u}
                buffer_load_dword v181, v182, s[8:11], s60 offen
                P5PFa{u}:
                s_cmp_eq_u32 s30, {4 + st % 4}
                s_cbranch_scc0 P5PFb{u}
                buffer_load_dword v181, v183, s[12:15], s61 offen {SC}
                P5PFb{u}:
                s_add_u32 s60, s60, {64*2048}
                s_add_u32 s61, s61, 4096
                """)
            if st == NS-3 and ks == 0:
                A(f"""
                v_lshlrev_b32 v11, 2, v1
                s_lshl_b32 s36, s29, 8
                s_add_u32 s36, s36, {0x10000 + 4096}
                buffer_load_dword v176, v11, s[44:47], s36 offen {SC}
                s_add_u32 s36, s36, 8192
                buffer_load_dword v177, v11, s[44:47], s36 offen {SC}
                s_add_u32 s36, s36, 8192
                buffer_load_dword v178, v11, s[44:47], s36 offen {SC}
                s_add_u32 s36, s36, 8192
                buffer_load_dword v179, v11, s[44:47], s36 offen {SC}
                v_lshlrev_b32 v11, 1, v1
                s_lshl_b32 s36, s29, 7
                buffer_load_ushort v180, v11, s[16:19], s36 offen
                """)
                Q.extend([("E", 0)]*5)
    A("s_waitcnt vmcnt(0)\ns_barrier\ns_nop 15")
    mprof2(A, 14, 't45')
    A(f"""
    v_add_f32 v176, v176, v177
    v_add_f32 v178, v178, v179
    v_add_f32 v176, v176, v178
    v_cvt_pk_bf16_f32 v176, v176, v176
    v_lshlrev_b32 v176, 16, v176
    v_lshlrev_b32 v180, 16, v180
    v_lshlrev_b32 v11, 2, v1
    v_add_u32 v11, 65536, v11
    ds_write_b32 v11, v176
    ds_write_b32 v11, v180 offset:256
    s_lshl_b32 s36, s31, 14            ; tokt*16384
    v_add_u32 v5, s36, v2
    s_cmp_eq_u32 s32, 0
    s_cbranch_scc0 P5_X1
    """)
    for jq in range(4):
        A(f"ds_write_b128 v5, v[{32+4*jq}:{35+4*jq}] offset:{1*4096+jq*1024}")
        A(f"ds_write_b128 v5, v[{64+4*jq}:{67+4*jq}] offset:{3*4096+jq*1024}")
    A("s_branch P5_X2\nP5_X1:")
    for jq in range(4):
        A(f"ds_write_b128 v5, v[{16+4*jq}:{19+4*jq}] offset:{0*4096+jq*1024}")
        A(f"ds_write_b128 v5, v[{48+4*jq}:{51+4*jq}] offset:{2*4096+jq*1024}")
    A("s_nop 1")
    for i in range(16):
        A(f"v_mov_b32 v{16+i}, v{32+i}\nv_mov_b32 v{48+i}, v{64+i}")
    A(f"""
    P5_X2:
    s_waitcnt lgkmcnt(0)
    s_barrier
    s_lshl_b32 s36, s32, 12
    v_add_u32 v5, s36, v5
    """)
    for jq in range(4):
        A(f"ds_read_b128 v[{32+4*jq}:{35+4*jq}], v5 offset:{jq*1024}")
        A(f"ds_read_b128 v[{64+4*jq}:{67+4*jq}], v5 offset:{2*4096+jq*1024}")
    A(f"""
    s_waitcnt lgkmcnt(0)
    s_and_b32 s38, s29, 1              ; kq
    s_cmp_eq_u32 s38, 0
    s_cbranch_scc0 P5_K1
    """)
    for i in range(16):
        A(f"v_add_f32 v{64+i}, v{48+i}, v{64+i}")
    for i in range(16):
        A(f"v_add_f32 v{16+i}, v{16+i}, v{32+i}")
    A("s_branch P5_K2\nP5_K1:")
    for i in range(16):
        A(f"v_add_f32 v{32+i}, v{16+i}, v{32+i}")
    for i in range(16):
        A(f"v_add_f32 v{16+i}, v{48+i}, v{64+i}")
    for i in range(16):
        A(f"v_mov_b32 v{64+i}, v{32+i}")
    A(f"""
    P5_K2:
    s_lshl_b32 s101, s28, 4
    s_add_u32 s101, s101, s29
    s_lshl_b32 s37, s31, 1
    s_add_u32 s37, s37, s32
    s_lshl_b32 s37, s37, 12
    s_lshl_b32 s36, s101, 15
    s_add_u32 s36, s36, s37
    """)
    for jq in range(4):
        A(f"buffer_store_dwordx4 v[{64+4*jq}:{67+4*jq}], v2, s[48:51], s36 offen offset:{jq*1024} {SC}")
    A(f"""
    v_lshrrev_b32 v9, 5, v1
    v_lshlrev_b32 v9, 4, v9
    s_lshl_b32 s38, s32, 7
    s_add_u32 s38, s38, 65536
    v_add_u32 v9, s38, v9
    """)
    for jq in range(4):
        A(f"ds_read_b128 v[{152+4*jq}:{155+4*jq}], v9 offset:{jq*32}")
        A(f"ds_read_b128 v[{168+4*jq}:{171+4*jq}], v9 offset:{256 + jq*32}")
    A("s_waitcnt vmcnt(0) lgkmcnt(0)\ns_barrier")
    signal(A, F_X, "s101", wave=0)
    A(f"s_xor_b32 s38, s101, 1")
    poll_by(A, 7, [("s56", 1)], [248], pre=f"s_lshl_b32 s56, s38, 7\ns_add_u32 s56, s56, {F_X}")
    A(f"""
    s_lshl_b32 s36, s38, 15
    s_add_u32 s36, s36, s37
    s_barrier
    """)
    for jq in range(4):
        A(f"buffer_load_dwordx4 v[{32+4*jq}:{35+4*jq}], v2, s[48:51], s36 offen offset:{jq*1024} {SC}")
    for i in range(16):
        A(f"v_add_f32 v{16+i}, v{16+i}, v{168+i}")
    A("s_waitcnt vmcnt(0)")
    for i in range(16):
        A(f"v_add_f32 v{16+i}, v{16+i}, v{32+i}")
    for jq in range(4):
        for d in range(2):
            x = X1R + 2*jq + d
            r = 16 + 4*jq + 2*d
            A(f"""
            v_lshlrev_b32 v8, 16, v{x}
            v_and_b32 v9, 0xffff0000, v{x}
            v_fma_f32 v{r}, v{r}, v{152+4*jq+2*d}, v8
            v_fma_f32 v{r+1}, v{r+1}, v{152+4*jq+2*d+1}, v9
            """)
    for m in range(8):
        A(f"v_cvt_pk_bf16_f32 v{32+m}, v{16+2*m}, v{16+2*m+1}")
    A(f"""
    s_nop 1
    v_permlane32_swap_b32 v32, v34
    v_permlane32_swap_b32 v33, v35
    v_permlane32_swap_b32 v36, v38
    v_permlane32_swap_b32 v37, v39
    v_and_b32 v8, 31, v1
    v_lshrrev_b32 v9, 5, v1
    v_lshlrev_b32 v10, 11, v8
    v_lshl_add_u32 v10, v9, 4, v10      ; t*2048 + h*16
    s_lshl_b32 s36, s28, 2
    s_add_u32 s36, s36, s31
    s_lshl_b32 s36, s36, 16
    s_lshl_b32 s37, s29, 7
    s_add_u32 s36, s36, s37
    s_lshl_b32 s37, s32, 6
    s_add_u32 s36, s36, s37
    buffer_store_dwordx4 v[32:35], v10, s[24:27], s36 offen
    buffer_store_dwordx4 v[36:39], v10, s[24:27], s36 offen offset:32
    """)


def gen_mega(A, name="mega_kernel"):
    kernel_begin(A, name)
    A(f"""
    s_getpc_b64 s[62:63]
    MEGA_PC:
    s_cmp_ge_u32 s2, 256
    s_cbranch_scc1 MEGA_END
    s_load_dwordx16 s[64:79], s[0:1], 0
    s_load_dwordx8 s[80:87], s[0:1], 64       ; w2 b2 c wmod
    s_load_dwordx2 s[88:89], s[0:1], 96       ; out
    s_load_dwordx2 s[94:95], s[0:1], 104      ; dbg
    s_load_dwordx2 s[20:21], s[0:1], 112      ; ws
    s_memrealtime s[90:91]
    """)
    lane_setup(A)
    A("s_waitcnt lgkmcnt(0)")
    A("s_or_b32 s100, s90, 1")
    mprof(A, 0)
    srd(A, 96, 20, WS_FLAGS, FLAGS_SIZE)
    if OPT.get("code_pf", 1):
        A("""
        s_cmp_eq_u32 s30, 6
        s_cbranch_scc0 CPF_SKIP
        s_lshr_b32 s36, s2, 3
        s_lshl_b32 s36, s36, 4
        v_and_b32 v5, 15, v1
        v_add_u32 v5, s36, v5
        v_lshlrev_b32 v5, 7, v5
        s_mov_b32 s37, MEGA_CODE_END-MEGA_PC-8
        v_min_u32 v5, s37, v5
        v_and_b32 v5, -4, v5
        global_load_dword v254, v5, s[62:63]
        CPF_SKIP:
        """)
    phase01(A)
    mprof(A, 1)
    phase2(A)
    phase3(A)
    phase4(A)
    phase5(A)
    if genlib.PROF: A("s_waitcnt vmcnt(0)")
    mprof(A, 11)
    mprof_dump(A)
    mprof_dbg(A)
    A("MEGA_END:\ns_endpgm\nMEGA_CODE_END:")
    kernel_end(A, name, 256)
```

```python
from genlib import *
import genlib
from mega import *
from mega_p1 import phase01
from k_gemm import OPT

X1R = 240


UV_W, UV_VEC, UV_RED = 65536, 98304, 102400

def uvw_issue(A):
    srd(A, 48, PTR['w1'], 0, 1024*7168)
    srd(A, 52, 20, 0, 0x18000)
    A(f"""
    s_lshr_b32 s58, s2, 1              ; ft
    s_and_b32 s59, s2, 1               ; kh
    s_lshl_b32 s36, s59, 9
    s_lshl_b32 s37, s30, 6
    s_add_u32 s36, s36, s37            ; k0 = 512kh + 64w
    s_mul_i32 s37, s36, 7168
    s_lshl_b32 s38, s58, 6
    s_add_u32 s37, s37, s38            ; W1 soffset
    s_cmp_lt_u32 s2, 224
    s_cselect_b32 s37, s37, 0x7f000000
    v_lshrrev_b32 v8, 2, v1
    v_mul_u32_u24 v8, 7168, v8
    v_and_b32 v9, 3, v1
    v_lshl_add_u32 v8, v9, 4, v8
    s_lshl_b32 s38, s30, 12
    s_add_u32 s38, s38, {UV_W}
    """)
    for i in range(4):
        A(f"s_add_u32 m0, s38, {i*1024}\ns_nop 0\nbuffer_load_dwordx4 v8, s[48:51], s37 offen lds\ns_add_u32 s37, s37, {16*7168}")
    A(f"""
    v_and_b32 v9, 15, v1
    v_lshlrev_b32 v9, 4, v9
    v_bfe_u32 v10, v1, 4, 1
    v_lshl_add_u32 v9, v10, 12, v9
    s_lshl_b32 s36, s36, 2
    s_add_u32 s36, s36, {2048*4}
    """)
    for p in range(4):
        A(f"s_add_u32 s37, s36, {p*16384}\nbuffer_load_dwordx4 v[{176+4*p}:{179+4*p}], v9, s[52:55], s37 offen {SC}")

def uvw_compute(A):
    srd(A, 40, 20, WS_UVW, 2*UVW_P + 128)
    A(f"""
    s_lshr_b32 s60, s2, 1              ; ft
    s_and_b32 s61, s2, 1               ; kh
    v_add_f32 v176, v176, v180
    v_add_f32 v177, v177, v181
    v_add_f32 v178, v178, v182
    v_add_f32 v179, v179, v183
    v_add_f32 v184, v184, v188
    v_add_f32 v185, v185, v189
    v_add_f32 v186, v186, v190
    v_add_f32 v187, v187, v191
    v_add_f32 v176, v176, v184
    v_add_f32 v177, v177, v185
    v_add_f32 v178, v178, v186
    v_add_f32 v179, v179, v187
    """)
    bf16_round_pairs(A, [176, 177, 178, 179], 180)
    A(f"""
    v_bfe_u32 v10, v1, 4, 1
    v_cvt_f32_u32 v180, v10
    v_add_f32 v176, v180, v176
    v_add_f32 v177, v180, v177
    v_add_f32 v178, v180, v178
    v_add_f32 v179, v180, v179
    v_cvt_pk_bf16_f32 v176, v176, v177
    v_cvt_pk_bf16_f32 v177, v178, v179
    v_xor_b32 v10, 1, v10
    v_lshlrev_b32 v10, 7, v10
    v_and_b32 v9, 15, v1
    v_lshl_add_u32 v10, v9, 3, v10
    s_lshl_b32 s36, s30, 8
    s_add_u32 s36, s36, {UV_VEC}
    v_add_u32 v10, s36, v10
    ds_write_b64 v10, v[176:177]
    v_and_b32 v9, 31, v1               ; t
    v_lshrrev_b32 v11, 5, v1           ; h
    v_min_u32 v10, 1, v9
    v_lshlrev_b32 v10, 7, v10
    v_lshl_add_u32 v10, v11, 4, v10
    v_add_u32 v10, s36, v10
    v_bfe_u32 v8, v1, 2, 2
    v_lshlrev_b32 v8, 6, v8
    v_bfe_u32 v12, v1, 4, 1
    v_lshl_add_u32 v8, v12, 5, v8
    v_and_b32 v12, 3, v1
    v_lshl_add_u32 v8, v12, 3, v8
    v_lshl_add_u32 v8, v11, 9, v8
    s_lshl_b32 s37, s30, 12
    s_add_u32 s37, s37, {UV_W}
    v_add_u32 v8, s37, v8
    v_cmp_eq_u32 vcc, 2, v9
    v_cmp_lt_u32 s[62:63], v9, 2
    v_mov_b32 v12, 0x3f803f80
    v_mov_b32 v13, 0
    s_waitcnt lgkmcnt(0)
    """)
    BV, AV = 176, 192
    for s_ in range(4):
        A(f"ds_read_b128 v[{BV+4*s_}:{BV+4*s_+3}], v10 offset:{s_*32}")
    for s_ in range(4):
        for e in range(2):
            A(f"ds_read_b64_tr_b16 v[{AV+4*s_+2*e}:{AV+4*s_+2*e+1}], v8 offset:{s_*1024 + e*256}")
    A("v_cndmask_b32 v12, v13, v12, vcc\ns_waitcnt lgkmcnt(0)")
    for i in range(16):
        A(f"v_cndmask_b32 v{BV+i}, v12, v{BV+i}, s[62:63]")
    A("s_nop 1")
    for s_ in range(4):
        cc = "0" if s_ == 0 else "v[208:223]"
        A(f"v_mfma_f32_32x32x16_bf16 v[208:223], v[{AV+4*s_}:{AV+4*s_+3}], v[{BV+4*s_}:{BV+4*s_+3}], {cc}")
        cc = "0" if s_ == 0 else "v[224:239]"
        A(f"v_mfma_f32_32x32x16_bf16 v[224:239], v[{BV+4*s_}:{BV+4*s_+3}], v[{BV+4*s_}:{BV+4*s_+3}], {cc}")
    A(f"""
    s_nop 15
    v_cmp_gt_u32 vcc, 4, v9
    s_and_saveexec_b64 s[54:55], vcc
    v_lshlrev_b32 v10, 7, v9           ; t*128
    v_lshl_add_u32 v10, v11, 4, v10    ; + h*16
    s_lshl_b32 s36, s30, 9
    s_add_u32 s36, s36, {UV_RED}
    v_add_u32 v10, s36, v10
    """)
    for jq in range(4):
        A(f"ds_write_b128 v10, v[{208+4*jq}:{211+4*jq}] offset:{jq*32}")
    A(f"""
    v_lshlrev_b32 v10, 4, v9
    s_lshl_b32 s36, s30, 6
    s_add_u32 s36, s36, {UV_RED + 4096}
    v_add_u32 v10, s36, v10
    v_cmp_eq_u32 vcc, 0, v11
    s_and_b64 exec, exec, vcc
    ds_write_b128 v10, v[224:227]
    s_mov_b64 exec, s[54:55]
    s_waitcnt lgkmcnt(0)
    s_barrier
    s_cmp_eq_u32 s30, 1
    s_cbranch_scc0 UV_NG
    s_cmp_eq_u32 s60, 0
    s_cbranch_scc0 UV_END
    v_lshlrev_b32 v10, 2, v1
    v_add_u32 v8, {UV_RED + 4096}, v10
    """)
    for w_ in range(8):
        A(f"ds_read_b32 v{176+w_}, v8 offset:{w_*64}")
    A("s_waitcnt lgkmcnt(0)")
    for st in (4, 2, 1):
        for i in range(st):
            A(f"v_add_f32 v{176+i}, v{176+i}, v{176+i+st}")
    A(f"""
    s_lshl_b32 s36, s61, 6
    s_add_u32 s36, s36, {2*UVW_P}
    v_cmp_gt_u32 vcc, 16, v1
    s_and_saveexec_b64 s[54:55], vcc
    buffer_store_dword v176, v10, s[40:43], s36 offen {SC}
    s_mov_b64 exec, s[54:55]
    s_branch UV_END
    UV_NG:
    s_cmp_lt_u32 s30, 4
    s_cbranch_scc0 UV_END
    s_cmp_lt_u32 s2, 224
    s_cbranch_scc0 UV_END
    s_cmp_eq_u32 s30, 0
    s_cselect_b32 s37, 0, s30
    s_sub_u32 s38, s37, 1
    s_cselect_b32 s37, 0, s38          ; t = (w==0) ? 0 : w-1
    v_and_b32 v9, 31, v1
    v_lshlrev_b32 v10, 2, v9
    s_lshl_b32 s36, s37, 7
    s_add_u32 s36, s36, {UV_RED}
    v_add_u32 v8, s36, v10
    """)
    for w_ in range(8):
        A(f"ds_read_b32 v{176+w_}, v8 offset:{w_*512}")
    A("s_waitcnt lgkmcnt(0)")
    for st in (4, 2, 1):
        for i in range(st):
            A(f"v_add_f32 v{176+i}, v{176+i}, v{176+i+st}")
    A(f"""
    s_mul_i32 s36, s61, {UVW_P}
    s_mul_i32 s38, s37, {3584*4}
    s_add_u32 s36, s36, s38
    s_lshl_b32 s38, s60, 7
    s_add_u32 s36, s36, s38
    v_cmp_gt_u32 vcc, 32, v1
    s_and_saveexec_b64 s[54:55], vcc
    buffer_store_dword v176, v10, s[40:43], s36 offen {SC}
    s_mov_b64 exec, s[54:55]
    UV_END:
    """)


def phase2(A):
    SB = [65536, 98304, 0]
    FLAG = 131072
    wg_map_64(A)
    lane_setup(A)
    srd(A, 8, PTR['wq'], 0, 1024*2048)
    srd(A, 12, 20, WS_H, SZ_ACT)
    srd(A, 16, 20, WS_KV, 0x40000)
    srd(A, 24, 20, WS_O, SZ_ACT)
    gemm64_setup(A, 1024, 2048, 64, perm=False)
    g64_w_prologue(A, 2048)
    A(f"""
    v_mov_b32 v5, {FLAG}
    v_mov_b32 v6, 0
    ds_write_b32 v5, v6
    s_lshl_b32 s42, s30, 12            ; w*4096
    """)
    A(f"""
    s_lshr_b32 s52, s2, 3              ; idx
    s_and_b32 s53, s2, 7               ; xcd
    v_lshrrev_b32 v5, 3, v1
    v_lshlrev_b32 v5, 11, v5
    v_and_b32 v6, 7, v1
    v_lshl_add_u32 v5, v6, 7, v5       ; (l>>3)*2048 + (l&7)*128
    s_lshl_b32 s36, s52, 5
    s_lshl_b32 s37, s30, 3
    s_add_u32 s36, s36, s37
    s_lshl_b32 s36, s36, 11
    s_lshr_b32 s37, s53, 2
    s_lshl_b32 s37, s37, 10
    s_add_u32 s36, s36, s37
    v_add_u32 v5, s36, v5
    v_lshrrev_b32 v6, 4, v1
    v_mul_u32_u24 v6, 7168, v6
    v_and_b32 v7, 15, v1
    v_min_u32 v7, 13, v7
    v_lshl_add_u32 v6, v7, 7, v6
    s_xor_b32 s37, s30, 4              ; u
    s_lshl_b32 s37, s37, 2
    s_lshl_b32 s36, s52, 5
    s_add_u32 s36, s36, s37
    s_mul_i32 s36, s36, 7168
    s_lshr_b32 s37, s53, 1
    s_mul_i32 s37, s37, 1792
    s_add_u32 s36, s36, s37
    v_add_u32 v6, s36, v6              ; W1 offset
    s_mul_i32 s36, s2, 224
    s_sub_u32 s37, s30, 4
    s_and_b32 s37, s37, 3
    s_lshl_b32 s37, s37, 6
    s_add_u32 s36, s36, s37
    v_add_u32 v7, s36, v1
    v_min_u32 v7, 57343, v7
    v_lshlrev_b32 v7, 7, v7            ; W2 offset
    s_cmp_lt_u32 s30, 4
    s_cselect_b32 s60, s{PTR['wo']}, s{PTR['w1']}
    s_cselect_b32 s61, s{PTR['wo']+1}, s{PTR['w1']+1}
    s_cselect_b32 s62, s{PTR['w1']}, s{PTR['w2']}
    s_cselect_b32 s63, s{PTR['w1']+1}, s{PTR['w2']+1}
    s_cselect_b64 vcc, -1, 0
    s_nop 1
    v_cndmask_b32 v168, v6, v5, vcc    ; A: w<4 ? Wo : W1
    v_cndmask_b32 v169, v7, v6, vcc    ; B: w<4 ? W1 : W2
    """)
    poll_by(A, 7, [("s56", 4)], [248], pre=f"s_lshl_b32 s56, s28, 9\ns_add_u32 s56, s56, {F_H}")
    dbg_srd(A, 4)
    A("s_barrier")
    mprof(A, 2)
    g64_b_prologue(A)
    def kv_issue(lds_const, stage):
        A(f"s_add_u32 m0, s42, {lds_const}\ns_add_u32 s36, s42, {stage*32768}")
        for q in range(4):
            A(f"buffer_load_dwordx4 v2, s[16:19], s36 offen offset:{q*1024} {SC} lds")
    def h0(A):
        cnt_load(A, C_KV, 172)
        cnt_load(A, C_M0B, 173)
    def pre2(A):
        cnt_check_or_poll(A, [(C_KV, 172, 128), (C_M0B, 173, 128)])
    def h2(A):
        kv_issue(SB[0], 0)
        kv_issue(SB[1], 1)
    g64_loop(A, "P2G", 8, 2048, False, {0: (2, h0), "pre2": pre2, "pre2_need": ("h0", 0), 2: (8, h2)})
    mprof(A, 3)
    g64_exchange(A, "P2G", 0)
    Q, C, S0, S1, P, O, Lr, SEL = 48, 56, 72, 88, 104, 112, 128, 132
    KF = [136, 144]; VF = [152, 160]
    SS = [S0, S1]
    qs = (32 ** -0.5) * LOG2E
    for i in range(16):
        A(f"v_mul_f32 v{16+i}, {f32(qs)}, v{16+i}")
    for m in range(8):
        A(f"v_cvt_pk_bf16_f32 v{Q+m}, v{16+2*m}, v{16+2*m+1}")
    A(f"""
    v_add_u32 v5, {SB[0]}, v2
    ds_read_b128 v[{KF[0]}:{KF[0]+3}], v5
    ds_read_b128 v[{KF[0]+4}:{KF[0]+7}], v5 offset:1024
    v_and_b32 v5, 3, v1
    v_bfe_u32 v6, v1, 2, 1
    v_bfe_u32 v7, v1, 4, 1
    v_xor_b32 v6, v6, v7
    v_or_b32 v5, v5, v6
    v_cmp_eq_u32 vcc, 0, v5
    v_mov_b32 v6, 0x3f803f80
    v_mov_b32 v5, 0
    s_mov_b32 s44, 0                   ; mode
    s_nop 0
    v_cndmask_b32 v{SEL}, v5, v6, vcc
    s_waitcnt lgkmcnt(0)
    v_mfma_f32_32x32x16_bf16 v[{S0}:{S0+15}], v[{KF[0]}:{KF[0]+3}], v[{Q}:{Q+3}], 0
    v_mfma_f32_32x32x16_bf16 v[{S0}:{S0+15}], v[{KF[0]+4}:{KF[0]+7}], v[{Q+4}:{Q+7}], v[{S0}:{S0+15}]
    v_mov_b32 v{SEL+1}, v{SEL}
    v_mov_b32 v{SEL+2}, v{SEL}
    v_mov_b32 v{SEL+3}, v{SEL}
    s_nop 12
    v_max3_f32 v7, v{S0}, v{S0+1}, v{S0+2}
    """)
    for i in range(3, 15, 2):
        A(f"v_max3_f32 v7, v7, v{S0+i}, v{S0+i+1}")
    A(f"""
    v_max_f32 v7, v7, v{S0+15}
    K2_SETC:
    v_mov_b32 v8, v7
    v_add_u32 v5, {SB[0]}, v2
    v_add_u32 v6, {SB[1]}, v2
    v_permlane32_swap_b32 v7, v8
    ds_read_b128 v[{KF[0]}:{KF[0]+3}], v5
    ds_read_b128 v[{KF[0]+4}:{KF[0]+7}], v5 offset:1024
    ds_read_b128 v[{KF[1]}:{KF[1]+3}], v5 offset:4096
    ds_read_b128 v[{KF[1]+4}:{KF[1]+7}], v5 offset:{4096+1024}
    ds_read_b128 v[{VF[0]}:{VF[0]+3}], v5 offset:2048
    ds_read_b128 v[{VF[0]+4}:{VF[0]+7}], v5 offset:3072
    v_max_f32 v7, v7, v8
    v_sub_f32 v7, 0, v7
    """)
    for i in range(16):
        A(f"v_mov_b32 v{C+i}, v7")
    for i in range(16):
        A(f"v_mov_b32 v{O+i}, 0")
    for i in range(4):
        A(f"v_mov_b32 v{Lr+i}, 0")
    for i in range(4):
        A(f"v_mov_b32 v{P+4+i}, 0\nv_mov_b32 v{VF[1]+4+i}, 0")
    A(f"""
    s_waitcnt lgkmcnt(0)
    v_mfma_f32_32x32x16_bf16 v[{S0}:{S0+15}], v[{KF[0]}:{KF[0]+3}], v[{Q}:{Q+3}], v[{C}:{C+15}]
    v_mfma_f32_32x32x16_bf16 v[{S0}:{S0+15}], v[{KF[0]+4}:{KF[0]+7}], v[{Q+4}:{Q+7}], v[{S0}:{S0+15}]
    s_mov_b32 s45, 0                   ; stage i
    s_add_u32 s46, s42, {2*32768}
    s_mov_b32 s47, {SB[2]}
    s_mov_b32 s56, {SB[0]}             ; cur
    s_mov_b32 s57, {SB[1]}             ; next
    s_nop 5
    """)
    mprof(A, 4)
    A(f"""
    K2_LOOP:
    s_cmp_lt_u32 s45, 3
    s_cbranch_scc1 K2_W1
    s_waitcnt vmcnt(0)
    K2_W1:
    s_waitcnt vmcnt(1)
    s_barrier
    s_add_u32 m0, s47, s42
    """)
    P0, P1 = P, P + 4
    def E(S, i): return f"v_exp_f32 v{S+i}, v{S+i}"
    def Cv(S, m): return f"v_cvt_pk_bf16_f32 v{P+m}, v{S+2*m}, v{S+2*m+1}"
    NT = 8
    for u in range(NT):
        S = SS[u % 2]; Sn = SS[(u+1) % 2]
        Kn = KF[(u+1) % 2]; Kl = KF[u % 2]
        V = VF[u % 2]; Vp = VF[(u+1) % 2]
        ka = ("v5", (u+2)*4096) if u+2 < NT else ("v6", (u+2-NT)*4096)
        va = ("v5", (u+1)*4096+2048) if u+1 < NT else ("v6", 2048)
        QKa = f"v_mfma_f32_32x32x16_bf16 v[{Sn}:{Sn+15}], v[{Kn}:{Kn+3}], v[{Q}:{Q+3}], v[{C}:{C+15}]"
        QKb = f"v_mfma_f32_32x32x16_bf16 v[{Sn}:{Sn+15}], v[{Kn+4}:{Kn+7}], v[{Q+4}:{Q+7}], v[{Sn}:{Sn+15}]"
        PVa = f"v_mfma_f32_32x32x16_bf16 v[{O}:{O+15}], v[{V}:{V+3}], v[{P0}:{P0+3}], v[{O}:{O+15}]"
        La = f"v_mfma_f32_16x16x32_bf16 v[{Lr}:{Lr+3}], v[{SEL}:{SEL+3}], v[{P0}:{P0+3}], v[{Lr}:{Lr+3}]"
        PVb_prev = f"v_mfma_f32_32x32x16_bf16 v[{O}:{O+15}], v[{Vp+4}:{Vp+7}], v[{P1}:{P1+3}], v[{O}:{O+15}]"
        Lb_prev = f"v_mfma_f32_16x16x32_bf16 v[{Lr}:{Lr+3}], v[{SEL}:{SEL+3}], v[{P1}:{P1+3}], v[{Lr}:{Lr+3}]"
        rdK = [f"ds_read_b128 v[{Kl}:{Kl+3}], {ka[0]} offset:{ka[1]}", f"ds_read_b128 v[{Kl+4}:{Kl+7}], {ka[0]} offset:{ka[1]+1024}"]
        rdV = [f"ds_read_b128 v[{Vp}:{Vp+3}], {va[0]} offset:{va[1]}", f"ds_read_b128 v[{Vp+4}:{Vp+7}], {va[0]} offset:{va[1]+1024}"]
        vm = []
        if u < 4:
            vm = [f"s_cmp_lt_u32 s45, 6", f"s_cbranch_scc0 K2_ND{u}",
                  f"buffer_load_dwordx4 v2, s[16:19], s46 offen offset:{u*1024} {SC} lds", f"K2_ND{u}:"]
        if u == 5:
            vm = ["s_cmp_eq_u32 s45, 0", "s_cbranch_scc0 K2_PFA", "global_load_dword v170, v168, s[60:61]", "K2_PFA:",
                  "s_cmp_eq_u32 s45, 1", "s_cbranch_scc0 K2_PFB", "global_load_dword v170, v169, s[62:63]", "K2_PFB:"]
        seq = ["s_waitcnt lgkmcnt(0)", QKa, E(S,0), E(S,1), E(S,2),
               PVb_prev, E(S,3), E(S,4), E(S,5),
               Lb_prev, rdK[0], rdK[1], E(S,6), E(S,7), Cv(S,0), Cv(S,1),
               QKb, rdV[0], rdV[1], Cv(S,2), Cv(S,3), E(S,8), E(S,9),
               PVa] + vm + [E(S,10), E(S,11), E(S,12),
               La, E(S,13), E(S,14), E(S,15), Cv(S,4), Cv(S,5), Cv(S,6), Cv(S,7)]
        for x in seq: A(x)
    A(f"""
    v_mov_b32 v5, v6
    v_add_u32 v6, s47, v2
    s_mov_b32 s36, s56
    s_mov_b32 s56, s57
    s_mov_b32 s57, s47
    s_mov_b32 s47, s36
    s_add_u32 s46, s46, 32768
    s_add_u32 s45, s45, 1
    s_cmp_lt_u32 s45, 8
    s_cbranch_scc1 K2_LOOP
    v_mfma_f32_32x32x16_bf16 v[{O}:{O+15}], v[{VF[1]+4}:{VF[1]+7}], v[{P+4}:{P+7}], v[{O}:{O+15}]
    v_mfma_f32_16x16x32_bf16 v[{Lr}:{Lr+3}], v[{SEL}:{SEL+3}], v[{P+4}:{P+7}], v[{Lr}:{Lr+3}]
    s_waitcnt vmcnt(0) lgkmcnt(0)
    s_nop 15
    """)
    mprof(A, 5)
    A(f"""
    v_mov_b32 v7, {f32(2.0**100)}
    v_cmp_nlt_f32 vcc, v{Lr}, v7
    s_mov_b64 s[48:49], vcc
    v_mov_b32 v7, 0x207
    """)
    for i in range(16):
        A(f"v_cmp_class_f32 vcc, v{O+i}, v7\ns_or_b64 s[48:49], s[48:49], vcc")
    A(f"""
    v_rcp_f32 v7, v{Lr}
    s_cmp_eq_u64 s[48:49], 0
    s_cbranch_scc1 K2_NOFLAG
    v_mov_b32 v9, {FLAG}
    v_mov_b32 v8, 1
    ds_write_b32 v9, v8
    K2_NOFLAG:
    """)
    for i in range(16):
        A(f"v_mul_f32 v{O+i}, v{O+i}, v7")
    for m in range(8):
        A(f"v_cvt_pk_bf16_f32 v{P+m}, v{O+2*m}, v{O+2*m+1}")
    A(f"""
    s_lshl_b32 s36, s28, 2
    s_add_u32 s36, s36, s31
    s_lshl_b32 s36, s36, 6
    s_lshl_b32 s37, s29, 2
    s_add_u32 s36, s36, s37
    s_lshl_b32 s37, s32, 1
    s_add_u32 s36, s36, s37
    s_lshl_b32 s36, s36, 10
    buffer_store_dwordx4 v[{P}:{P+3}], v2, s[24:27], s36 offen {SC}
    buffer_store_dwordx4 v[{P+4}:{P+7}], v2, s[24:27], s36 offen offset:1024 {SC}
    """)
    uvw_issue(A)
    srd(A, 8, PTR['wo'], 0, 1024*2048)
    srd(A, 12, 20, WS_O, SZ_ACT)
    gemm64_setup(A, 1024, 2048, 64, perm=True)
    g64_w_prologue(A, 2048)
    A(f"""
    s_waitcnt vmcnt(14) lgkmcnt(0)
    s_barrier
    s_cmp_lg_u32 s44, 0
    s_cbranch_scc1 K2_FINISH
    v_mov_b32 v9, {FLAG}
    ds_read_b32 v8, v9
    s_waitcnt lgkmcnt(0)
    v_readfirstlane_b32 s36, v8
    s_nop 3
    s_cmp_eq_u32 s36, 0
    s_cbranch_scc1 K2_FINISH
    s_waitcnt vmcnt(0)
    s_mov_b32 s44, 1
    s_lshl_b32 s42, s30, 12
    v_mov_b32 v7, 0xff800000
    s_mov_b32 s45, 0
    v_add_u32 v5, {SB[0]}, v2
    K2_MAXL:
    s_barrier
    s_lshl_b32 s36, s45, 15
    s_add_u32 s36, s36, s42
    s_add_u32 m0, s42, {SB[0]}
    s_nop 0
    """)
    for q in range(4):
        A(f"buffer_load_dwordx4 v2, s[16:19], s36 offen offset:{q*1024} {SC} lds")
    A("s_waitcnt vmcnt(0)\ns_barrier")
    for u in range(8):
        A(f"""
        ds_read_b128 v[{KF[0]}:{KF[0]+3}], v5 offset:{u*4096}
        ds_read_b128 v[{KF[0]+4}:{KF[0]+7}], v5 offset:{u*4096+1024}
        s_waitcnt lgkmcnt(0)
        v_mfma_f32_32x32x16_bf16 v[{S0}:{S0+15}], v[{KF[0]}:{KF[0]+3}], v[{Q}:{Q+3}], 0
        v_mfma_f32_32x32x16_bf16 v[{S0}:{S0+15}], v[{KF[0]+4}:{KF[0]+7}], v[{Q+4}:{Q+7}], v[{S0}:{S0+15}]
        s_nop 15
        """)
        for i in range(0, 16, 2):
            A(f"v_max3_f32 v7, v7, v{S0+i}, v{S0+i+1}")
    A(f"""
    s_add_u32 s45, s45, 1
    s_cmp_lt_u32 s45, 8
    s_cbranch_scc1 K2_MAXL
    s_barrier
    """)
    kv_issue(SB[0], 0)
    kv_issue(SB[1], 1)
    A(f"""
    s_waitcnt vmcnt(0)
    s_barrier
    s_branch K2_SETC
    K2_FINISH:
    """)
    mprof2(A, 12, 't23')


def phase3(A):
    TOP = 126464
    VEC = TOP + 32768
    A(f"s_lshl_b32 s56, s28, 4\ns_add_u32 s56, s56, s29")
    signal(A, F_O, "s56", wave=0)
    u7 = uid()
    A(f"s_cmp_eq_u32 s30, 7\ns_cbranch_scc0 P3W{u7}")
    dbg_srd(A, 4)
    cnt_load(A, C_MR, 249)
    A(f"s_lshl_b32 s56, s28, 11\ns_add_u32 s56, s56, {F_O}")
    poll(A, [("s56", 16)], [248])
    cnt_check_or_poll(A, [(C_MR, 249, 128)])
    A(f"P3W{u7}:")
    srd(A, 16, PTR['x'], 0, 2048*2048)
    srd(A, 44, 20, 0, 0x18000)
    srd(A, 48, 20, WS_Y, SZ_ACT)
    srd(A, 24, 20, WS_ST2, 0x10000)
    A("s_barrier")
    mprof(A, 6)
    g64_b_prologue(A)
    A("s_waitcnt vmcnt(12)")
    uvw_compute(A)
    def h1(A):
      A(f"""
      v_and_b32 v8, 31, v1               ; t
      v_lshrrev_b32 v9, 5, v1            ; h
      v_lshlrev_b32 v10, 11, v8
      v_lshl_add_u32 v10, v9, 4, v10     ; t*2048 + h*16
      s_lshl_b32 s36, s28, 2
      s_add_u32 s36, s36, s31
      s_lshl_b32 s36, s36, 16
      s_lshl_b32 s37, s29, 7
      s_add_u32 s36, s36, s37
      s_lshl_b32 s37, s32, 6
      s_add_u32 s36, s36, s37
      buffer_load_dwordx4 v[144:147], v10, s[16:19], s36 offen
      buffer_load_dwordx4 v[148:151], v10, s[16:19], s36 offen offset:32
      v_lshlrev_b32 v11, 2, v1
      s_lshl_b32 s36, s29, 8             ; j*64*4
      """)
      for p, r in enumerate((152, 153, 162, 163)):
          A(f"s_add_u32 s37, s36, {0x10000 + p*8192}\nbuffer_load_dword v{r}, v11, s[44:47], s37 offen {SC}")
      for p in range(4):
          A(f"s_add_u32 s37, s36, {p*16384 + 8192}\nbuffer_load_dword v{154+p}, v11, s[44:47], s37 offen {SC}")
      for p in range(4):
          A(f"s_add_u32 s37, s36, {p*16384 + 12288}\nbuffer_load_dword v{158+p}, v11, s[44:47], s37 offen {SC}")
    g64_loop(A, "P3G", 8, 2048, True, {1: (14, h1)})
    A("s_cmp_lt_u32 s2, 224\ns_cbranch_scc0 UV_NOSIG")
    cnt_signal(A, C_UV, wave=0)
    A("UV_NOSIG:")
    mprof(A, 7)
    A(f"""
    v_add_f32 v152, v152, v153
    v_add_f32 v162, v162, v163
    v_add_f32 v152, v152, v162
    v_add_f32 v154, v154, v155
    v_add_f32 v156, v156, v157
    v_add_f32 v158, v158, v159
    v_add_f32 v160, v160, v161
    v_add_f32 v154, v154, v156
    v_add_f32 v158, v158, v160
    v_cvt_pk_bf16_f32 v152, v152, v154
    v_cvt_pk_bf16_f32 v158, v158, v158
    v_and_b32 v154, 0xffff0000, v152       ; sb
    v_lshlrev_b32 v152, 16, v152           ; ga
    v_lshlrev_b32 v158, 16, v158
    v_add_f32 v158, 1.0, v158
    v_cvt_pk_bf16_f32 v158, v158, v158
    v_lshlrev_b32 v158, 16, v158           ; g2
    v_lshlrev_b32 v8, 2, v1
    v_add_u32 v8, {VEC}, v8
    ds_write_b32 v8, v152
    ds_write_b32 v8, v158 offset:256
    v_lshlrev_b32 v8, 1, v1
    v_add_u32 v8, {VEC}, v8
    ds_write_b16_d16_hi v8, v154 offset:512
    ds_write_b16_d16_hi v8, v158 offset:640
    """)
    g64_exchange(A, "P3G", TOP)
    mprof2(A, 12, 't34')
    GA, G2, SBP, G2P = 152, 168, 184, 192
    A(f"""
    v_lshrrev_b32 v9, 5, v1
    v_lshlrev_b32 v10, 4, v9
    s_lshl_b32 s36, s32, 7
    s_add_u32 s36, s36, {VEC}
    v_add_u32 v10, s36, v10
    v_lshlrev_b32 v11, 3, v9
    s_lshl_b32 s36, s32, 6
    s_add_u32 s36, s36, {VEC}
    v_add_u32 v11, s36, v11
    """)
    for jq in range(4):
        A(f"ds_read_b128 v[{GA+4*jq}:{GA+4*jq+3}], v10 offset:{jq*32}")
    for jq in range(4):
        A(f"ds_read_b128 v[{G2+4*jq}:{G2+4*jq+3}], v10 offset:{256 + jq*32}")
    for jq in range(4):
        A(f"ds_read_b64 v[{SBP+2*jq}:{SBP+2*jq+1}], v11 offset:{512 + jq*16}")
        A(f"ds_read_b64 v[{G2P+2*jq}:{G2P+2*jq+1}], v11 offset:{640 + jq*16}")
    A("v_permlane32_swap_b32 v144, v146\nv_permlane32_swap_b32 v145, v147\nv_permlane32_swap_b32 v148, v150\nv_permlane32_swap_b32 v149, v151")
    A(f"""
    s_lshl_b32 s36, s28, 2
    s_add_u32 s36, s36, s31
    s_lshl_b32 s36, s36, 6
    s_lshl_b32 s37, s29, 2
    s_add_u32 s36, s36, s37
    s_lshl_b32 s37, s32, 1
    s_add_u32 s36, s36, s37
    s_lshl_b32 s36, s36, 10
    v_mov_b32 v70, 0x3f803f80
    s_waitcnt lgkmcnt(8)
    """)
    for jq in range(4):
        for d in range(2):
            x = 144 + 2*jq + d
            r = 16 + 4*jq + 2*d
            t = 72 + 2*((2*jq+d) % 4)
            A(f"""
            v_lshlrev_b32 v{t}, 16, v{x}
            v_and_b32 v{t+1}, 0xffff0000, v{x}
            v_fma_f32 v{r}, v{r}, v{GA+4*jq+2*d}, v{t}
            v_fma_f32 v{r+1}, v{r+1}, v{GA+4*jq+2*d+1}, v{t+1}
            """)
    A("s_waitcnt lgkmcnt(0)")
    Z = 48
    for m in range(8):
        A(f"v_mul_f32 v{Z+2*m}, v{16+2*m}, v{G2+2*m}\nv_mul_f32 v{Z+2*m+1}, v{16+2*m+1}, v{G2+2*m+1}")
        A(f"v_cvt_pk_bf16_f32 v{X1R+m}, v{16+2*m}, v{16+2*m+1}")
    for m in range(8):
        A(f"v_cvt_pk_bf16_f32 v{40+m}, v{Z+2*m}, v{Z+2*m+1}")
    A(f"""
    buffer_store_dwordx4 v[40:43], v2, s[48:51], s36 offen {SC}
    buffer_store_dwordx4 v[44:47], v2, s[48:51], s36 offen offset:1024 {SC}
    """)
    mprof2(A, 13, 't34')
    S = 64
    for m in range(8):
        c = (lambda k: "0" if m == 0 else f"v{S+k}")
        A(f"""
        v_dot2_f32_bf16 v{S}, v{X1R+m}, v70, {c(0)}
        v_dot2_f32_bf16 v{S+1}, v{X1R+m}, v{X1R+m}, {c(1)}
        v_dot2_f32_bf16 v{S+2}, v{40+m}, v70, {c(2)}
        v_dot2_f32_bf16 v{S+3}, v{40+m}, v{G2P+m}, {c(3)}
        v_dot2_f32_bf16 v{S+4}, v{40+m}, v{40+m}, {c(4)}
        v_dot2_f32_bf16 v{S+5}, v{40+m}, v{SBP+m}, {c(5)}
        """)
    A("s_nop 2")
    for k in range(6):
        A(f"v_mov_b32 v{72+k}, v{S+k}")
    A("s_nop 1")
    for k in range(6):
        A(f"v_permlane32_swap_b32 v{S+k}, v{72+k}")
    A("s_nop 1")
    for k in range(6):
        A(f"v_add_f32 v{S+k}, v{S+k}, v{72+k}")
    A(f"""
    v_and_b32 v8, 31, v1
    v_lshlrev_b32 v8, 5, v8
    s_lshl_b32 s37, s31, 13
    s_add_u32 s37, s37, {TOP + 4096}
    v_add_u32 v8, s37, v8
    v_mov_b32 v{S+6}, 0
    v_mov_b32 v{S+7}, 0
    s_lshl_b32 s101, s28, 4
    s_add_u32 s101, s101, s29
    s_cmp_eq_u32 s32, 1
    s_cbranch_scc0 P3_ST0
    ds_write_b128 v8, v[{S}:{S+3}]
    ds_write_b128 v8, v[{S+4}:{S+7}] offset:16
    s_waitcnt vmcnt(0) lgkmcnt(0)
    s_barrier
    s_branch P3_STE
    P3_ST0:
    s_waitcnt vmcnt(0)
    s_barrier
    """)
    signal(A, F_Z, "s101", wave=0)
    A(f"""
    ds_read_b128 v[72:75], v8
    ds_read_b128 v[76:79], v8 offset:16
    s_waitcnt lgkmcnt(0)
    """)
    for k in range(6):
        A(f"v_add_f32 v{S+k}, v{S+k}, v{72+k}")
    A(f"""
    v_cmp_lt_u32 vcc, 31, v1
    v_and_b32 v8, 31, v1
    v_lshlrev_b32 v8, 5, v8            ; t*32
    v_lshrrev_b32 v9, 5, v1
    v_lshl_add_u32 v8, v9, 2, v8       ; + h*4
    v_cndmask_b32 v{S}, v{S}, v{S+1}, vcc
    v_cndmask_b32 v{S+2}, v{S+2}, v{S+3}, vcc
    v_cndmask_b32 v{S+4}, v{S+4}, v{S+5}, vcc
    s_lshl_b32 s36, s28, 2
    s_add_u32 s36, s36, s31
    s_lshl_b32 s36, s36, 10
    buffer_atomic_add_f32 v{S}, v8, s[24:27], s36 offen sc1
    buffer_atomic_add_f32 v{S+2}, v8, s[24:27], s36 offen offset:8 sc1
    buffer_atomic_add_f32 v{S+4}, v8, s[24:27], s36 offen offset:16 sc1
    P3_STE:
    """)


def phase4(A):
    SLOT = 28672
    ACC, AF, BF = 16, 128, 184
    AX = 4*SLOT; BX = AX + 7168; AL = BX + 4096
    wg_map_224(A)
    srd(A, 8, PTR['w1'], 0, 1024*7168)
    srd(A, 12, 20, WS_Y, SZ_ACT)
    srd(A, 16, PTR['b1'], 0, 7168)
    srd(A, 24, 20, WS_HH, SZ_HH)
    A("s_cmp_ge_u32 s30, 4\ns_cbranch_scc1 P4_LOADER")
    mprof2(A, 14, 't34')
    A("s_waitcnt vmcnt(0)\ns_barrier")
    mprof2(A, 15, 't34')
    signal(A, F_ST, "s101", wave=0)
    A(f"""
    v_lshrrev_b32 v9, 5, v1            ; h
    s_lshl_b32 s34, s28, 2
    s_add_u32 s34, s34, s30
    s_lshl_b32 s34, s34, 16
    v_bfe_u32 v6, v1, 2, 2
    v_lshlrev_b32 v4, 6, v6
    v_bfe_u32 v5, v1, 4, 1
    v_lshl_add_u32 v4, v5, 5, v4
    v_and_b32 v7, 3, v1
    v_lshl_add_u32 v4, v7, 3, v4
    v_mul_u32_u24 v5, 1792, v9
    v_add_u32 v4, v4, v5
    v_add_u32 v3, {2*SLOT}, v4
    """)
    for i in range(112):
        A(f"v_mov_b32 v{ACC+i}, 0")
    A("s_barrier")
    mprof(A, 8)
    for n in range(8):
        if n == 4:
            A("s_add_u32 s34, s34, 4096")
        A(f"buffer_load_dwordx4 v[{BF+4*n}:{BF+4*n+3}], v2, s[12:15], s34 offen offset:{(n & 3)*1024} {SC}")
    A("s_add_u32 s34, s34, 4096")
    def areads(slot, ks, buf):
        va = "v4" if slot < 2 else "v3"
        base = (slot & 1)*SLOT + ks*7168
        out = []
        for ft in range(7):
            for e in range(2):
                r = AF + 28*buf + 4*ft + 2*e
                out.append(f"ds_read_b64_tr_b16 v[{r}:{r+1}], {va} offset:{base + e*3584 + ft*256}")
        return out
    for x in areads(0, 0, 0):
        A(x)
    A("s_mov_b32 s41, 4\nP4_LOOP:")
    n = 0
    for slot in range(4):
        A("s_barrier")
        if genlib.PROF and genlib.PROFSET == "p4":
            A(f"s_sub_u32 s92, 4, s41\ns_lshl_b32 s92, s92, 2\ns_add_u32 s92, s92, {16+slot}\ns_nop 0\ns_memtime s[90:91]\ns_waitcnt lgkmcnt(0)\ns_mov_b32 m0, s92\nv_writelane_b32 v252, s90, m0")
        for ks in range(4):
            buf = n % 2
            nslot, nks = (slot, ks+1) if ks < 3 else ((slot+1) % 4, 0)
            rd = areads(nslot, nks, 1-buf)
            b = BF + 4*(n % 8)
            A("s_waitcnt vmcnt(7) lgkmcnt(0)")
            for ft in range(7):
                a = AF + 28*buf + 4*ft
                c = ACC + 16*ft
                A(f"v_mfma_f32_32x32x16_bf16 v[{c}:{c+15}], v[{a}:{a+3}], v[{b}:{b+3}], v[{c}:{c+15}]")
                if ft < 5:
                    k = 3 if ft < 4 else 2
                    for x in rd[:k]:
                        A(x)
                    rd = rd[k:]
            A(f"buffer_load_dwordx4 v[{b}:{b+3}], v2, s[12:15], s34 offen offset:{(n & 3)*1024} {SC}")
            if n % 4 == 3:
                A("s_add_u32 s34, s34, 4096")
            n += 1
    A(f"""
    s_sub_u32 s41, s41, 1
    s_cmp_lg_u32 s41, 0
    s_cbranch_scc1 P4_LOOP
    s_waitcnt lgkmcnt(0)
    v_add_u32 v10, {AX}, v2
    """)
    for ft in range(7):
        A(f"ds_read_b128 v[{AF+4*ft}:{AF+4*ft+3}], v10 offset:{ft*1024}")
    A(f"""
    s_lshl_b32 s36, s30, 10
    v_add_u32 v11, s36, v10
    ds_read_b128 v[{AF+28}:{AF+31}], v11 offset:{BX-AX}
    v_and_b32 v11, 31, v1
    v_lshlrev_b32 v11, 2, v11
    s_lshl_b32 s36, s30, 7
    v_add_u32 v11, s36, v11
    v_add_u32 v11, {AL}, v11
    ds_read_b32 v12, v11
    s_waitcnt lgkmcnt(0)
    s_barrier
    """)
    for ft in range(7):
        c = ACC + 16*ft
        A(f"v_mfma_f32_32x32x16_bf16 v[{c}:{c+15}], v[{AF+4*ft}:{AF+4*ft+3}], v[{AF+28}:{AF+31}], v[{c}:{c+15}]")
    A("s_waitcnt vmcnt(0)\ns_nop 15")
    mprof(A, 9)
    A(f"""
    v_mul_f32 v6, {f32(GELU_C1)}, v12
    v_mul_f32 v8, v12, v12
    v_mul_f32 v8, v8, v12
    v_mul_f32 v8, {f32(GELU_C2)}, v8
    v_rcp_f32 v10, v12
    v_mov_b32 v7, v6
    v_mov_b32 v9, v8
    v_mov_b32 v11, v10
    """)
    A(f"""
    s_lshl_b32 s36, s28, 2
    s_add_u32 s36, s36, s30
    s_mul_i32 s36, s36, 224
    s_mul_i32 s37, s29, 14
    s_add_u32 s36, s36, s37
    s_lshl_b32 s36, s36, 10
    """)
    for ft in range(7):
        c = ACC + 16*ft
        T = 160; E = 176
        pr = lambda r, i: f"v[{r+2*i}:{r+2*i+1}]"
        for i in range(8): A(f"v_pk_mul_f32 {pr(T,i)}, {pr(c,i)}, {pr(c,i)}")
        for i in range(8): A(f"v_pk_fma_f32 {pr(T,i)}, {pr(T,i)}, v[8:9], v[6:7]")
        for i in range(8): A(f"v_pk_mul_f32 {pr(T,i)}, {pr(T,i)}, {pr(c,i)}")
        for i in range(16): A(f"v_exp_f32 v{T+i}, v{T+i}")
        for i in range(8): A(f"v_pk_fma_f32 {pr(T,i)}, {pr(T,i)}, v[10:11], v[10:11]")
        for i in range(16): A(f"v_rcp_f32 v{T+i}, v{T+i}")
        for i in range(8): A(f"v_pk_mul_f32 {pr(T,i)}, {pr(T,i)}, {pr(c,i)}")
        P = E + 8*(ft % 2)
        for m in range(8):
            A(f"v_cvt_pk_bf16_f32 v{P+m}, v{T+2*m}, v{T+2*m+1}")
        for e in range(2):
            kidx = 2*ft + e
            if kidx % 4 == 0 and kidx > 0:
                A("s_add_u32 s36, s36, 4096")
            A(f"buffer_store_dwordx4 v[{P+4*e}:{P+4*e+3}], v2, s[24:27], s36 offen offset:{(kidx & 3)*1024} {SC}")
    A(f"""
    s_lshl_b32 s101, s28, 4
    s_add_u32 s101, s101, s29
    """)
    mprof2(A, 12, 't45')
    A("s_branch P4_DONE")
    A(f"""
    P4_LOADER:
    s_setprio 2
    s_sub_u32 s31, s30, 4              ; lw
    s_mul_i32 s36, s31, 28
    v_lshrrev_b32 v5, 4, v1            ; l>>4
    v_add_u32 v5, s36, v5
    v_bfe_u32 v6, v1, 2, 2             ; r
    v_and_b32 v7, 3, v1                ; c
    """)
    for u in range(7):
        A(f"""
        v_add_u32 v8, {4*u}, v5
        v_mul_u32_u24 v9, 9363, v8
        v_lshrrev_b32 v9, 16, v9           ; q
        v_mul_u32_u24 v10, 7, v9
        v_sub_u32 v10, v8, v10             ; ft
        v_lshl_add_u32 v9, v9, 2, v6       ; row = 4q + r
        v_mul_u32_u24 v9, 7168, v9
        v_lshl_add_u32 v9, v10, 6, v9
        v_lshl_add_u32 v{16+u}, v7, 4, v9
        """)
    A(f"""
    s_mul_i32 s33, s29, 448
    s_mul_i32 s39, s31, 7168
    """)
    Q = []
    def issue_stage(st):
        for u in range(7):
            A(f"s_add_u32 m0, s39, {(st % 4)*SLOT + u*1024}\ns_nop 0\nbuffer_load_dwordx4 v{16+u}, s[8:11], s33 offen lds")
        A(f"s_add_u32 s33, s33, {64*7168}")
        Q.extend([("W", st)]*7)
    def wait_tag(tag):
        idx = max(i for i, t in enumerate(Q) if t == tag)
        return len(Q) - 1 - idx
    issue_stage(0)
    issue_stage(1)
    A("s_barrier")
    poll_by(A, 7, [("s56", 16)], [248], pre=f"s_lshl_b32 s56, s28, 11\ns_add_u32 s56, s56, {F_Z}")
    A(f"s_waitcnt vmcnt({wait_tag(('W', 0))})\ns_barrier")
    issue_stage(2)
    srd(A, 44, 20, WS_ST2, 0x10000)
    srd(A, 48, 20, WS_UVW, 2*UVW_P + 128)
    ST = 32; UV = 140
    A(f"""
    v_and_b32 v8, 31, v1               ; f / t
    s_mul_i32 s36, s29, 224
    s_lshl_b32 s37, s31, 5
    s_add_u32 s36, s36, s37            ; F0 = j*224 + lw*32
    v_add_u32 v9, s36, v8              ; F
    v_lshlrev_b32 v14, 2, v9           ; F*4
    v_lshlrev_b32 v15, 1, v9           ; F*2
    v_mov_b32 v236, 0
    s_lshl_b32 s52, s28, 2
    s_add_u32 s52, s52, s31
    s_lshl_b32 s52, s52, 10
    v_lshlrev_b32 v237, 5, v8
    """)
    small = []
    for tsel in range(2):
        for p in range(2):
            for m in range(3):
                small.append(f"s_mov_b32 s53, {p*UVW_P + m*3584*4}\nbuffer_load_dword v{UV+8*tsel+4*p+m}, v14, s[48:51], s53 offen offset:{512*tsel} {SC}")
        small.append(f"buffer_load_ushort v{UV+8*tsel+3}, v15, s[16:19], 0 offen offset:{256*tsel}")
    for p in range(2):
        small.append(f"s_mov_b32 s53, {2*UVW_P + p*64}\nbuffer_load_dwordx4 v[{104+8*p}:{107+8*p}], v236, s[48:51], s53 offen {SC}")
        small.append(f"s_mov_b32 s53, {2*UVW_P + p*64}\nbuffer_load_dwordx4 v[{108+8*p}:{111+8*p}], v236, s[48:51], s53 offen offset:16 {SC}")
    stl = [f"buffer_load_dwordx4 v[{ST}:{ST+3}], v237, s[44:47], s52 offen {SC}",
           f"buffer_load_dwordx4 v[{ST+4}:{ST+7}], v237, s[44:47], s52 offen offset:16 {SC}"]
    def liter(i):
        A(f"s_waitcnt vmcnt({wait_tag(('W', i+1))})\ns_barrier")
        if i + 3 < 16: issue_stage(i+3)
    for i in range(0, 5):
        liter(i)
    dbg_srd(A, 4)
    cnt_load(A, C_UV, 249)
    A(f"""
    v_min_u32 v248, 15, v1
    v_lshlrev_b32 v248, 7, v248
    s_lshl_b32 s56, s28, 11
    s_add_u32 s56, s56, {F_ST}
    buffer_load_dword v248, v248, s[96:99], s56 offen {FLAGS_SFX}
    """)
    Q.extend([("F", 0)]*2)
    liter(5)
    liter(6)
    A(f"s_waitcnt vmcnt({wait_tag(('F', 0))})")
    ug = uid()
    A(f"v_cmp_eq_u32 vcc, {TOK}, v248\ns_cmp_eq_u64 vcc, -1\ns_cbranch_scc1 STOK{ug}")
    poll(A, [("s56", 16)], [248])
    A(f"STOK{ug}:")
    cnt_check_or_poll(A, [(C_UV, 249, 224)])
    for x in stl + small[:7]:
        A(x); Q.append(("S", 0))
    liter(7)
    for x in small[7:]:
        A(x); Q.append(("S", 0))
    liter(8)
    liter(9)
    A(f"s_waitcnt vmcnt({wait_tag(('S', 0))})")
    for k in range(8):
        A(f"v_add_f32 v{104+k}, v{104+k}, v{112+k}")
    for tsel in range(2):
        for m in range(3):
            A(f"v_add_f32 v{UV+8*tsel+m}, v{UV+8*tsel+m}, v{UV+8*tsel+4+m}")
    S1, S2, S3, S4, S5, S6 = [ST+k for k in range(6)]
    G2c, GS, G1c, SB2, SB1 = 104, 105, 106, 109, 110
    iD = f32(1/1024)
    A(f"""
    v_mul_f32 v112, {iD}, v{S1}            ; mu1
    v_mul_f32 v113, {iD}, v{S2}
    v_fma_f32 v113, -v112, v112, v113      ; var1
    v_add_f32 v113, {f32(1e-5)}, v113
    v_rsq_f32 v114, v113                   ; r1
    s_nop 0
    v_mul_f32 v115, v113, v114             ; 1/r1
    v_fma_f32 v116, -v112, v{G1c}, v{S3}
    v_fma_f32 v116, v116, v114, v{SB1}
    v_mul_f32 v116, {iD}, v116             ; m2
    v_mul_f32 v117, v112, v{G2c}
    v_fma_f32 v117, -2.0, v{S4}, v117
    v_fma_f32 v117, v117, v112, v{S5}
    v_mul_f32 v117, v117, v114
    v_fma_f32 v118, -v112, v{GS}, v{S6}
    v_fma_f32 v117, 2.0, v118, v117
    v_fma_f32 v117, v117, v114, v{SB2}
    v_mul_f32 v117, {iD}, v117             ; E2
    v_fma_f32 v117, -v116, v116, v117      ; var2
    v_add_f32 v117, {f32(1e-5)}, v117
    v_rsq_f32 v118, v117                   ; r2
    s_nop 0
    v_mul_f32 v119, v117, v118             ; 1/r2
    v_mul_f32 v120, v114, v118             ; alpha
    v_sub_f32 v121, 0, v112                ; c1 = -mu1
    v_mul_f32 v122, v116, v115
    v_sub_f32 v122, 0, v122                ; c3 = -m2/r1
    v_mul_f32 v123, v115, v119             ; c4 = 1/alpha
    """)
    liter(10)
    split_hilo(A, 121, 124, 125, 8)
    split_hilo(A, 115, 126, 127, 8)
    split_hilo(A, 122, 128, 129, 8)
    split_hilo(A, 123, 130, 131, 8)
    def pk(dst, lo, hi):
        if lo is None and hi is None: A(f"v_mov_b32 v{dst}, 0")
        elif hi is None: A(f"v_lshrrev_b32 v{dst}, 16, v{lo}")
        else: A(f"v_lshrrev_b32 v{dst}, 16, v{lo}\nv_or_b32 v{dst}, v{dst}, v{hi}")
    pk(132, 124, 124); pk(133, 125, 126); pk(134, 126, 127); pk(135, 128, 128)
    pk(136, 129, 130); pk(137, 131, None); pk(138, None, None); pk(139, None, None)
    A(f"""
    v_cmp_lt_u32 vcc, 31, v1
    s_nop 1
    v_cndmask_b32 v132, v132, v136, vcc
    v_cndmask_b32 v133, v133, v137, vcc
    v_cndmask_b32 v134, v134, v138, vcc
    v_cndmask_b32 v135, v135, v139, vcc
    s_lshl_b32 s36, s31, 10
    v_add_u32 v10, s36, v2
    v_add_u32 v10, {BX}, v10
    ds_write_b128 v10, v[132:135]
    v_and_b32 v10, 31, v1
    v_lshlrev_b32 v10, 2, v10
    s_lshl_b32 s36, s31, 7
    v_add_u32 v10, s36, v10
    v_add_u32 v10, {AL}, v10
    ds_write_b32 v10, v120
    s_waitcnt lgkmcnt(0)
    """)
    for tsel in range(2):
        liter(11 + tsel)
        u_, v_, w_, b_ = UV+8*tsel, UV+8*tsel+1, UV+8*tsel+2, UV+8*tsel+3
        split_hilo(A, u_, 124, 125, 8)
        split_hilo(A, v_, 126, 127, 8)
        split_hilo(A, w_, 128, 129, 8)
        A(f"v_lshlrev_b32 v130, 16, v{b_}")
        pk(132, 124, 125); pk(133, 124, 126); pk(134, 127, 126); pk(135, 128, 129)
        pk(136, 128, 130); pk(137, 130, None); pk(138, None, None); pk(139, None, None)
        A(f"""
        v_cndmask_b32 v132, v132, v136, vcc
        v_cndmask_b32 v133, v133, v137, vcc
        v_cndmask_b32 v134, v134, v138, vcc
        v_cndmask_b32 v135, v135, v139, vcc
        s_add_u32 s36, s31, {4*tsel}
        s_cmp_lt_u32 s36, 7
        s_cbranch_scc0 P4_NOAX{tsel}
        s_lshl_b32 s36, s36, 10
        v_add_u32 v10, s36, v2
        v_add_u32 v10, {AX}, v10
        ds_write_b128 v10, v[132:135]
        P4_NOAX{tsel}:
        """)
    A("s_waitcnt lgkmcnt(0)")
    liter(13)
    liter(14)
    A("s_barrier")
    A("s_barrier")
    A("s_setprio 0")
    wg_map_64(A)
    srd(A, 8, PTR['w2'], 0, 3584*2048)
    p5_dma_voff(A)
    for kh in range(2):
        A(f"""
        s_and_b32 s36, s29, 1
        s_mul_i32 s33, s36, 1792
        s_add_u32 s33, s33, {kh*896}
        s_lshl_b32 s36, s31, 4
        s_add_u32 s33, s33, s36
        s_lshl_b32 s33, s33, 11
        s_lshr_b32 s36, s29, 1
        s_lshl_b32 s36, s36, 8
        s_add_u32 s33, s33, s36            ; + jj*256
        s_lshl_b32 s39, s31, 12
        s_add_u32 s39, s39, {kh*16384}
        """)
        for st in range(3):
            for x in p5_w_issue(st): A(x)
    A("P4_DONE:")


def p5_dma_voff(A):
    A("""
    v_bfe_u32 v6, v1, 2, 2
    v_lshlrev_b32 v3, 11, v6           ; r*2048
    v_lshrrev_b32 v5, 4, v1
    v_lshl_add_u32 v3, v5, 6, v3       ; + ft*64
    v_and_b32 v7, 3, v1
    v_lshl_add_u32 v3, v7, 4, v3       ; + c*16
    """)

def p5_w_issue(slot):
    L = []
    for i in range(4):
        L.append(f"s_add_u32 s37, s33, {i*8192}\ns_add_u32 m0, s39, {slot*32768 + i*1024}\ns_nop 0\nbuffer_load_dwordx4 v3, s[8:11], s37 offen lds")
    L.append(f"s_add_u32 s33, s33, {64*2048}")
    return L

def phase5(A):
    ACC5, AF5, BF5 = 16, 80, 112
    NS = 14
    A("s_waitcnt vmcnt(0)\ns_barrier")
    mprof2(A, 13, 't45')
    signal(A, F_HH, "s101", wave=0)
    wg_map_64(A)
    lane_setup(A)
    srd(A, 8, PTR['w2'], 0, 3584*2048)
    srd(A, 12, 20, WS_HH, SZ_HH)
    srd(A, 16, PTR['b2'], 0, 2048)
    srd(A, 24, PTR['out'], 0, 2048*2048)
    srd(A, 44, 20, 0, 0x18000)
    srd(A, 48, 20, WS_XB, 0x800000)
    p5_dma_voff(A)
    A(f"""
    v_bfe_u32 v6, v1, 2, 2
    v_lshlrev_b32 v4, 6, v6
    v_bfe_u32 v5, v1, 4, 1
    v_lshl_add_u32 v4, v5, 5, v4
    v_and_b32 v7, 3, v1
    v_lshl_add_u32 v4, v7, 3, v4
    v_lshrrev_b32 v5, 5, v1
    v_lshl_add_u32 v4, v5, 10, v4
    s_lshl_b32 s36, s32, 14
    v_add_u32 v4, s36, v4
    v_add_u32 v5, 65536, v4
    s_and_b32 s36, s29, 1              ; kq
    s_mul_i32 s33, s36, 1792
    s_mul_i32 s37, s32, 896
    s_add_u32 s33, s33, s37            ; kbase
    s_lshr_b32 s34, s33, 4             ; kstep0
    s_lshl_b32 s37, s31, 4
    s_add_u32 s33, s33, s37
    s_add_u32 s33, s33, {3*64}
    s_lshl_b32 s33, s33, 11
    s_lshr_b32 s37, s29, 1
    s_lshl_b32 s37, s37, 8
    s_add_u32 s33, s33, s37
    s_lshl_b32 s39, s32, 14
    s_lshl_b32 s37, s31, 12
    s_add_u32 s39, s39, s37            ; m0 base
    s_lshl_b32 s37, s28, 2
    s_add_u32 s37, s37, s31
    s_mul_i32 s37, s37, 224
    s_add_u32 s34, s34, s37
    s_lshl_b32 s34, s34, 10
    """)
    poll_by(A, 7, [("s56", 16)], [248], pre=f"s_lshl_b32 s56, s28, 11\ns_add_u32 s56, s56, {F_HH}")
    A("s_barrier")
    mprof(A, 10)
    def b5(slot):
        return [f"buffer_load_dwordx4 v[{BF5+16*slot+4*ks}:{BF5+16*slot+4*ks+3}], v2, s[12:15], s34 offen offset:{ks*1024} {SC}" for ks in range(4)] + ["s_add_u32 s34, s34, 4096"]
    Q = []
    for st in range(3):
        for x in b5(st): A(x)
        Q.extend([("B", st)]*4)
    for i in range(64):
        A(f"v_mov_b32 v{ACC5+i}, 0")
    def wt(*tags):
        w = 63
        for tag in tags:
            idxs = [i for i, t in enumerate(Q) if t == tag]
            if idxs: w = min(w, len(Q) - 1 - max(idxs))
        return w
    def reads(slot, ks, buf):
        va = "v4" if slot < 2 else "v5"
        out = []
        for ft in range(4):
            for e in range(2):
                r = AF5 + 16*buf + 4*ft + 2*e
                out.append(f"ds_read_b64_tr_b16 v[{r}:{r+1}], {va} offset:{(slot & 1)*32768 + ks*4096 + e*2048 + ft*256}")
        return out
    for st in range(NS):
        slot = st % 4
        A(f"s_waitcnt vmcnt({wt(('B', st), ('W', st))})\ns_barrier")
        for x in reads(slot, 0, 0): A(x)
        vm = []
        if st + 3 < NS:
            w = p5_w_issue((st+3) % 4); bb = b5((st+3) % 4)
            vm = [([w[0], w[1]], [("W", st+3)]*2), ([w[2], w[3], w[4]], [("W", st+3)]*2), ([bb[0], bb[1]], [("B", st+3)]*2), ([bb[2], bb[3], bb[4]], [("B", st+3)]*2)]
        for ks in range(4):
            if ks < 3:
                for x in reads(slot, ks+1, (ks+1) & 1): A(x)
                A("s_waitcnt lgkmcnt(8)")
            else:
                A("s_waitcnt lgkmcnt(0)")
            b_ = BF5 + 16*slot + 4*ks
            for ft in range(4):
                a_ = AF5 + 16*(ks & 1) + 4*ft
                c = ACC5 + 16*ft
                A(f"v_mfma_f32_32x32x16_bf16 v[{c}:{c+15}], v[{a_}:{a_+3}], v[{b_}:{b_+3}], v[{c}:{c+15}]")
            if vm:
                for x in vm[ks][0]: A(x)
                Q.extend(vm[ks][1])
            if st == NS-3 and ks == 0:
                A(f"""
                v_lshlrev_b32 v11, 2, v1
                s_lshl_b32 s36, s29, 8
                s_add_u32 s36, s36, {0x10000 + 4096}
                buffer_load_dword v176, v11, s[44:47], s36 offen {SC}
                s_add_u32 s36, s36, 8192
                buffer_load_dword v177, v11, s[44:47], s36 offen {SC}
                s_add_u32 s36, s36, 8192
                buffer_load_dword v178, v11, s[44:47], s36 offen {SC}
                s_add_u32 s36, s36, 8192
                buffer_load_dword v179, v11, s[44:47], s36 offen {SC}
                v_lshlrev_b32 v11, 1, v1
                s_lshl_b32 s36, s29, 7
                buffer_load_ushort v180, v11, s[16:19], s36 offen
                """)
                Q.extend([("E", 0)]*5)
    A("s_waitcnt vmcnt(0)\ns_barrier\ns_nop 15")
    mprof2(A, 14, 't45')
    A(f"""
    v_add_f32 v176, v176, v177
    v_add_f32 v178, v178, v179
    v_add_f32 v176, v176, v178
    v_cvt_pk_bf16_f32 v176, v176, v176
    v_lshlrev_b32 v176, 16, v176
    v_lshlrev_b32 v180, 16, v180
    v_lshlrev_b32 v11, 2, v1
    v_add_u32 v11, 65536, v11
    ds_write_b32 v11, v176
    ds_write_b32 v11, v180 offset:256
    s_lshl_b32 s36, s31, 14            ; tokt*16384
    v_add_u32 v5, s36, v2
    s_cmp_eq_u32 s32, 0
    s_cbranch_scc0 P5_X1
    """)
    for jq in range(4):
        A(f"ds_write_b128 v5, v[{32+4*jq}:{35+4*jq}] offset:{1*4096+jq*1024}")
        A(f"ds_write_b128 v5, v[{64+4*jq}:{67+4*jq}] offset:{3*4096+jq*1024}")
    A("s_branch P5_X2\nP5_X1:")
    for jq in range(4):
        A(f"ds_write_b128 v5, v[{16+4*jq}:{19+4*jq}] offset:{0*4096+jq*1024}")
        A(f"ds_write_b128 v5, v[{48+4*jq}:{51+4*jq}] offset:{2*4096+jq*1024}")
    A("s_nop 1")
    for i in range(16):
        A(f"v_mov_b32 v{16+i}, v{32+i}\nv_mov_b32 v{48+i}, v{64+i}")
    A(f"""
    P5_X2:
    s_waitcnt lgkmcnt(0)
    s_barrier
    s_lshl_b32 s36, s32, 12
    v_add_u32 v5, s36, v5
    """)
    for jq in range(4):
        A(f"ds_read_b128 v[{32+4*jq}:{35+4*jq}], v5 offset:{jq*1024}")
        A(f"ds_read_b128 v[{64+4*jq}:{67+4*jq}], v5 offset:{2*4096+jq*1024}")
    A(f"""
    s_waitcnt lgkmcnt(0)
    s_and_b32 s38, s29, 1              ; kq
    s_cmp_eq_u32 s38, 0
    s_cbranch_scc0 P5_K1
    """)
    for i in range(16):
        A(f"v_add_f32 v{64+i}, v{48+i}, v{64+i}")
    for i in range(16):
        A(f"v_add_f32 v{16+i}, v{16+i}, v{32+i}")
    A("s_branch P5_K2\nP5_K1:")
    for i in range(16):
        A(f"v_add_f32 v{32+i}, v{16+i}, v{32+i}")
    for i in range(16):
        A(f"v_add_f32 v{16+i}, v{48+i}, v{64+i}")
    for i in range(16):
        A(f"v_mov_b32 v{64+i}, v{32+i}")
    A(f"""
    P5_K2:
    s_lshl_b32 s101, s28, 4
    s_add_u32 s101, s101, s29
    s_lshl_b32 s37, s31, 1
    s_add_u32 s37, s37, s32
    s_lshl_b32 s37, s37, 12
    s_lshl_b32 s36, s101, 15
    s_add_u32 s36, s36, s37
    """)
    for jq in range(4):
        A(f"buffer_store_dwordx4 v[{64+4*jq}:{67+4*jq}], v2, s[48:51], s36 offen offset:{jq*1024} {SC}")
    A(f"""
    v_lshrrev_b32 v9, 5, v1
    v_lshlrev_b32 v9, 4, v9
    s_lshl_b32 s38, s32, 7
    s_add_u32 s38, s38, 65536
    v_add_u32 v9, s38, v9
    """)
    for jq in range(4):
        A(f"ds_read_b128 v[{152+4*jq}:{155+4*jq}], v9 offset:{jq*32}")
        A(f"ds_read_b128 v[{168+4*jq}:{171+4*jq}], v9 offset:{256 + jq*32}")
    A("s_waitcnt vmcnt(0) lgkmcnt(0)\ns_barrier")
    signal(A, F_X, "s101", wave=0)
    A(f"s_xor_b32 s38, s101, 1")
    poll_by(A, 7, [("s56", 1)], [248], pre=f"s_lshl_b32 s56, s38, 7\ns_add_u32 s56, s56, {F_X}")
    A(f"""
    s_lshl_b32 s36, s38, 15
    s_add_u32 s36, s36, s37
    s_barrier
    """)
    for jq in range(4):
        A(f"buffer_load_dwordx4 v[{32+4*jq}:{35+4*jq}], v2, s[48:51], s36 offen offset:{jq*1024} {SC}")
    for i in range(16):
        A(f"v_add_f32 v{16+i}, v{16+i}, v{168+i}")
    A("s_waitcnt vmcnt(0)")
    for i in range(16):
        A(f"v_add_f32 v{16+i}, v{16+i}, v{32+i}")
    for jq in range(4):
        for d in range(2):
            x = X1R + 2*jq + d
            r = 16 + 4*jq + 2*d
            A(f"""
            v_lshlrev_b32 v8, 16, v{x}
            v_and_b32 v9, 0xffff0000, v{x}
            v_fma_f32 v{r}, v{r}, v{152+4*jq+2*d}, v8
            v_fma_f32 v{r+1}, v{r+1}, v{152+4*jq+2*d+1}, v9
            """)
    for m in range(8):
        A(f"v_cvt_pk_bf16_f32 v{32+m}, v{16+2*m}, v{16+2*m+1}")
    A(f"""
    s_nop 1
    v_permlane32_swap_b32 v32, v34
    v_permlane32_swap_b32 v33, v35
    v_permlane32_swap_b32 v36, v38
    v_permlane32_swap_b32 v37, v39
    v_and_b32 v8, 31, v1
    v_lshrrev_b32 v9, 5, v1
    v_lshlrev_b32 v10, 11, v8
    v_lshl_add_u32 v10, v9, 4, v10      ; t*2048 + h*16
    s_lshl_b32 s36, s28, 2
    s_add_u32 s36, s36, s31
    s_lshl_b32 s36, s36, 16
    s_lshl_b32 s37, s29, 7
    s_add_u32 s36, s36, s37
    s_lshl_b32 s37, s32, 6
    s_add_u32 s36, s36, s37
    buffer_store_dwordx4 v[32:35], v10, s[24:27], s36 offen
    buffer_store_dwordx4 v[36:39], v10, s[24:27], s36 offen offset:32
    """)


def gen_mega(A, name="mega_kernel"):
    kernel_begin(A, name)
    A(f"""
    s_getpc_b64 s[62:63]
    MEGA_PC:
    s_cmp_ge_u32 s2, 256
    s_cbranch_scc1 MEGA_END
    s_load_dwordx16 s[64:79], s[0:1], 0
    s_load_dwordx8 s[80:87], s[0:1], 64       ; w2 b2 c wmod
    s_load_dwordx2 s[88:89], s[0:1], 96       ; out
    s_load_dwordx2 s[94:95], s[0:1], 104      ; dbg
    s_load_dwordx2 s[20:21], s[0:1], 112      ; ws
    s_memrealtime s[90:91]
    """)
    lane_setup(A)
    A("s_waitcnt lgkmcnt(0)")
    A("s_or_b32 s100, s90, 1")
    mprof(A, 0)
    srd(A, 96, 20, WS_FLAGS, FLAGS_SIZE)
    if OPT.get("code_pf", 1):
        A("""
        s_cmp_eq_u32 s30, 6
        s_cbranch_scc0 CPF_SKIP
        s_lshr_b32 s36, s2, 3
        s_lshl_b32 s36, s36, 4
        v_and_b32 v5, 15, v1
        v_add_u32 v5, s36, v5
        v_lshlrev_b32 v5, 7, v5
        s_mov_b32 s37, MEGA_CODE_END-MEGA_PC-8
        v_min_u32 v5, s37, v5
        v_and_b32 v5, -4, v5
        global_load_dword v254, v5, s[62:63]
        CPF_SKIP:
        """)
    phase01(A)
    mprof(A, 1)
    phase2(A)
    phase3(A)
    phase4(A)
    phase5(A)
    if genlib.PROF: A("s_waitcnt vmcnt(0)")
    mprof(A, 11)
    mprof_dump(A)
    mprof_dbg(A)
    A("MEGA_END:\ns_endpgm\nMEGA_CODE_END:")
    kernel_end(A, name, 256)
```
